```python
import torch

def _softmax(x, axis=-1):
    return torch.softmax(x, dim=axis)
def _gelu(x):
    return torch.nn.functional.gelu(x, approximate="tanh")
def _silu(x):
    return torch.nn.functional.silu(x)
def _sigmoid(x):
    return torch.sigmoid(x)
def _layernorm(x, axis=-1, eps=1e-5):
    m = x.mean(dim=axis, keepdim=True)
    v = x.var(dim=axis, keepdim=True, unbiased=False)
    return (x - m) / torch.sqrt(v + eps)
def _scatter_add(tgt, idx, src, axis=0):
    return tgt.clone().index_add_(axis, idx, src)
def _segment_sum(src, seg, n):
    out = torch.zeros((n,) + src.shape[1:], dtype=src.dtype)
    return out.index_add_(0, seg, src)
def _pad(x, pw):
    flat = tuple(v for pair in reversed(pw) for v in pair)
    return torch.nn.functional.pad(x, flat)

kernel_name = 'recurrent_scan__gqa_block_cached__glu_gated_reglu__prompt'

def setup_inputs():

    _w = (lambda a: (lambda t: t.to(torch.bfloat16) if t.is_floating_point() else t)(torch.as_tensor(a)))
    def _A_setup():
        B, Sq, D = 1, 2048, 576
        Hq, Hkv, Sk, Dh = 32, 16, 2048, 128
        assert Hq % Hkv == 0, (Hq, Hkv)
        return {
            "x": _w((lambda *s: torch.randn(*s, dtype=torch.bfloat16) * 0.05)(B, Sq, D)),
            "k_cache": _w((lambda *s: torch.randn(*s, dtype=torch.bfloat16) * 1.6)(B, Hkv, Sk, Dh)),
            "v_cache": _w((lambda *s: torch.randn(*s, dtype=torch.bfloat16) * 1.6)(B, Hkv, Sk, Dh)),
            "wq": _w((lambda *s: torch.randn(*s, dtype=torch.bfloat16) * 1.6)(D, Hq * Dh) * (D ** -0.5)),
            "wo": _w((lambda *s: torch.randn(*s, dtype=torch.bfloat16) * 1.6)(Hq * Dh, D) * ((Hq * Dh) ** -0.5)),
        }
    _A_in = _A_setup()

    def _B_setup():
        B, S, D, F = 1, 2048, 576, 4608
        return {
            "x": _w((lambda *s: torch.randn(*s, dtype=torch.bfloat16) * 0.05)(B, S, D)),
            "W_gate": _w((lambda *s: torch.randn(*s, dtype=torch.bfloat16) * 0.2)(D, F) * (2.0 / D) ** 0.5),
            "W_up": _w((lambda *s: torch.randn(*s, dtype=torch.bfloat16) * 0.2)(D, F) * (2.0 / D) ** 0.5),
            "W_down": _w((lambda *s: torch.randn(*s, dtype=torch.bfloat16) * 0.2)(F, D) * (1.0 / F) ** 0.5),
        }
    _B_in = _B_setup()

    return {
        "A_x": _A_in["x"],
        "A_k_cache": _A_in["k_cache"],
        "A_v_cache": _A_in["v_cache"],
        "A_wq": _A_in["wq"],
        "A_wo": _A_in["wo"],
        "B_x": _B_in["x"],
        "B_W_gate": _B_in["W_gate"],
        "B_W_up": _B_in["W_up"],
        "B_W_down": _B_in["W_down"],
    }

def reference(A_x, A_k_cache, A_v_cache, A_wq, A_wo, B_x, B_W_gate, B_W_up, B_W_down):
    def _A_ref(x, k_cache, v_cache, wq, wo):
        B, Sq, D = x.shape
        Hq, Dh = 32, 128
        Hkv = k_cache.shape[1]
        rep = Hq // Hkv
        q = (lambda x, *d: x.permute(*d))((x @ wq).reshape(B, Sq, Hq, Dh), 0, 2, 1, 3)
        k = (lambda x, n, axis: torch.repeat_interleave(x, n, dim=axis))(k_cache, rep, axis=1)
        v = (lambda x, n, axis: torch.repeat_interleave(x, n, dim=axis))(v_cache, rep, axis=1)
        scores = torch.einsum("bhqd,bhkd->bhqk", q, k) * (Dh ** -0.5)
        p = _softmax(scores, axis=-1)
        o = torch.einsum("bhqk,bhkd->bhqd", p, v)
        return (lambda x, *d: x.permute(*d))(o, 0, 2, 1, 3).reshape(B, Sq, Hq * Dh) @ wo

    def _B_ref(x, W_gate, W_up, W_down):
        gate = torch.einsum("bsd,df->bsf", x, W_gate)
        up = torch.einsum("bsd,df->bsf", x, W_up)
        gate = gate * (lambda x, dt: x.to(dt))(gate > 0, gate.dtype)
        h = gate * up
        return torch.einsum("bsf,fd->bsd", h, W_down)

    x = A_x
    xn = _layernorm(x, axis=-1)
    s = _A_ref(xn, A_k_cache, A_v_cache, A_wq, A_wo)
    g = _silu(_B_ref(xn, B_W_gate, B_W_up, B_W_down))
    return x + s * g
```

```python
import re

class R:
    __slots__ = ("k", "i", "n")
    def __init__(self, k, i, n=1):
        self.k, self.i, self.n = k, i, n
    def __str__(self):
        if self.k in ("vcc", "exec", "m0", "scc"):
            return self.k
        return f"{self.k}{self.i}" if self.n == 1 else f"{self.k}[{self.i}:{self.i+self.n-1}]"
    __repr__ = __str__
    def __getitem__(self, j):
        assert 0 <= j < self.n, (self, j)
        return R(self.k, self.i + j, 1)
    def sub(self, j, n):
        assert 0 <= j and j + n <= self.n, (self, j, n)
        return R(self.k, self.i + j, n)
    def regs(self):
        if self.k == "vcc": return [("s", 106), ("s", 107)]
        if self.k == "exec": return [("s", 126), ("s", 127)]
        if self.k == "m0": return [("s", 124)]
        if self.k == "scc": return [("scc", 0)]
        return [(self.k, self.i + j) for j in range(self.n)]

def V(i, n=1): return R("v", i, n)
def A(i, n=1): return R("a", i, n)
def S(i, n=1): return R("s", i, n)
VCC = R("vcc", 0); EXEC = R("exec", 0); M0 = R("m0", 0); SCC = R("scc", 0)

TRANS = ("v_exp_f32", "v_log_f32", "v_rcp_f32", "v_rsq_f32", "v_sqrt_f32", "v_sin_f32", "v_cos_f32")

def regs_of(x):
    out = []
    if isinstance(x, R):
        return x.regs()
    if isinstance(x, (list, tuple)):
        for y in x: out += regs_of(y)
    if isinstance(x, Neg):
        return x.r.regs()
    return out

class Neg:
    def __init__(self, r, pre="-", post=""):
        self.r, self.pre, self.post = r, pre, post
    def __str__(self): return f"{self.pre}{self.r}{self.post}"

def fmt(x):
    if isinstance(x, float):
        import struct
        if x in (0.5, 1.0, 2.0, 4.0, -0.5, -1.0, -2.0, -4.0): return repr(x)
        if x == 0.0: return "0"
        return "0x%08x" % struct.unpack("<I", struct.pack("<f", x))[0]
    if isinstance(x, int):
        return str(x) if -16 <= x <= 64 else hex(x & 0xFFFFFFFF)
    return str(x)

class Ins:
    __slots__ = ("text", "cls", "defs", "uses", "cuses", "passes", "tags", "lds", "wait", "nop", "wide", "op", "meta")
    def __init__(self, text, cls, defs=(), uses=(), cuses=(), passes=0, tags=(), lds=None, op=""):
        self.text, self.cls = text, cls
        self.defs, self.uses, self.cuses = list(defs), list(uses), list(cuses)
        self.passes = passes
        self.tags = set(tags)
        self.lds = lds
        self.wait = None
        self.nop = 0
        self.wide = False
        self.op = op
        self.meta = None
    def cost(self):
        if self.cls == "trans": return 2
        if self.cls in ("label", "comment"): return 0
        return 1

class Seg(list):
    def add(self, ins):
        self.append(ins); return ins
    def raw(self, text, cls="other", defs=(), uses=()):
        return self.add(Ins(text, cls, regs_of(list(defs)), regs_of(list(uses))))
    def label(self, name):
        return self.add(Ins(name + ":", "label"))
    def comment(self, t):
        return self.add(Ins("; " + t, "comment"))
    def v(self, op, dst, *srcs, mods="", extra_defs=(), extra_uses=()):
        base = re.sub(r"_(e32|e64|dpp|sdwa)$", "", op)
        cls = "trans" if base in TRANS else "valu"
        defs = regs_of(dst) + regs_of(list(extra_defs))
        uses = regs_of(list(srcs)) + regs_of(list(extra_uses))
        if base in ("v_fmac_f32", "v_pk_fmac_f16", "v_dot2c_f32_bf16", "v_writelane_b32"):
            uses += regs_of(dst)
        if base in ("v_permlane32_swap_b32", "v_permlane16_swap_b32"):
            uses += regs_of(dst); defs += regs_of(srcs[0])
        if base.startswith("v_cndmask") and len(srcs) == 2:
            uses += VCC.regs()
        text = f"{op} {fmt(dst)}" + "".join(", " + fmt(s) for s in srcs) + (" " + mods if mods else "")
        return self.add(Ins(text, cls, defs, uses, op=base))
    def acc_read(self, dst, src):  return self.v("v_accvgpr_read_b32", dst, src)
    def acc_write(self, dst, src): return self.v("v_accvgpr_write_b32", dst, src)
    def s(self, op, dst, *srcs):
        defs = regs_of(dst); uses = regs_of(list(srcs))
        if op.startswith("s_cmp") or op.startswith("s_bitcmp"):
            uses += regs_of(dst); defs = SCC.regs()
        elif op in ("s_add_u32", "s_sub_u32", "s_addc_u32", "s_subb_u32", "s_lshl_b32", "s_lshr_b32", "s_and_b32", "s_or_b32",
                    "s_xor_b32", "s_and_b64", "s_or_b64", "s_add_i32", "s_sub_i32", "s_ashr_i32", "s_min_u32", "s_max_u32",
                    "s_andn2_b64", "s_lshl_b64", "s_xor_b64", "s_bfe_u32"):
            defs += SCC.regs()
        if op in ("s_addc_u32", "s_subb_u32", "s_cselect_b32", "s_cselect_b64"):
            uses += SCC.regs()
        if op.endswith("saveexec_b64"):
            defs += EXEC.regs() + SCC.regs(); uses += EXEC.regs()
        text = f"{op} {fmt(dst)}" + "".join(", " + fmt(s) for s in srcs)
        return self.add(Ins(text, "salu", defs, uses, op=op))
    def s_load(self, dst, base, off):
        op = {1: "s_load_dword", 2: "s_load_dwordx2", 4: "s_load_dwordx4", 8: "s_load_dwordx8", 16: "s_load_dwordx16"}[dst.n]
        return self.add(Ins(f"{op} {dst}, {base}, {hex(off)}", "smem", dst.regs(), base.regs(), op=op))
    def mfma(self, d, a, b, c, shape=16):
        op, w, p = ("v_mfma_f32_16x16x32_bf16", 4, 4) if shape == 16 else ("v_mfma_f32_32x32x16_bf16", 16, 8)
        assert d.n == w and a.n == 4 and b.n == 4, (d, a, b)
        cu = regs_of(c)
        if isinstance(c, R): assert c.n == w and c.k == d.k, (c, d)
        ins = Ins(f"{op} {d}, {a}, {b}, {fmt(c)}", "mfma", d.regs(), a.regs() + b.regs(), cu, passes=p, op=op)
        return self.add(ins)
    def ds_read(self, op, dst, addr, off=0, tags=(), lds=None):
        assert 0 <= off < 65536, off
        t = f"{op} {dst}, {addr}" + (f" offset:{off}" if off else "")
        return self.add(Ins(t, "dsrd", dst.regs(), addr.regs(), tags=tags, lds=lds, op=op))
    def ds_write(self, op, addr, data, off=0, tags=(), lds=None):
        assert 0 <= off < 65536, off
        t = f"{op} {addr}, {data}" + (f" offset:{off}" if off else "")
        return self.add(Ins(t, "dswr", [], addr.regs() + data.regs(), tags=tags, lds=lds, op=op))
    def _boff(self, voff, srd, soff, off, flags):
        assert 0 <= off < 4096, off
        t = f"{voff if voff is not None else 'off'}, {srd}, {fmt(soff)}"
        if voff is not None: t += " offen"
        if off: t += f" offset:{off}"
        if flags: t += " " + flags
        return t, regs_of([voff, srd, soff])
    def buf_load(self, dst, voff, srd, soff=0, off=0, flags="", tags=()):
        op = {1: "buffer_load_dword", 2: "buffer_load_dwordx2", 4: "buffer_load_dwordx4"}[dst.n]
        t, u = self._boff(voff, srd, soff, off, flags)
        return self.add(Ins(f"{op} {dst}, {t}", "vmld", dst.regs(), u, tags=tags, op=op))
    def buf_dma(self, voff, srd, soff=0, off=0, flags="", tags=(), lds=None):
        t, u = self._boff(voff, srd, soff, off, flags)
        return self.add(Ins(f"buffer_load_dwordx4 {t} lds", "dma", [], u + M0.regs(), tags=tags, lds=lds, op="dma"))
    def buf_store(self, data, voff, srd, soff=0, off=0, flags="", tags=()):
        op = {1: "buffer_store_dword", 2: "buffer_store_dwordx2", 4: "buffer_store_dwordx4"}[data.n]
        t, u = self._boff(voff, srd, soff, off, flags)
        ins = Ins(f"{op} {data}, {t}", "vmst", [], u + data.regs(), tags=tags, op=op)
        ins.wide = data.n >= 3
        ins.meta = data.regs()
        return self.add(ins)
    def wait(self, vm=None, lgkm=None):
        ins = Ins("s_waitcnt", "wait"); ins.wait = dict(vm=vm, lgkm=lgkm); return self.add(ins)
    def barrier(self): return self.add(Ins("s_barrier", "barrier"))
    def nop(self, n=0):
        ins = Ins(f"s_nop {n}", "nop"); ins.nop = n; return self.add(ins)
    def branch(self, op, target):
        u = SCC.regs() if "scc" in op else (VCC.regs() if "vcc" in op else (EXEC.regs() if "exec" in op else []))
        return self.add(Ins(f"{op} {target}", "branch", [], u, op=op))
    def endpgm(self): return self.add(Ins("s_endpgm", "end"))
    def setprio(self, n): return self.add(Ins(f"s_setprio {n}", "salu"))

class CheckError(Exception):
    pass

def resolve_waits(trace):
    best = {}
    vmq, lgq = [], []
    for ins in trace:
        if ins.cls in ("vmld", "dma", "vmst"): vmq.append(ins)
        elif ins.cls in ("dsrd", "dswr"): lgq.append(ins)
        elif ins.cls == "wait":
            for key, q in (("vm", vmq), ("lgkm", lgq)):
                w = ins.wait[key]
                if isinstance(w, tuple):
                    n = None
                    for k, o in enumerate(reversed(q)):
                        if w[1] in o.tags:
                            n = k; break
                    if n is None: n = len(q) if False else None
                    kk = (id(ins), key)
                    if n is not None and len(w) > 2: n = min(n, w[2])
                    if n is not None:
                        best[kk] = min(best.get(kk, (10**9, ins))[0], n), ins
                    else:
                        best.setdefault(kk, (10**9, ins))
    for (i, key), (n, ins) in best.items():
        mx = 63 if key == "vm" else 15
        ins.wait = dict(ins.wait)
        ins.wait[key] = min(n, mx) if n < 10**9 else None
    for ins in trace:
        if ins.cls == "wait" and ins.text == "s_waitcnt" or (ins.cls == "wait"):
            vm, lg = ins.wait["vm"], ins.wait["lgkm"]
            if isinstance(vm, tuple) or isinstance(lg, tuple):
                continue
            parts = []
            if vm is not None: parts.append(f"vmcnt({vm})")
            if lg is not None: parts.append(f"lgkmcnt({lg})")
            ins.text = "s_waitcnt " + " ".join(parts) if parts else "s_nop 0"

def overlap(a, b):
    return a is not None and b is not None and a[0] < b[1] and b[0] < a[1]

def check(trace, name="", verbose=False):
    errs = []
    def err(i, msg):
        ctx = " | ".join(x.text for x in trace[max(0, i - 2): i + 1])
        errs.append(f"[{name}] #{i}: {msg}   <<{ctx}>>")
    T = 0
    wr = {}
    cread = {}
    stdata = {}
    vmq, lgq = [], []
    pend = {}
    smem_pend = set()
    m0_t = -10
    fills = []
    reads = []
    for i, ins in enumerate(trace):
        c = ins.cls
        if c in ("label", "comment"): continue
        allr = ins.uses + ins.cuses
        for r in allr + ins.defs:
            if r in pend:
                err(i, f"register {r} touched while load pending ({pend[r].text})")
            if r in smem_pend and c != "smem":
                err(i, f"register {r} touched while scalar load pending")
        def gap(t): return T - t - 1
        for r in ins.uses + ins.cuses:
            if r not in wr: continue
            t, wc, w = wr[r]
            need = 0
            if wc in ("valu", "trans"):
                if c == "mfma" and r[0] in "va": need = 2
                elif r[0] == "s" and c in ("valu", "trans", "mfma") : need = 2
                elif r[0] == "s" and c in ("vmld", "vmst", "dma"): need = 5
                elif r[0] == "s" and c in ("salu", "branch", "smem"): need = 1
                elif ins.op in ("v_readfirstlane_b32", "v_readlane_b32") and r[0] == "v": need = 1
                elif ins.op.startswith("v_permlane") or "dpp" in ins.text or "row_" in ins.text: need = 2
                if wc == "trans" and c in ("valu", "dswr", "vmst", "vmld", "dma", "dsrd"): need = max(need, 1)
            elif wc == "mfma":
                p = w.passes
                if c == "mfma":
                    if r in ins.cuses and r not in ins.uses:
                        same = (ins.cuses == w.defs)
                        need = (2 if p == 2 else 0) if same else {2: 4, 4: 6, 8: 10, 16: 18}[p]
                    else:
                        need = {2: 5, 4: 8, 8: 12, 16: 20}[p]
                else:
                    need = {2: 5, 4: 8, 8: 12, 16: 20}[p]
            elif wc == "salu" and r == ("s", 124) and c == "dma":
                need = 1
            if gap(t) < need:
                err(i, f"RAW hazard on {r}: gap {gap(t)} < {need} after '{w.text}'")
        for r in ins.defs:
            if r in wr:
                t, wc, w = wr[r]
                if wc == "mfma" and c != "mfma":
                    need = {2: 5, 4: 8, 8: 12, 16: 20}[w.passes]
                    if gap(t) < need: err(i, f"WAW hazard on {r} after mfma: gap {gap(t)} < {need}")
                if wc == "mfma" and c == "mfma" and r not in ins.cuses:
                    need = {2: 4, 4: 6, 8: 10, 16: 18}[w.passes]
                    if gap(t) < need: err(i, f"mfma WAW on {r} without chain: gap {gap(t)} < {need}")
            if r in cread and c in ("valu", "trans"):
                t, p = cread[r]
                need = {2: 1, 4: 3, 8: 7, 16: 15}[p]
                if gap(t) < need: err(i, f"WAR hazard on mfma SrcC {r}: gap {gap(t)} < {need}")
            if r in stdata:
                need = 2 if c in ("valu", "trans") else 1
                if gap(stdata[r]) < need: err(i, f"store data {r} overwritten too early")
        if c == "dsrd" and ins.lds is not None:
            for f in fills:
                if overlap(f[0], ins.lds) and f[1] != "visible":
                    err(i, f"LDS read {ins.lds} of fill {f[0]} (#{f[2]}) not yet visible ({f[1]})")
            reads.append([ins.lds, "issued", i, ins])
        if c in ("dma", "dswr") and ins.lds is not None:
            for rd in reads:
                if overlap(rd[0], ins.lds) and rd[1] != "released":
                    err(i, f"LDS fill {ins.lds} overwrites range still read by #{rd[2]} ({rd[1]})")
            reads[:] = [rd for rd in reads if not (overlap(rd[0], ins.lds) and rd[1] == "released")]
            fills[:] = [f for f in fills if not (ins.lds[0] <= f[0][0] and f[0][1] <= ins.lds[1] and f[1] == "visible")]
            fills.append([ins.lds, "issued", i, ins])
        if c == "wait":
            vm, lg = ins.wait["vm"], ins.wait["lgkm"]
            assert not isinstance(vm, tuple) and not isinstance(lg, tuple), "unresolved wait"
            if vm is not None:
                while len(vmq) > vm:
                    o = vmq.pop(0)
                    for r in o.defs: pend.pop(r, None)
                    for f in fills:
                        if f[3] is o and f[1] == "issued": f[1] = "done"
            if lg is not None:
                while len(lgq) > lg:
                    o = lgq.pop(0)
                    for r in o.defs: pend.pop(r, None)
                    for rd in reads:
                        if rd[3] is o and rd[1] == "issued": rd[1] = "done"
                    for f in fills:
                        if f[3] is o and f[1] == "issued": f[1] = "done"
                if lg == 0: smem_pend.clear()
        elif c == "barrier":
            for f in fills:
                if f[1] == "done": f[1] = "visible"
            for rd in reads:
                if rd[1] == "done": rd[1] = "released"
        elif c in ("vmld", "dma", "vmst"):
            vmq.append(ins)
            if len(vmq) > 63: err(i, "more than 63 VMEM ops outstanding")
            if c == "vmld":
                for r in ins.defs: pend[r] = ins
            if c == "vmst" and ins.wide:
                for r in ins.meta: stdata[r] = T
        elif c in ("dsrd", "dswr"):
            lgq.append(ins)
            if len(lgq) > 15:
                o = lgq.pop(0)
                for r in o.defs: pend.pop(r, None)
                for rd in reads:
                    if rd[3] is o and rd[1] == "issued": rd[1] = "done"
                for f in fills:
                    if f[3] is o and f[1] == "issued": f[1] = "done"
            if c == "dsrd":
                for r in ins.defs: pend[r] = ins
        elif c == "smem":
            for r in ins.defs: smem_pend.add(r)
        for r in ins.defs:
            wr[r] = (T, c, ins)
        if c == "mfma":
            for r in ins.cuses: cread[r] = (T, ins.passes)
        T += 1 + (ins.nop if c == "nop" else 0)
    if errs:
        for e in errs[:40]: print(e)
        raise CheckError(f"{len(errs)} hazard errors in {name}")

def render(segs):
    out = []
    for s in segs:
        for ins in s:
            if ins.cls == "label": out.append(ins.text)
            else: out.append("    " + ins.text)
    return "\n".join(out) + "\n"

def kernel_text(name, body, vgpr=512, accum=256, sgpr=102):
    return f""".globl {name}
.p2align 8
.type {name},@function
{name}:
{body}
.section .rodata,"a"
.p2align 6
.amdhsa_kernel {name}
  .amdhsa_next_free_vgpr {vgpr}
  .amdhsa_next_free_sgpr {sgpr}
  .amdhsa_accum_offset {accum}
  .amdhsa_group_segment_fixed_size 0
  .amdhsa_kernarg_size 96
  .amdhsa_user_sgpr_count 2
  .amdhsa_user_sgpr_kernarg_segment_ptr 1
  .amdhsa_system_sgpr_workgroup_id_x 1
  .amdhsa_float_denorm_mode_32 3
.end_amdhsa_kernel
.text
"""

def weave(mf, fillers, cap=2):
    by = {}
    for g, ins in fillers:
        by.setdefault(g, []).append(ins)
    out = Seg()
    for ins in by.get(-1, []): out.add(ins)
    for i, m in enumerate(mf):
        out.add(m)
        for ins in by.get(i, []): out.add(ins)
    extra = [g for g in by if g >= len(mf) or g < -1]
    assert not extra, extra
    return out
```

```python
from asmgen import *

WS_XN, SZ_XN = 0x0, 128 * 18 * 1024
WS_H, SZ_H = 0x240000, 128 * 144 * 1024
WS_O, SZ_O = 0x1440000, 128 * 128 * 1024
WS_P, SZ_P = 0x2440000, 8 * 128 * 4 * 4608
KA = dict(x=0, k=8, v=16, wq=24, wo=32, bx=40, wg=48, wu=56, wd=64, out=72, dbg=80, ws=88)
SZ = dict(x=2048 * 576 * 2, k=16 * 2048 * 128 * 2, v=16 * 2048 * 128 * 2, wq=576 * 4096 * 2, wo=4096 * 576 * 2,
          wg=576 * 4608 * 2, wu=576 * 4608 * 2, wd=4608 * 576 * 2, out=2048 * 576 * 2)

def make_srd(p, srd, ptr, size, add=None):
    if add is None:
        p.s("s_mov_b32", srd[0], ptr[0])
        p.s("s_mov_b32", srd[1], ptr[1])
    else:
        p.s("s_add_u32", srd[0], ptr[0], add)
        p.s("s_addc_u32", srd[1], ptr[1], 0)
    p.s("s_mov_b32", srd[2], size)
    p.s("s_mov_b32", srd[3], 0x20000)

def wave_id(p, sdst, vtmp):
    p.v("v_lshrrev_b32", vtmp, 6, V(0))
    p.nop(0)
    p.v("v_readfirstlane_b32", sdst, vtmp)
    p.nop(3)

def guard(p, n, label):
    p.s("s_cmp_ge_u32", S(2), n)
    p.branch("s_cbranch_scc1", label)

WS_STAMP = 0x8000000
class Stamps:
    def __init__(self, enabled, base=70):
        self.on, self.base, self.n = enabled, base, 0
    def stamp(self, p):
        if not self.on: return
        r = S(self.base + 2 * self.n, 2); self.n += 1
        p.add(Ins(f"s_memtime {r}", "other"))
        p.add(Ins("s_waitcnt lgkmcnt(0)", "other"))
    def dump(self, p, pws, swave, n=None):
        if not self.on: return
        n = n or self.n
        srd = S(64, 4)
        make_srd(p, srd, pws, 0x100000, add=WS_STAMP)
        p.s("s_lshl_b32", S(68), S(2), 2)
        p.s("s_add_u32", S(68), S(68), swave)
        p.s("s_lshl_b32", S(68), S(68), 6)
        p.v("v_mov_b32", V(0), 0)
        for i in range(n):
            p.s("s_sub_u32", S(69), S(self.base + 2 * i), S(self.base))
            p.v("v_mov_b32", V(1), S(69))
            p.buf_store(V(1), V(0), srd, S(68), 4 * i)
```

```python
from common import *

def gen_fin(name="fin_kernel"):
    p = Seg()
    guard(p, 256, name + "_end")
    px, pws, pout = S(4, 2), S(6, 2), S(8, 2)
    p.s_load(px, S(0, 2), KA["x"])
    p.s_load(pws, S(0, 2), KA["ws"])
    p.s_load(pout, S(0, 2), KA["out"])
    sw = S(10)
    wave_id(p, sw, V(1))
    lane = V(1)
    p.v("v_and_b32", lane, 63, V(0))
    sT, spb, sN = S(11), S(28), S(29)
    p.s("s_lshl_b32", sT, S(2), 1)
    p.s("s_add_u32", sT, sT, sw)
    p.s("s_lshr_b32", spb, sT, 2)
    p.s("s_and_b32", sN, sT, 3)
    p.wait(lgkm=0)
    sx, sp, so = S(12, 4), S(16, 4), S(20, 4)
    make_srd(p, sx, px, SZ["x"])
    make_srd(p, sp, pws, SZ_P, add=WS_P)
    make_srd(p, so, pout, SZ["out"])
    v16, v8, vx = V(2), V(3), V(4)
    p.v("v_lshlrev_b32", v16, 4, lane)
    p.v("v_lshlrev_b32", v8, 3, lane)
    t0 = V(5)
    p.v("v_and_b32", t0, 15, lane)
    p.v("v_mul_u32_u24", vx, 1152, t0)
    p.v("v_lshrrev_b32", t0, 4, lane)
    p.v("v_lshl_add_u32", vx, t0, 3, vx)
    sxo = S(30)
    p.s("s_mul_i32", sxo, spb, 16 * 1152)
    p.s("s_mul_i32", S(31), sN, 288)
    p.s("s_add_u32", sxo, sxo, S(31))
    sp0 = S(32, 8)
    p.s("s_mul_i32", sp0[0], sT, 4608)
    for s_ in range(1, 8):
        p.s("s_add_u32", sp0[s_], sp0[0], s_ * 128 * 4 * 4608)
    PP = V(16, 128)
    PS = V(144, 16)
    X = V(160, 18)
    for pr in range(4):
        for s_ in range(8):
            p.buf_load(PP.sub((s_ * 4 + pr) * 4, 4), v16, sp, sp0[s_], pr * 1024, tags=[f"p{pr}"])
    for s_ in range(8):
        p.buf_load(PS.sub(s_ * 2, 2), v8, sp, sp0[s_], 0, tags=["p4"]) if False else None
    sp1 = S(40, 8)
    for s_ in range(8):
        p.s("s_add_u32", sp1[s_], sp0[s_], 4096)
    for s_ in range(8):
        p.buf_load(PS.sub(s_ * 2, 2), v8, sp, sp1[s_], 0, tags=["p4"])
    for b in range(9):
        p.buf_load(X.sub(2 * b, 2), vx, sx, sxo, 32 * b, tags=["x"])
    smask, slog = S(48), S(49)
    p.s("s_mov_b32", smask, 0xFFFF0000)
    p.s("s_mov_b32", slog, -1.4426950408889634)
    T = V(180, 16)
    def finish(blk, srcs):
        sa, ga, tmp = T.sub(0, 4), T.sub(4, 4), T.sub(8, 4)
        for grp, dst in ((range(0, 4), sa), (range(4, 8), ga)):
            for k, s_ in enumerate(grp):
                r = srcs[s_]
                if k == 0:
                    p.v("v_lshlrev_b32", dst[0], 16, r[0]); p.v("v_and_b32", dst[1], smask, r[0])
                    p.v("v_lshlrev_b32", dst[2], 16, r[1]); p.v("v_and_b32", dst[3], smask, r[1])
                else:
                    p.v("v_lshlrev_b32", tmp[0], 16, r[0]); p.v("v_and_b32", tmp[1], smask, r[0])
                    p.v("v_lshlrev_b32", tmp[2], 16, r[1]); p.v("v_and_b32", tmp[3], smask, r[1])
                    for e in range(4): p.v("v_add_f32", dst[e], dst[e], tmp[e])
        ex = T.sub(12, 4)
        for e in range(4): p.v("v_mul_f32", ex[e], slog, ga[e])
        for e in range(4): p.v("v_exp_f32", ex[e], ex[e])
        p.nop(0)
        for e in range(4): p.v("v_add_f32", ex[e], 1.0, ex[e])
        for e in range(4): p.v("v_rcp_f32", ex[e], ex[e])
        p.nop(0)
        for e in range(4): p.v("v_mul_f32", ga[e], ga[e], ex[e])
        xr = X.sub(2 * blk, 2)
        p.v("v_lshlrev_b32", tmp[0], 16, xr[0]); p.v("v_and_b32", tmp[1], smask, xr[0])
        p.v("v_lshlrev_b32", tmp[2], 16, xr[1]); p.v("v_and_b32", tmp[3], smask, xr[1])
        for e in range(4): p.v("v_fmac_f32", tmp[e], sa[e], ga[e])
        p.v("v_cvt_pk_bf16_f32", xr[0], tmp[0], tmp[1])
        p.v("v_cvt_pk_bf16_f32", xr[1], tmp[2], tmp[3])
        p.buf_store(xr, vx, so, sxo, 32 * blk)
    p.wait(vm=0)
    for pr in range(4):
        for hf in range(2):
            finish(2 * pr + hf, [PP.sub((s_ * 4 + pr) * 4 + 2 * hf, 2) for s_ in range(8)])
    finish(8, [PS.sub(s_ * 2, 2) for s_ in range(8)])
    p.label(name + "_end")
    p.endpgm()
    resolve_waits(p); check(p, name)
    return kernel_text(name, render([p]), vgpr=200, accum=200, sgpr=56)
```

```python
from common import *

REG = 36864

def lane_tr_addr(p, dst, lane, t0, t1, stride):
    p.v("v_lshrrev_b32", t0, 2, lane)
    p.v("v_mul_u32_u24", dst, stride, t0)
    p.v("v_and_b32", t1, 3, lane)
    p.v("v_lshl_add_u32", dst, t1, 3, dst)

def dma288_voffs(p, regs, lane, t0, t1, t2, rowstride, smagic):
    p.s("s_mov_b32", smagic, 3641)
    for j in range(9):
        p.v("v_add_u32", t0, 64 * j, lane)
        p.v("v_mul_u32_u24", t1, smagic, t0)
        p.v("v_lshrrev_b32", t1, 16, t1)
        p.v("v_mul_u32_u24", t2, 18, t1)
        p.v("v_sub_u32", t2, t0, t2)
        p.v("v_mul_u32_u24", t1, rowstride, t1)
        p.v("v_lshl_add_u32", regs[j], t2, 4, t1)

def gen_gemm2(name="gemm2_kernel", bflags="", wflags="", stamps=False, opt=None):
    opt = opt or {}
    ST = Stamps(stamps)
    assert all(((q * 3641) >> 16) == q // 18 for q in range(576))
    pre = Seg(); p = pre
    guard(p, 256, name + "_end")
    ST.stamp(p)
    pwo, pwd, pws = S(4, 2), S(6, 2), S(8, 2)
    p.s_load(pwo, S(0, 2), KA["wo"])
    p.s_load(pwd, S(0, 2), KA["wd"])
    p.s_load(pws, S(0, 2), KA["ws"])
    sw = S(10)
    wave_id(p, sw, V(1))
    lane = V(1)
    p.v("v_and_b32", lane, 63, V(0))
    ssig, st, sP, sN = S(11), S(28), S(29), S(30)
    p.s("s_and_b32", ssig, S(2), 7)
    p.s("s_lshr_b32", st, S(2), 3)
    p.s("s_lshr_b32", sP, st, 2)
    p.s("s_and_b32", sN, st, 3)
    VD = V(2, 9)
    VA = V(12, 4)
    VB = V(16, 4)
    V16 = V(20); VST8 = V(21)
    t0, t1, t2 = V(22), V(23), V(24)
    dma288_voffs(p, VD, lane, t0, t1, t2, 1152, S(31))
    lane_tr_addr(p, VA[0], lane, t0, t1, 288)
    for r in range(1, 4):
        p.v("v_add_u32", VA[r], r * REG, VA[0])
    p.v("v_lshlrev_b32", V16, 4, lane)
    p.v("v_lshlrev_b32", VST8, 3, lane)
    p.wait(lgkm=0)
    sW, sB, sPart = S(12, 4), S(16, 4), S(20, 4)
    make_srd(p, sPart, pws, SZ_P, add=WS_P)
    spart = S(32, 4)
    p.s("s_lshl_b32", S(36), sP, 4)
    p.s("s_lshl_b32", S(37), sw, 2)
    p.s("s_add_u32", S(36), S(36), S(37))
    p.s("s_lshl_b32", S(37), ssig, 7)
    p.s("s_add_u32", S(37), S(37), S(36))
    p.s("s_lshl_b32", S(37), S(37), 2)
    p.s("s_add_u32", S(37), S(37), sN)
    p.s("s_mul_i32", spart[0], S(37), 4608)
    for pb in range(1, 4):
        p.s("s_add_u32", spart[pb], spart[0], pb * 4 * 4608)
    sm0 = S(38)
    p.s("s_mul_i32", sm0, sw, 9216)
    swoff, sboff = S(39), S(40)
    p.s("s_cmp_ge_u32", ssig, 4)
    p.branch("s_cbranch_scc1", name + "_g")

    def body(mode):
        p = Seg()
        nch = 8 if mode == "s" else 9
        nks = 128 if mode == "s" else 144
        if mode == "g": p.label(name + "_g")
        if mode == "s":
            make_srd(p, sW, pwo, SZ["wo"]); make_srd(p, sB, pws, SZ_O, add=WS_O)
            p.s("s_mul_i32", swoff, ssig, 1024 * 1152)
            p.s("s_mul_i32", sboff, ssig, 32 * 1024)
        else:
            make_srd(p, sW, pwd, SZ["wd"]); make_srd(p, sB, pws, SZ_H, add=WS_H)
            p.s("s_sub_u32", S(41), ssig, 4)
            p.s("s_mul_i32", swoff, S(41), 1152 * 1152)
            p.s("s_mul_i32", sboff, S(41), 36 * 1024)
        p.s("s_mul_i32", S(41), sw, 32 * 1152)
        p.s("s_add_u32", swoff, swoff, S(41))
        p.s("s_mul_i32", S(41), sN, 288)
        p.s("s_add_u32", swoff, swoff, S(41))
        p.s("s_mul_i32", S(41), S(36), nks * 1024)
        p.s("s_add_u32", sboff, sboff, S(41))
        for pb in range(4):
            p.v("v_add_u32", VB[pb], pb * nks * 1024, V16)
        ACC = V(32, 144)
        AF = V(176, 32)
        BF = A(0, 192)
        def acc(nb, pb): return ACC.sub((nb * 4 + pb) * 4, 4)
        def af(s_, ks): return AF.sub(s_ * 16 + ks * 4, 4)
        def bf(c, pb, ks): return BF.sub((c % 3) * 64 + (pb * 4 + ks) * 4, 4)
        def rng(c): return ((c % 4) * REG, (c % 4) * REG + REG)
        def dma_ops(c):
            out = []
            for j in range(9):
                q = Seg()
                q.s("s_add_u32", M0, sm0, (c % 4) * REG + 1024 * j)
                q.buf_dma(VD[j], sW, swoff, 0, flags=wflags, tags=[f"c{c}"], lds=rng(c))
                if j == 8: q.s("s_add_u32", swoff, swoff, 128 * 1152)
                out.append(q)
            return out
        def b_ops(c):
            out = []
            for pb in range(4):
                for ks in range(4):
                    q = Seg(); q.buf_load(bf(c, pb, ks), VB[pb], sB, sboff, 1024 * ks, flags=bflags, tags=[f"c{c}"]); out.append(q)
            q = Seg(); q.s("s_add_u32", sboff, sboff, 4096); out.append(q)
            return out
        def a_reads(c, nb, s_):
            out = []
            for ks in range(4):
                for h in range(2):
                    q = Seg()
                    q.ds_read("ds_read_b64_tr_b16", af(s_, ks).sub(2 * h, 2), VA[c % 4], (32 * ks + 16 * h) * 288 + 32 * nb,
                              lds=rng(c), tags=["a"])
                    out.append(q)
            return out
        for c in range(2):
            for q in dma_ops(c):
                p.add(q[0]); p.nop(0); p.extend(q[1:])
            for q in b_ops(c): p.extend(q)
        if stamps: ST.n = 1
        ST.stamp(p)
        p.wait(vm=("tag", "c0"))
        p.barrier()
        ST.stamp(p)
        for q in a_reads(0, 0, 0): p.extend(q)
        p.wait(lgkm=0)
        gi = 0
        for c in range(nch):
            dq = dma_ops(c + 2) if c + 2 < nch else []
            bq = b_ops(c + 2) if c + 2 < nch else []
            for nb in range(9):
                s_ = gi % 2
                mf = Seg()
                for pb in range(4):
                    for ks in range(4):
                        cin = 0 if (c == 0 and ks == 0) else acc(nb, pb)
                        mf.mfma(acc(nb, pb), af(s_, ks), bf(c, pb, ks), cin)
                fl = []
                last = (c == nch - 1 and nb == 8)
                nxt = None
                if not last:
                    nxt = (c, nb + 1) if nb < 8 else (c + 1, 0)
                g0 = 0
                if nb == 8 and not last:
                    q = Seg(); q.wait(vm=("tag", f"c{c+1}")); q.barrier()
                    fl += [(0, i) for i in q]
                    g0 = 1
                if nxt:
                    rd = a_reads(nxt[0], nxt[1], 1 - s_)
                    for k, q in enumerate(rd):
                        fl += [(g0 + k // 2, i) for i in q]
                gd, gb = opt.get("gd", 6), opt.get("gb", (7, 8))
                if dq:
                    q = dq.pop(0)
                    if not opt.get("nodma"): fl += [(gd - 1, q[0])] + [(gd, i) for i in q[1:]]
                for g in gb:
                    if bq:
                        q = bq.pop(0)
                        if not opt.get("nob"): fl += [(g, i) for i in q]
                assert nb < 8 or (not dq and not bq)
                if nxt:
                    q = Seg(); q.wait(lgkm=0); fl += [(15, i) for i in q]
                p.extend(weave(mf, fl))
                gi += 1
        p.nop(7)
        ST.stamp(p)
        OUT = A(0, 1)
        PK = V(176, 32)
        k = 0
        for pb in range(4):
            for pr in range(4):
                d = PK.sub((k % 8) * 4, 4); k += 1
                a_, b_ = acc(2 * pr, pb), acc(2 * pr + 1, pb)
                p.v("v_cvt_pk_bf16_f32", d[0], a_[0], a_[1]); p.v("v_cvt_pk_bf16_f32", d[1], a_[2], a_[3])
                p.v("v_cvt_pk_bf16_f32", d[2], b_[0], b_[1]); p.v("v_cvt_pk_bf16_f32", d[3], b_[2], b_[3])
                p.buf_store(d, V16, sPart, spart[pb], pr * 1024)
            d = PK.sub((k % 8) * 4, 2); k += 1
            a_ = acc(8, pb)
            p.v("v_cvt_pk_bf16_f32", d[0], a_[0], a_[1]); p.v("v_cvt_pk_bf16_f32", d[1], a_[2], a_[3])
            p.s("s_add_u32", S(41), spart[pb], 4096)
            p.buf_store(d, VST8, sPart, S(41), 0)
        if stamps:
            ST.stamp(p); p.wait(vm=0); ST.stamp(p); ST.dump(p, pws, sw)
        p.endpgm()
        return p
    bs, bg = body("s"), body("g")
    end = Seg(); end.label(name + "_end"); end.endpgm()
    for b in (bs, bg):
        tr = list(pre) + list(b)
        resolve_waits(tr); check(tr, name)
    return kernel_text(name, render([pre, bs, bg, end]), vgpr=512, accum=256, sgpr=100)

if __name__ == "__main__":
    t = gen_gemm2(); print(len(t))
```

```python
from common import *

def gen_ln(name="ln_kernel"):
    p = Seg()
    guard(p, 128, name + "_end")
    px, pws = S(4, 2), S(6, 2)
    p.s_load(px, S(0, 2), KA["x"])
    p.s_load(pws, S(0, 2), KA["ws"])
    lane, j, rr, w = V(1), V(2), V(3), V(4)
    p.v("v_and_b32", lane, 63, V(0))
    p.v("v_and_b32", j, 15, V(0))
    p.v("v_lshrrev_b32", rr, 4, V(0))
    p.wait(lgkm=0)
    sx, sxn = S(8, 4), S(12, 4)
    make_srd(p, sx, px, SZ["x"])
    make_srd(p, sxn, pws, SZ_XN, add=WS_XN)
    srow = S(16)
    p.s("s_mul_i32", srow, S(2), 16 * 1152)
    va = V(5)
    p.v("v_mul_u32_u24", va, 1152, rr)
    p.v("v_lshl_add_u32", va, j, 3, va)
    raw = V(8, 18)
    for i in range(9):
        p.buf_load(raw.sub(2 * i, 2), va, sx, srow, 128 * i, tags=["x"])
    vs, t0, t1 = V(6), V(7), V(26)
    p.v("v_lshlrev_b32", vs, 4, rr)
    p.v("v_and_b32", t0, 3, j)
    p.v("v_lshl_add_u32", vs, t0, 8, vs)
    p.v("v_bfe_u32", t0, j, 2, 1)
    p.v("v_lshl_add_u32", vs, t0, 3, vs)
    p.v("v_lshrrev_b32", t0, 3, j)
    p.v("v_lshl_add_u32", vs, t0, 10, vs)
    sb = S(20, 9)
    p.s("s_mul_i32", sb[0], S(2), 18432)
    for i in range(1, 9):
        p.s("s_add_u32", sb[i], sb[0], 2048 * i)
    f = V(32, 36)
    smask = S(30)
    p.s("s_mov_b32", smask, 0xFFFF0000)
    p.wait(vm=0)
    for d in range(18):
        p.v("v_lshlrev_b32", f[2 * d], 16, raw[d])
        p.v("v_and_b32", f[2 * d + 1], smask, raw[d])
    acc = V(70, 4)
    for a in range(4):
        p.v("v_add_f32", acc[a], f[a], f[4 + a])
    for d in range(8, 36):
        p.v("v_add_f32", acc[d % 4], acc[d % 4], f[d])
    p.v("v_add_f32", acc[0], acc[0], acc[1])
    p.v("v_add_f32", acc[2], acc[2], acc[3])
    p.v("v_add_f32", acc[0], acc[0], acc[2])
    def rowreduce(x):
        for sh in (8, 4, 2, 1):
            p.nop(1)
            p.v("v_add_f32_dpp", x, x, x, mods=f"row_ror:{sh} row_mask:0xf bank_mask:0xf")
    rowreduce(acc[0])
    mean = V(74)
    p.v("v_mul_f32", mean, 1.0 / 576.0, acc[0])
    for d in range(36):
        p.v("v_sub_f32", f[d], f[d], mean)
    for a in range(4):
        p.v("v_mul_f32", acc[a], f[a], f[a])
    for d in range(4, 36):
        p.v("v_fmac_f32", acc[d % 4], f[d], f[d])
    p.v("v_add_f32", acc[0], acc[0], acc[1])
    p.v("v_add_f32", acc[2], acc[2], acc[3])
    p.v("v_add_f32", acc[0], acc[0], acc[2])
    rowreduce(acc[0])
    seps = S(31)
    p.s("s_mov_b32", seps, 1e-5)
    p.v("v_mov_b32", acc[1], seps)
    p.v("v_fmac_f32", acc[1], 1.0 / 576.0, acc[0])
    p.v("v_sqrt_f32", acc[2], acc[1])
    p.nop(0)
    p.v("v_rcp_f32", acc[3], acc[2])
    p.nop(0)
    for d in range(36):
        p.v("v_mul_f32", f[d], f[d], acc[3])
    o = V(80, 18)
    for d in range(18):
        p.v("v_cvt_pk_bf16_f32", o[d], f[2 * d], f[2 * d + 1])
    for i in range(9):
        p.buf_store(o.sub(2 * i, 2), vs, sxn, sb[i], 0)
    p.label(name + "_end")
    p.endpgm()
    resolve_waits(p); check(p, name)
    return kernel_text(name, render([p]), vgpr=104, accum=104, sgpr=40)
```

```python
from common import *
from k_gemm2 import lane_tr_addr, dma288_voffs

GREG = 36864
GR = [0, GREG, 2 * GREG]
QSZ = 24576
QR = [110592, 135168, 40960, 110592, 135168, 40960]
KRING, VRING = 0, 65536
QSCALE = 1.4426950408889634 / 128 ** 0.5
LTHR = float(2.0 ** 60)

class K1:
    def __init__(self, name, stamps=False, opt=None):
        self.name, self.opt = name, (opt or {})
        self.ST = Stamps(stamps)
        self.pk, self.pv, self.pwq, self.pwg, self.pwu, self.pws = S(4, 2), S(6, 2), S(8, 2), S(10, 2), S(12, 2), S(14, 2)
        self.sGU, self.sWq, self.sK, self.sV = S(16, 4), S(20, 4), S(24, 4), S(28, 4)
        self.sXN, self.sH, self.sO = S(32, 4), S(36, 4), S(40, 4)
        self.sw, self.shead, self.sP = S(44), S(45), S(46)
        self.sgoff, self.sxoff, self.sqoff, self.skvoff = S(47), S(48), S(49), S(50)
        self.sm9, self.sm1 = S(51), S(52)
        self.shb, self.sob = S(53), S(54)
        self.stmp, self.stmp2, self.sloop, self.sredo = S(55), S(56), S(57), S(58)
        self.sexec = S(60, 2)
        self.lane = V(1)
        self.VD = V(2, 9)
        self.VA = V(11, 3)
        self.VX = V(14, 4)
        self.V16 = V(18)
        self.t0, self.t1, self.t2 = V(19), V(20), V(21)
        self.VH = V(22)
        self.VWd = V(23)

    def setup(self, p):
        o = self
        guard(p, 256, o.name + "_end")
        o.ST.stamp(p)
        for r, k in ((o.pk, "k"), (o.pv, "v"), (o.pwq, "wq"), (o.pwg, "wg"), (o.pwu, "wu"), (o.pws, "ws")):
            p.s_load(r, S(0, 2), KA[k])
        wave_id(p, o.sw, o.lane)
        p.v("v_and_b32", o.lane, 63, V(0))
        p.s("s_and_b32", o.stmp, S(2), 7)
        p.s("s_lshl_b32", o.stmp, o.stmp, 2)
        p.s("s_bfe_u32", o.stmp2, S(2), 0x20003)
        p.s("s_add_u32", o.shead, o.stmp, o.stmp2)
        p.s("s_lshr_b32", o.sP, S(2), 5)
        p.s("s_mul_i32", o.sm9, o.sw, 9216)
        p.s("s_lshl_b32", o.sm1, o.sw, 10)
        dma288_voffs(p, o.VD, o.lane, o.t0, o.t1, o.t2, 9216, o.stmp)
        lane_tr_addr(p, o.VA[0], o.lane, o.t0, o.t1, 288)
        p.v("v_add_u32", o.VA[1], GR[1], o.VA[0])
        p.v("v_add_u32", o.VA[2], GR[2], o.VA[0])
        p.v("v_lshlrev_b32", o.V16, 4, o.lane)
        for pb in range(4):
            p.v("v_add_u32", o.VX[pb], pb * 18 * 1024, o.V16)
        p.wait(lgkm=0)
        p.s("s_cmp_lt_u32", o.sw, 2)
        p.s("s_cselect_b32", o.sGU[0], o.pwg[0], o.pwu[0])
        p.s("s_cselect_b32", o.sGU[1], o.pwg[1], o.pwu[1])
        p.s("s_mov_b32", o.sGU[2], SZ["wg"])
        p.s("s_mov_b32", o.sGU[3], 0x20000)
        make_srd(p, o.sXN, o.pws, SZ_XN, add=WS_XN)
        p.s("s_and_b32", o.stmp, o.sw, 1)
        p.s("s_mul_i32", o.sgoff, o.stmp, 32 * 9216)
        p.s("s_mul_i32", o.stmp, o.shead, 288)
        p.s("s_add_u32", o.sgoff, o.sgoff, o.stmp)
        p.s("s_lshl_b32", o.stmp, o.sP, 4)
        p.s("s_lshl_b32", o.stmp2, o.sw, 2)
        p.s("s_add_u32", o.stmp, o.stmp, o.stmp2)
        p.s("s_mul_i32", o.sxoff, o.stmp, 18 * 1024)
        p.s("s_mul_i32", o.shb, o.stmp, 144 * 1024)
        p.s("s_mul_i32", o.sob, o.stmp, 128 * 1024)

    def setup_late(self, p):
        o = self
        make_srd(p, o.sWq, o.pwq, SZ["wq"])
        make_srd(p, o.sH, o.pws, SZ_H, add=WS_H)
        make_srd(p, o.sO, o.pws, SZ_O, add=WS_O)
        p.s("s_lshr_b32", o.stmp, o.shead, 1)
        p.s("s_lshl_b32", o.stmp, o.stmp, 19)
        make_srd(p, o.sK, o.pk, 524288, add=o.stmp)
        make_srd(p, o.sV, o.pv, 524288, add=o.stmp)
        t0, t1, t2 = o.t0, o.t1, o.t2
        p.v("v_lshrrev_b32", t0, 4, o.lane)
        p.s("s_lshl_b32", o.stmp, o.sw, 2)
        p.v("v_add_u32", t0, o.stmp, t0)
        p.v("v_and_b32", t1, 7, t0)
        p.v("v_lshlrev_b32", t1, 1, t1)
        p.v("v_and_b32", t2, 15, o.lane)
        p.v("v_xor_b32", t1, t1, t2)
        p.v("v_lshlrev_b32", t1, 4, t1)
        p.v("v_lshl_add_u32", o.VWd, t0, 13, t1)
        p.s("s_lshl_b32", o.sqoff, o.shead, 8)
        p.s("s_lshl_b32", o.stmp, o.shead, 12)
        p.s("s_add_u32", o.sob, o.sob, o.stmp)

    def g_dma(self, c):
        o = self; out = []
        rg = (GR[c % 3], GR[c % 3] + GREG)
        for j in range(9):
            q = Seg()
            q.s("s_add_u32", M0, o.sm9, GR[c % 3] + 1024 * j)
            q.buf_dma(o.VD[j], o.sGU, o.sgoff, 0, flags=o.opt.get("wflags", ""), tags=[f"G{c}"], lds=rg)
            if j == 8: q.s("s_add_u32", o.sgoff, o.sgoff, 64 * 9216)
            out.append(q)
        return out
    def x_loads(self, dst, nks, tag, rewind=None):
        o = self; out = []
        for ks in range(nks):
            for pb in range(4):
                q = Seg()
                q.buf_load(dst(pb, ks), o.VX[pb], o.sXN, o.sxoff, 1024 * ks, tags=[tag])
                out.append(q)
        out[-1].s("s_add_u32", o.sxoff, o.sxoff, 1024 * nks)
        return out
    def q_dma(self, c):
        o = self; out = []
        rg = (QR[c], QR[c] + QSZ)
        for i in range(6):
            q = Seg()
            q.s("s_add_u32", M0, o.sm1, QR[c] + 4096 * i)
            q.buf_dma(o.VWd, o.sWq, o.sqoff, 0, flags=o.opt.get("wflags", ""), tags=[f"Q{c}"], lds=rg)
            q.s("s_add_u32", o.sqoff, o.sqoff, 16 * 8192)
            out.append(q)
        return out
    def kv_dma(self, j):
        o = self; out = []
        slot = j % 4
        for i in range(4):
            q = Seg()
            q.s("s_add_u32", M0, o.sm1, KRING + slot * 16384 + 4096 * i)
            q.buf_dma(o.VKd, o.sK, o.skvoff, 0, tags=[f"A{slot}"], lds=(KRING + slot * 16384, KRING + slot * 16384 + 16384))
            out.append(q)
            q = Seg()
            q.s("s_add_u32", M0, o.sm1, VRING + slot * 16384 + 4096 * i)
            q.buf_dma(o.VVd, o.sV, o.skvoff, 0, tags=[f"A{slot}"], lds=(VRING + slot * 16384, VRING + slot * 16384 + 16384))
            q.s("s_add_u32", o.skvoff, o.skvoff, 4096)
            out.append(q)
        return out

    @staticmethod
    def put_now(p, items):
        for q in items:
            if q[0].text.startswith("s_add_u32 m0"):
                p.add(q[0]); p.nop(0); p.extend(q[1:])
            else:
                p.extend(q)
    @staticmethod
    def place(fl, q, g):
        if q[0].text.startswith("s_add_u32 m0"):
            fl.append((g - 1, q[0])); fl += [(g, i) for i in q[1:]]
        else:
            fl += [(g, i) for i in q]

    def gacc(self, fb, m, pb):
        idx = ((fb * 2 + m) * 4 + pb) * 4
        return V(24 + idx, 4) if fb < 7 else A(idx - 224, 4)
    def gx(self, c, pb, ks): return A(64 + (c % 3) * 32 + (pb * 2 + ks) * 4, 4)
    def gaf(self, s_, m, ks): return A(160 + s_ * 16 + (m * 2 + ks) * 4, 4)
    def g_reads(self, c, fb, s_):
        out = []
        for m in range(2):
            for ks in range(2):
                for h in range(2):
                    q = Seg()
                    q.ds_read("ds_read_b64_tr_b16", self.gaf(s_, m, ks).sub(2 * h, 2), self.VA[c % 3],
                              m * 18432 + (32 * ks + 16 * h) * 288 + 32 * fb, lds=(GR[c % 3], GR[c % 3] + GREG), tags=["a"])
                    out.append(q)
        return out
    def qx(self, c, pb, ks): return A((c % 3) * 48 + (pb * 3 + ks) * 4, 4) if False else A(64 + (c % 3) * 48 + (pb * 3 + ks) * 4, 4)

    def phase_g(self, p):
        o = self
        xl = lambda c: o.x_loads(lambda pb, ks: o.gx(c, pb, ks), 2, f"G{c}")
        o.put_now(p, o.g_dma(0)); o.put_now(p, xl(0))
        o.setup_late(p)
        o.put_now(p, o.g_dma(1)); o.put_now(p, xl(1))
        o.ST.stamp(p)
        p.wait(vm=("tag", "G0")); p.barrier()
        o.ST.stamp(p)
        for q in o.g_reads(0, 0, 0): p.extend(q)
        p.wait(lgkm=0)
        gi = 0
        for c in range(9):
            if c + 2 < 9:
                dq, xq = o.g_dma(c + 2), xl(c + 2)
            elif c == 7:
                dq = o.q_dma(0)
                q = Seg(); q.s("s_sub_u32", o.sxoff, o.sxoff, 18 * 1024)
                xq = [q]
            else:
                dq, xq = o.q_dma(1), []
            for fb in range(9):
                s_ = gi % 2
                mf = Seg()
                for m in range(2):
                    for pb in range(4):
                        for ks in range(2):
                            cin = 0 if (c == 0 and ks == 0) else o.gacc(fb, m, pb)
                            mf.mfma(o.gacc(fb, m, pb), o.gaf(s_, m, ks), o.gx(c, pb, ks), cin)
                fl = []
                last = (c == 8 and fb == 8)
                g0 = 0
                if fb == 8 and not last:
                    q = Seg(); q.wait(vm=("tag", f"G{c+1}")); q.barrier()
                    fl += [(0, i) for i in q]; g0 = 1
                if not last:
                    nx = (c, fb + 1) if fb < 8 else (c + 1, 0)
                    for k, q in enumerate(o.g_reads(nx[0], nx[1], 1 - s_)):
                        fl += [(g0 + k // 2, i) for i in q]
                if dq: o.place(fl, dq.pop(0), 7)
                if xq: o.place(fl, xq.pop(0), 11)
                if not last:
                    q = Seg(); q.wait(lgkm=0); fl += [(15, i) for i in q]
                p.extend(weave(mf, fl)); gi += 1
            assert not dq and not xq
        o.ST.stamp(p)
        o.put_now(p, o.x_loads(lambda pb, ks: o.qx(0, pb, ks), 3, "Q0"))
        o.put_now(p, o.x_loads(lambda pb, ks: o.qx(1, pb, ks), 3, "Q1"))
        T = V(248, 8)
        for pb in range(4):
            pass
        vh = [o.t0, o.t1, o.t2, o.VH]
        for pb in range(4):
            p.v("v_add_u32", vh[pb], pb * 144 * 1024, o.V16)
        p.s("s_mul_i32", o.stmp2, o.shead, 9)
        for fb in range(9):
            p.s("s_add_u32", o.sloop, o.stmp2, fb)
            p.s("s_lshr_b32", o.stmp, o.sloop, 1)
            p.s("s_lshl_b32", o.stmp, o.stmp, 10)
            p.s("s_and_b32", o.sloop, o.sloop, 1)
            p.s("s_lshl_b32", o.sloop, o.sloop, 3)
            p.s("s_add_u32", o.stmp, o.stmp, o.sloop)
            p.s("s_add_u32", o.stmp, o.stmp, o.shb)
            for pb in range(4):
                g, u = o.gacc(fb, 0, pb), o.gacc(fb, 1, pb)
                if fb >= 7:
                    gg, uu = T.sub(0, 4), T.sub(4, 4)
                    for r in range(4): p.acc_read(gg[r], g[r])
                    for r in range(4): p.acc_read(uu[r], u[r])
                    g, u = gg, uu
                for r in range(4): p.v("v_max_f32", g[r], 0, g[r])
                for r in range(4): p.v("v_mul_f32", g[r], g[r], u[r])
                p.v("v_cvt_pk_bf16_f32", u[0], g[0], g[1])
                p.v("v_cvt_pk_bf16_f32", u[1], g[2], g[3])
                p.buf_store(u.sub(0, 2), vh[pb], o.sH, o.stmp, 0, tags=["hst"])
            if fb == 4: p.wait(vm=16)
        o.ST.stamp(p)

    def qacc(self, db, pb): return V(24 + (db * 4 + pb) * 4, 4)
    def qaf(self, s_, ks): return A(208 + s_ * 12 + ks * 4, 4)
    def sw_addr(self, p, regs, base):
        o = self
        p.v("v_lshrrev_b32", o.t0, 2, o.lane)
        p.v("v_and_b32", o.t1, 7, o.t0)
        p.v("v_lshlrev_b32", o.t0, 8, o.t0)
        p.v("v_and_b32", o.t2, 3, o.lane)
        p.v("v_lshl_add_u32", o.t0, o.t2, 3, o.t0)
        p.v("v_add_u32", o.t0, base, o.t0)
        for db in range(8):
            p.v("v_xor_b32", o.t2, db, o.t1)
            p.v("v_lshl_add_u32", regs[db], o.t2, 5, o.t0)
    def q_reads(self, c, db, s_):
        o = self; out = []
        regs, base = (o.VWlo, 40960) if QR[c] == 40960 else (o.VWhi, 110592)
        for ks in range(3):
            for h in range(2):
                q = Seg()
                q.ds_read("ds_read_b64_tr_b16", o.qaf(s_, ks).sub(2 * h, 2), regs[db], QR[c] - base + (32 * ks + 16 * h) * 256,
                          lds=(QR[c], QR[c] + QSZ), tags=["a"])
                out.append(q)
        return out
    def phase_q(self, p):
        o = self
        o.VWlo, o.VWhi = V(216, 8), V(224, 8)
        o.VKd, o.VVd = V(232), V(233)
        o.sw_addr(p, o.VWlo, 40960)
        for db in range(8): p.v("v_add_u32", o.VWhi[db], 110592 - 40960, o.VWlo[db])
        t0, t1, t2 = o.t0, o.t1, o.t2
        p.v("v_lshrrev_b32", t0, 4, o.lane)
        p.s("s_lshl_b32", o.stmp, o.sw, 2)
        p.v("v_add_u32", t0, o.stmp, t0)
        p.v("v_and_b32", t2, 15, o.lane)
        p.v("v_xor_b32", t1, t0, t2)
        p.v("v_lshlrev_b32", t1, 4, t1)
        p.v("v_lshl_add_u32", o.VKd, t0, 8, t1)
        p.v("v_and_b32", t1, 7, t0)
        p.v("v_lshlrev_b32", t1, 1, t1)
        p.v("v_xor_b32", t1, t1, t2)
        p.v("v_lshlrev_b32", t1, 4, t1)
        p.v("v_lshl_add_u32", o.VVd, t0, 8, t1)
        p.s("s_mov_b32", o.skvoff, 0)
        xl = lambda c: o.x_loads(lambda pb, ks: o.qx(c, pb, ks), 3, f"Q{c}")
        p.wait(vm=("tag", "Q0", 24)); p.barrier()
        for q in o.q_reads(0, 0, 0): p.extend(q)
        p.wait(lgkm=0)
        gi = 0
        for c in range(6):
            if c + 2 < 6: dq, xq = o.q_dma(c + 2), xl(c + 2)
            else: dq, xq = o.kv_dma(c - 4), []
            for db in range(8):
                s_ = gi % 2
                mf = Seg()
                for pb in range(4):
                    for ks in range(3):
                        cin = 0 if (c == 0 and ks == 0) else o.qacc(db, pb)
                        mf.mfma(o.qacc(db, pb), o.qaf(s_, ks), o.qx(c, pb, ks), cin)
                fl = []
                last = (c == 5 and db == 7)
                g0 = 0
                if db == 7 and not last:
                    q = Seg(); q.wait(vm=("tag", f"Q{c+1}")); q.barrier()
                    fl += [(0, i) for i in q]; g0 = 1
                if not last:
                    nx = (c, db + 1) if db < 7 else (c + 1, 0)
                    for k, q in enumerate(o.q_reads(nx[0], nx[1], 1 - s_)):
                        fl += [(g0 + k // 2, i) for i in q]
                if dq: o.place(fl, dq.pop(0), 5)
                for g in (7, 9):
                    if xq: o.place(fl, xq.pop(0), g)
                if not last:
                    q = Seg(); q.wait(lgkm=0); fl += [(11, i) for i in q]
                p.extend(weave(mf, fl)); gi += 1
            assert not dq and not xq, (c, len(dq), len(xq))
        o.ST.stamp(p)
        o.QF = V(152, 64)
        p.s("s_mov_b32", o.stmp, QSCALE)
        p.nop(6)
        for pb in range(4):
            for s_ in range(4):
                a, b = o.qacc(2 * s_, pb), o.qacc(2 * s_ + 1, pb)
                f = o.QF.sub((pb * 4 + s_) * 4, 4)
                for r in range(4): p.v("v_mul_f32", a[r], o.stmp, a[r])
                for r in range(4): p.v("v_mul_f32", b[r], o.stmp, b[r])
                p.v("v_cvt_pk_bf16_f32", f[0], a[0], a[1]); p.v("v_cvt_pk_bf16_f32", f[1], a[2], a[3])
                p.v("v_cvt_pk_bf16_f32", f[2], b[0], b[1]); p.v("v_cvt_pk_bf16_f32", f[3], b[2], b[3])
                p.nop(0)
                p.v("v_permlane32_swap_b32", f[0], f[2]); p.v("v_permlane32_swap_b32", f[1], f[3])
                p.nop(0)
                p.v("v_permlane16_swap_b32", f[0], f[2]); p.v("v_permlane16_swap_b32", f[1], f[3])
        o.ST.stamp(p)

    def alloc_attn(self):
        o = self
        o.SS = V(24, 16); o.PP = V(40, 8); o.NEG = V(48, 16); o.L = V(64, 16); o.ONES = V(80, 4)
        o.VK = V(84, 4); o.VV = V(88, 8); o.TS = V(100, 32)
    def Oacc(self, db, qb): return A((qb * 8 + db) * 4, 4)
    def KF(self, t, kb, ds): return A(128 + (t % 2) * 32 + (kb * 4 + ds) * 4, 4)
    def VF(self, t, db): return A(192 + (t % 2) * 32 + db * 4, 4)
    def qf(self, qb, ds): return self.QF.sub((qb * 4 + ds) * 4, 4)
    def k_reads(self, t):
        o = self; out = []
        slot = (t // 2) % 4
        for kb in range(2):
            for ds in range(4):
                q = Seg()
                q.ds_read("ds_read_b128", o.KF(t, kb, ds), o.VK[ds], KRING + slot * 16384 + ((t % 2) * 32 + 16 * kb) * 256,
                          lds=(KRING + slot * 16384, KRING + slot * 16384 + 16384), tags=["k"])
                out.append(q)
        return out
    def v_reads(self, t):
        o = self; out = []
        slot = (t // 2) % 4
        for db in range(8):
            for h in range(2):
                q = Seg()
                q.ds_read("ds_read_b64_tr_b16", o.VF(t, db).sub(2 * h, 2), o.VV[db], slot * 16384 + ((t % 2) * 32 + 16 * h) * 256,
                          lds=(VRING + slot * 16384, VRING + slot * 16384 + 16384), tags=["v"])
                out.append(q)
        return out
    def attn_addr(self, p):
        o = self
        t0, t1, t2 = o.t0, o.t1, o.t2
        p.v("v_and_b32", t0, 15, o.lane)
        p.v("v_lshrrev_b32", t1, 4, o.lane)
        for ds in range(4):
            p.v("v_add_u32", t2, 4 * ds, t1)
            p.v("v_xor_b32", t2, t2, t0)
            p.v("v_lshlrev_b32", t2, 4, t2)
            p.v("v_lshl_add_u32", o.VK[ds], t0, 8, t2)
        for db in range(8): p.v("v_add_u32", o.VV[db], VRING - 40960, o.VWlo[db])
        for r in range(4): p.v("v_mov_b32", o.ONES[r], 0x3F803F80)

    def slot(self, u, qk=True, sm=True, pv=True, first_pv=False, kr=(), vr=(), dma=None, tail=()):
        o = self
        mf = Seg(); fl = []
        un, up = u + 1, u - 1
        if qk:
            t, qb = un // 4, un % 4
            Sn = o.SS.sub((un % 2) * 8, 8)
            for kb in range(2):
                d = Sn.sub(kb * 4, 4)
                for ds in range(4):
                    mf.mfma(d, o.KF(t, kb, ds), o.qf(qb, ds), o.NEG.sub(qb * 4, 4) if ds == 0 else d)
        if pv:
            t, qb = up // 4, up % 4
            Pp = o.PP.sub((up % 2) * 4, 4)
            for db in range(8):
                mf.mfma(o.Oacc(db, qb), o.VF(t, db), Pp, 0 if first_pv else o.Oacc(db, qb))
            mf.mfma(o.L.sub(qb * 4, 4), o.ONES, Pp, 0 if first_pv else o.L.sub(qb * 4, 4))
        n = len(mf)
        lds = list(kr) + list(vr)
        Sc, Pc = o.SS.sub((u % 2) * 8, 8), o.PP.sub((u % 2) * 4, 4)
        def E(i):
            q = Seg(); q.v("v_exp_f32", Sc[i], Sc[i]); return list(q)
        def C(i):
            q = Seg(); q.v("v_cvt_pk_bf16_f32", Pc[i], Sc[2 * i], Sc[2 * i + 1]); return list(q)
        if n == 17 and len(lds) <= 6:
            plan = {0: "L", 1: "e", 2: "L", 3: "e", 4: "L", 5: "e", 6: "e", 7: "c", 8: "e", 9: "e", 10: "D", 11: "e", 12: "e", 13: "c"}
            ei = ci = 0
            for g in range(17):
                k = plan.get(g)
                if k == "L":
                    for _ in range(2):
                        if lds: fl += [(g, i) for i in lds.pop(0)]
                elif k == "e" and sm:
                    fl += [(g, i) for i in E(ei)]; ei += 1
                elif k == "c" and sm:
                    fl += [(g, i) for i in C(ci) + C(ci + 1)]; ci += 2
                elif k == "D" and dma is not None:
                    o.place(fl, dma, g)
            fl += [(n - 1, i) for i in tail]
            return weave(mf, fl)
        out = Seg()
        for q in lds: out.extend(q)
        if dma is not None: o.put_now(out, [dma])
        if sm:
            for i in range(8): out.extend(E(i))
            out.nop(0)
            for i in range(4): out.extend(C(i))
            out.nop(1)
        out.extend(mf)
        out.extend(tail)
        return out

    def prepass_max(self, p, t, first):
        o = self
        for qb in range(4):
            for kb in range(2):
                d = o.TS.sub((qb * 2 + kb) * 4, 4)
                for ds in range(4):
                    p.mfma(d, o.KF(t, kb, ds), o.qf(qb, ds), 0 if ds == 0 else d)
        p.nop(7)
        for qb in range(4):
            s8 = o.TS.sub(qb * 8, 8)
            m = o.NEG[qb * 4]
            p.v("v_max3_f32", s8[0], s8[0], s8[1], s8[2])
            p.v("v_max3_f32", s8[3], s8[3], s8[4], s8[5])
            p.v("v_max3_f32", s8[0], s8[0], s8[6], s8[7])
            if first: p.v("v_max_f32", m, s8[0], s8[3])
            else: p.v("v_max3_f32", m, m, s8[0], s8[3])
    def finish_max(self, p):
        o = self
        for qb in range(4):
            m, t = o.NEG[qb * 4], o.NEG[qb * 4 + 1]
            p.v("v_mov_b32", t, m); p.nop(1)
            p.v("v_permlane32_swap_b32", m, t); p.nop(1)
            p.v("v_max_f32", m, m, t)
            p.v("v_mov_b32", t, m); p.nop(1)
            p.v("v_permlane16_swap_b32", m, t); p.nop(1)
            p.v("v_max_f32", m, m, t)
            p.v("v_sub_f32", m, 0, m)
            for r in range(1, 4): p.v("v_mov_b32", o.NEG[qb * 4 + r], m)

    def loop_slot(self, u, first_pv=False):
        o = self
        j = (u + 5) // 8
        pos = (u + 5) % 8
        tk, ik = (u + 1) // 4 + 1, (u + 1) % 4
        tv, iv = (u - 1) // 4 + 1, (u - 1) % 4
        kr = o.k_reads(tk)[2 * ik: 2 * ik + 2]
        vr = o.v_reads(tv)[4 * iv: 4 * iv + 4]
        dma = o.kv_dma(j + 2)[pos]
        w = Seg()
        if u % 4 in (2, 0): w.wait(lgkm=0)
        if pos == 7:
            w.wait(vm=("tag", f"A{(j + 1) % 4}")); w.barrier()
        return o.slot(u, first_pv=first_pv, kr=kr, vr=vr, dma=dma, tail=list(w))

    FLAG = 159744
    def phase_attn(self):
        o = self; nm = o.name
        o.alloc_attn()
        pro = Seg(); p = pro
        o.attn_addr(p)
        p.s("s_mov_b32", o.sredo, 0)
        vflag, vz = V(96), V(97)
        p.v("v_mov_b32", vflag, o.FLAG)
        p.v("v_mov_b32", vz, 0)
        p.ds_write("ds_write_b32", vflag, vz, lds=(o.FLAG, o.FLAG + 4))
        p.wait(lgkm=0)
        p.wait(vm=("tag", "A0")); p.barrier()
        for q in o.k_reads(0): p.extend(q)
        p.wait(lgkm=0)
        o.prepass_max(p, 0, True)
        o.finish_max(p)
        mp = Seg(); p = mp
        p.label(nm + "_amain")
        d2 = o.kv_dma(2)
        vr0, kr1, vr1 = o.v_reads(0), o.k_reads(1), o.v_reads(1)
        p.extend(o.slot(-1, qk=True, sm=False, pv=False, kr=kr1[0:2], vr=vr0[0:8], dma=d2[0]))
        o.put_now(p, [d2[1]])
        p.nop(3)
        w = Seg(); w.wait(lgkm=0)
        p.extend(o.slot(0, qk=True, sm=True, pv=False, kr=kr1[2:4], vr=vr0[8:16], dma=d2[2], tail=list(w)))
        o.put_now(p, [d2[3], d2[4]])
        p.extend(o.slot(1, first_pv=True, kr=kr1[4:6], vr=vr1[0:4], dma=d2[5]))
        w = Seg(); w.wait(lgkm=0); w.wait(vm=("tag", "A1")); w.barrier()
        o.put_now(p, [d2[6]])
        p.extend(o.slot(2, first_pv=True, kr=kr1[6:8], vr=vr1[4:8], dma=d2[7], tail=list(w)))
        p.extend(o.loop_slot(3, first_pv=True))
        p.extend(o.loop_slot(4, first_pv=True))
        p.s("s_mov_b32", o.sloop, 0)
        b1, b2 = Seg(), Seg()
        b1.label(nm + "_aloop")
        for k in range(32):
            (b1 if k <= 27 else b2).extend(o.loop_slot(5 + k))
            if k == 27:
                b1.s("s_cmp_eq_u32", o.sloop, 7)
                b1.branch("s_cbranch_scc1", nm + "_adone")
        b2.s("s_add_u32", o.sloop, o.sloop, 1)
        b2.branch("s_branch", nm + "_aloop")
        chk = Seg(); p = chk
        p.label(nm + "_adone")
        o.ST.stamp(p)
        p.wait(vm=0, lgkm=0)
        p.nop(7)
        p.s("s_mov_b32", o.stmp, LTHR)
        p.v("v_mov_b32", vz, 0)
        for qb in range(4):
            p.v("v_cmp_nlt_f32", VCC, o.L[qb * 4], o.stmp)
            p.nop(1)
            p.v("v_cndmask_b32", vz, vz, 1, VCC) if False else p.v("v_cndmask_b32_e64", vz, vz, 1, VCC)
        p.ds_write("ds_or_b32", vflag, vz, lds=(o.FLAG + 8, o.FLAG + 12))
        p.wait(lgkm=0); p.barrier()
        p.ds_read("ds_read_b32", vz, vflag)
        p.wait(lgkm=0)
        p.v("v_readfirstlane_b32", o.stmp, vz)
        p.nop(3)
        p.s("s_xor_b32", o.stmp2, o.sredo, 1)
        p.s("s_and_b32", o.stmp, o.stmp, o.stmp2)
        p.s("s_cmp_lg_u32", o.stmp, 0)
        p.branch("s_cbranch_scc1", nm + "_afall")
        epi = Seg(); p = epi
        RL = V(24, 4); T = V(32, 64)
        for qb in range(4): p.v("v_rcp_f32", RL[qb], o.L[qb * 4])
        VO = V(28, 4)
        for qb in range(4): p.v("v_add_u32", VO[qb], qb * 128 * 1024, o.V16)
        k = 0
        for qb in range(4):
            for s_ in range(4):
                t = T.sub((k % 4) * 16, 16); k += 1
                a, b = o.Oacc(2 * s_, qb), o.Oacc(2 * s_ + 1, qb)
                for r in range(4): p.acc_read(t[r], a[r])
                for r in range(4): p.acc_read(t[4 + r], b[r])
                for r in range(8): p.v("v_mul_f32", t[r], t[r], RL[qb])
                for r in range(4): p.v("v_cvt_pk_bf16_f32", t[8 + r], t[2 * r], t[2 * r + 1])
                p.buf_store(t.sub(8, 4), VO[qb], o.sO, o.sob, 1024 * s_)
        if o.ST.on:
            o.ST.stamp(p); p.wait(vm=0); o.ST.stamp(p); o.ST.dump(p, o.pws, o.sw)
        p.endpgm()
        fb = Seg(); p = fb
        p.label(nm + "_afall")
        p.s("s_mov_b32", o.sredo, 1)
        for qb in range(4): p.v("v_mov_b32", o.NEG[qb * 4], 0xFF800000)
        p.s("s_mov_b32", o.skvoff, 0)
        p.s("s_mov_b32", o.sloop, 0)
        fl_ = Seg(); p = fl_
        p.label(nm + "_afloop")
        for i in range(4):
            p.s("s_add_u32", M0, o.sm1, KRING + 4096 * i); p.nop(0)
            p.buf_dma(o.VKd, o.sK, o.skvoff, 0, lds=(KRING, KRING + 16384))
            p.s("s_add_u32", o.skvoff, o.skvoff, 4096)
        p.wait(vm=0); p.barrier()
        for tt in range(2):
            for q in o.k_reads(tt): p.extend(q)
            p.wait(lgkm=0)
            o.prepass_max(p, tt, False)
        p.barrier()
        p.s("s_add_u32", o.sloop, o.sloop, 1)
        p.s("s_cmp_lt_u32", o.sloop, 32)
        p.branch("s_cbranch_scc1", nm + "_afloop")
        f2 = Seg(); p = f2
        o.finish_max(p)
        p.s("s_mov_b32", o.skvoff, 0)
        o.put_now(p, o.kv_dma(0)); o.put_now(p, o.kv_dma(1))
        p.wait(vm=("tag", "A0")); p.barrier()
        for q in o.k_reads(0): p.extend(q)
        p.wait(lgkm=0)
        p.branch("s_branch", nm + "_amain")
        return dict(pro=pro, mp=mp, b1=b1, b2=b2, chk=chk, epi=epi, fb=fb, fl=fl_, f2=f2)

def gen_main(name="main_kernel", stamps=False, opt=None):
    k = K1(name, stamps, opt)
    a = Seg()
    k.setup(a); k.phase_g(a); k.phase_q(a)
    d = k.phase_attn()
    end = Seg(); end.label(name + "_end"); end.endpgm()
    head = list(a) + list(d["pro"]) + list(d["mp"])
    loop = list(d["b1"]) + list(d["b2"])
    t1 = head + loop + loop + list(d["b1"]) + list(d["chk"]) + list(d["epi"])
    t2 = head + loop + list(d["b1"]) + list(d["chk"]) + list(d["fb"]) + list(d["fl"]) * 2 + list(d["f2"]) + list(d["mp"]) + loop + list(d["b1"]) + list(d["chk"]) + list(d["epi"])
    resolve_waits(t1 + t2)
    check(t1, name + ":normal"); check(t2, name + ":fallback")
    return kernel_text(name, render([a, d["pro"], d["mp"], d["b1"], d["b2"], d["chk"], d["epi"], d["fb"], d["fl"], d["f2"], end]),
                       vgpr=512, accum=256, sgpr=100)

if __name__ == "__main__":
    t = gen_main(); print(len(t), t.count("\n"))
```

```python
import sys, os
sys.path.insert(0, os.path.dirname(os.path.abspath(__file__)))
import k_ln, k_fin, k_gemm2, k_main

HEAD = open(os.path.join(os.path.dirname(os.path.abspath(__file__)), "header.txt")).read()

def build(parts, launches):
    s = HEAD
    for k, g, b, lds in launches:
        s += f"; @launch kernel={k} grid=({g},1,1) block=({b},1,1) lds={lds}\n"
    s += '.amdgcn_target "amdgcn-amd-amdhsa--gfx950"\n.text\n'
    s += "".join(parts)
    return s

def full(stamps=False):
    parts = [k_ln.gen_ln(), k_main.gen_main(stamps=stamps), k_gemm2.gen_gemm2(stamps=stamps), k_fin.gen_fin()]
    return build(parts, [("ln_kernel", 128, 256, 0), ("main_kernel", 256, 256, 163840),
                         ("gemm2_kernel", 256, 256, 147456), ("fin_kernel", 256, 128, 0)])

if __name__ == "__main__":
    s = full(stamps=len(sys.argv) > 2 and sys.argv[2] == "stamps")
    open(sys.argv[1] if len(sys.argv) > 1 else "dev.s", "w").write(s)
    print(len(s))
```

```python
import re

class R:
    __slots__ = ("k", "i", "n")
    def __init__(self, k, i, n=1):
        self.k, self.i, self.n = k, i, n
    def __str__(self):
        if self.k in ("vcc", "exec", "m0", "scc"):
            return self.k
        return f"{self.k}{self.i}" if self.n == 1 else f"{self.k}[{self.i}:{self.i+self.n-1}]"
    __repr__ = __str__
    def __getitem__(self, j):
        assert 0 <= j < self.n, (self, j)
        return R(self.k, self.i + j, 1)
    def sub(self, j, n):
        assert 0 <= j and j + n <= self.n, (self, j, n)
        return R(self.k, self.i + j, n)
    def regs(self):
        if self.k == "vcc": return [("s", 106), ("s", 107)]
        if self.k == "exec": return [("s", 126), ("s", 127)]
        if self.k == "m0": return [("s", 124)]
        if self.k == "scc": return [("scc", 0)]
        return [(self.k, self.i + j) for j in range(self.n)]

def V(i, n=1): return R("v", i, n)
def A(i, n=1): return R("a", i, n)
def S(i, n=1): return R("s", i, n)
VCC = R("vcc", 0); EXEC = R("exec", 0); M0 = R("m0", 0); SCC = R("scc", 0)

TRANS = ("v_exp_f32", "v_log_f32", "v_rcp_f32", "v_rsq_f32", "v_sqrt_f32", "v_sin_f32", "v_cos_f32")

def regs_of(x):
    out = []
    if isinstance(x, R):
        return x.regs()
    if isinstance(x, (list, tuple)):
        for y in x: out += regs_of(y)
    if isinstance(x, Neg):
        return x.r.regs()
    return out

class Neg:
    def __init__(self, r, pre="-", post=""):
        self.r, self.pre, self.post = r, pre, post
    def __str__(self): return f"{self.pre}{self.r}{self.post}"

def fmt(x):
    if isinstance(x, float):
        import struct
        if x in (0.5, 1.0, 2.0, 4.0, -0.5, -1.0, -2.0, -4.0): return repr(x)
        if x == 0.0: return "0"
        return "0x%08x" % struct.unpack("<I", struct.pack("<f", x))[0]
    if isinstance(x, int):
        return str(x) if -16 <= x <= 64 else hex(x & 0xFFFFFFFF)
    return str(x)

class Ins:
    __slots__ = ("text", "cls", "defs", "uses", "cuses", "passes", "tags", "lds", "wait", "nop", "wide", "op", "meta")
    def __init__(self, text, cls, defs=(), uses=(), cuses=(), passes=0, tags=(), lds=None, op=""):
        self.text, self.cls = text, cls
        self.defs, self.uses, self.cuses = list(defs), list(uses), list(cuses)
        self.passes = passes
        self.tags = set(tags)
        self.lds = lds
        self.wait = None
        self.nop = 0
        self.wide = False
        self.op = op
        self.meta = None
    def cost(self):
        if self.cls == "trans": return 2
        if self.cls in ("label", "comment"): return 0
        return 1

class Seg(list):
    def add(self, ins):
        self.append(ins); return ins
    def raw(self, text, cls="other", defs=(), uses=()):
        return self.add(Ins(text, cls, regs_of(list(defs)), regs_of(list(uses))))
    def label(self, name):
        return self.add(Ins(name + ":", "label"))
    def comment(self, t):
        return self.add(Ins("; " + t, "comment"))
    def v(self, op, dst, *srcs, mods="", extra_defs=(), extra_uses=()):
        base = re.sub(r"_(e32|e64|dpp|sdwa)$", "", op)
        cls = "trans" if base in TRANS else "valu"
        defs = regs_of(dst) + regs_of(list(extra_defs))
        uses = regs_of(list(srcs)) + regs_of(list(extra_uses))
        if base in ("v_fmac_f32", "v_pk_fmac_f16", "v_dot2c_f32_bf16", "v_writelane_b32"):
            uses += regs_of(dst)
        if base in ("v_permlane32_swap_b32", "v_permlane16_swap_b32"):
            uses += regs_of(dst); defs += regs_of(srcs[0])
        if base.startswith("v_cndmask") and len(srcs) == 2:
            uses += VCC.regs()
        text = f"{op} {fmt(dst)}" + "".join(", " + fmt(s) for s in srcs) + (" " + mods if mods else "")
        return self.add(Ins(text, cls, defs, uses, op=base))
    def acc_read(self, dst, src):  return self.v("v_accvgpr_read_b32", dst, src)
    def acc_write(self, dst, src): return self.v("v_accvgpr_write_b32", dst, src)
    def s(self, op, dst, *srcs):
        defs = regs_of(dst); uses = regs_of(list(srcs))
        if op.startswith("s_cmp") or op.startswith("s_bitcmp"):
            uses += regs_of(dst); defs = SCC.regs()
        elif op in ("s_add_u32", "s_sub_u32", "s_addc_u32", "s_subb_u32", "s_lshl_b32", "s_lshr_b32", "s_and_b32", "s_or_b32",
                    "s_xor_b32", "s_and_b64", "s_or_b64", "s_add_i32", "s_sub_i32", "s_ashr_i32", "s_min_u32", "s_max_u32",
                    "s_andn2_b64", "s_lshl_b64", "s_xor_b64", "s_bfe_u32"):
            defs += SCC.regs()
        if op in ("s_addc_u32", "s_subb_u32", "s_cselect_b32", "s_cselect_b64"):
            uses += SCC.regs()
        if op.endswith("saveexec_b64"):
            defs += EXEC.regs() + SCC.regs(); uses += EXEC.regs()
        text = f"{op} {fmt(dst)}" + "".join(", " + fmt(s) for s in srcs)
        return self.add(Ins(text, "salu", defs, uses, op=op))
    def s_load(self, dst, base, off):
        op = {1: "s_load_dword", 2: "s_load_dwordx2", 4: "s_load_dwordx4", 8: "s_load_dwordx8", 16: "s_load_dwordx16"}[dst.n]
        return self.add(Ins(f"{op} {dst}, {base}, {hex(off)}", "smem", dst.regs(), base.regs(), op=op))
    def mfma(self, d, a, b, c, shape=16):
        op, w, p = ("v_mfma_f32_16x16x32_bf16", 4, 4) if shape == 16 else ("v_mfma_f32_32x32x16_bf16", 16, 8)
        assert d.n == w and a.n == 4 and b.n == 4, (d, a, b)
        cu = regs_of(c)
        if isinstance(c, R): assert c.n == w and c.k == d.k, (c, d)
        ins = Ins(f"{op} {d}, {a}, {b}, {fmt(c)}", "mfma", d.regs(), a.regs() + b.regs(), cu, passes=p, op=op)
        return self.add(ins)
    def mfma4(self, d, a, b, c):
        assert d.n == 4 and a.n == 2 and b.n == 2
        ins = Ins(f"v_mfma_f32_4x4x4_16b_bf16 {d}, {a}, {b}, {fmt(c)}", "mfma", d.regs(), a.regs() + b.regs(), regs_of(c), passes=2, op="mfma4")
        return self.add(ins)
    def ds_read(self, op, dst, addr, off=0, tags=(), lds=None):
        assert 0 <= off < 65536, off
        t = f"{op} {dst}, {addr}" + (f" offset:{off}" if off else "")
        return self.add(Ins(t, "dsrd", dst.regs(), addr.regs(), tags=tags, lds=lds, op=op))
    def ds_write(self, op, addr, data, off=0, tags=(), lds=None):
        assert 0 <= off < 65536, off
        t = f"{op} {addr}, {data}" + (f" offset:{off}" if off else "")
        return self.add(Ins(t, "dswr", [], addr.regs() + data.regs(), tags=tags, lds=lds, op=op))
    def _boff(self, voff, srd, soff, off, flags):
        assert 0 <= off < 4096, off
        t = f"{voff if voff is not None else 'off'}, {srd}, {fmt(soff)}"
        if voff is not None: t += " offen"
        if off: t += f" offset:{off}"
        if flags: t += " " + flags
        return t, regs_of([voff, srd, soff])
    def buf_load(self, dst, voff, srd, soff=0, off=0, flags="", tags=()):
        op = {1: "buffer_load_dword", 2: "buffer_load_dwordx2", 4: "buffer_load_dwordx4"}[dst.n]
        t, u = self._boff(voff, srd, soff, off, flags)
        return self.add(Ins(f"{op} {dst}, {t}", "vmld", dst.regs(), u, tags=tags, op=op))
    def buf_dma(self, voff, srd, soff=0, off=0, flags="", tags=(), lds=None):
        t, u = self._boff(voff, srd, soff, off, flags)
        return self.add(Ins(f"buffer_load_dwordx4 {t} lds", "dma", [], u + M0.regs(), tags=tags, lds=lds, op="dma"))
    def buf_store(self, data, voff, srd, soff=0, off=0, flags="", tags=()):
        op = {1: "buffer_store_dword", 2: "buffer_store_dwordx2", 4: "buffer_store_dwordx4"}[data.n]
        t, u = self._boff(voff, srd, soff, off, flags)
        ins = Ins(f"{op} {data}, {t}", "vmst", [], u + data.regs(), tags=tags, op=op)
        ins.wide = data.n >= 3
        ins.meta = data.regs()
        return self.add(ins)
    def wait(self, vm=None, lgkm=None):
        ins = Ins("s_waitcnt", "wait"); ins.wait = dict(vm=vm, lgkm=lgkm); return self.add(ins)
    def barrier(self): return self.add(Ins("s_barrier", "barrier"))
    def nop(self, n=0):
        ins = Ins(f"s_nop {n}", "nop"); ins.nop = n; return self.add(ins)
    def branch(self, op, target):
        u = SCC.regs() if "scc" in op else (VCC.regs() if "vcc" in op else (EXEC.regs() if "exec" in op else []))
        return self.add(Ins(f"{op} {target}", "branch", [], u, op=op))
    def endpgm(self): return self.add(Ins("s_endpgm", "end"))
    def assert_drained(self, tag):
        ins = Ins("; drained " + tag, "comment"); ins.meta = ("drained", tag); return self.add(ins)
    def setprio(self, n): return self.add(Ins(f"s_setprio {n}", "salu"))

class CheckError(Exception):
    pass

def resolve_waits(traces):
    if traces and isinstance(traces[0], Ins): traces = [traces]
    best = {}
    for trace in traces:
        vmq, lgq = [], []
        for ins in trace:
            if ins.cls in ("vmld", "dma", "vmst"): vmq.append(ins)
            elif ins.cls in ("dsrd", "dswr"): lgq.append(ins)
            elif ins.cls == "wait":
                for key, q in (("vm", vmq), ("lgkm", lgq)):
                    w = ins.wait[key]
                    if isinstance(w, tuple):
                        n = None
                        for k, o in enumerate(reversed(q)):
                            if w[1] in o.tags:
                                n = k; break
                        kk = (id(ins), key)
                        if n is not None and len(w) > 2: n = min(n, w[2])
                        if n is not None:
                            best[kk] = min(best.get(kk, (10**9, ins))[0], n), ins
                        else:
                            best.setdefault(kk, (10**9, ins))
    for (i, key), (n, ins) in best.items():
        mx = 63 if key == "vm" else 15
        ins.wait = dict(ins.wait)
        ins.wait[key] = min(n, mx) if n < 10**9 else None
    for trace in traces:
        for ins in trace:
            if ins.cls == "wait":
                vm, lg = ins.wait["vm"], ins.wait["lgkm"]
                assert not (isinstance(vm, tuple) or isinstance(lg, tuple))
                parts = []
                if vm is not None: parts.append(f"vmcnt({vm})")
                if lg is not None: parts.append(f"lgkmcnt({lg})")
                ins.text = "s_waitcnt " + " ".join(parts) if parts else "s_nop 0"

def overlap(a, b):
    return a is not None and b is not None and a[0] < b[1] and b[0] < a[1]

def check(trace, name="", verbose=False):
    errs = []
    def err(i, msg):
        ctx = " | ".join(x.text for x in trace[max(0, i - 2): i + 1])
        errs.append(f"[{name}] #{i}: {msg}   <<{ctx}>>")
    T = 0
    wr = {}
    cread = {}
    stdata = {}
    vmq, lgq = [], []
    pend = {}
    smem_pend = set()
    m0_t = -10
    retired = {}; last_barrier = -1
    fills = []
    reads = []
    for i, ins in enumerate(trace):
        c = ins.cls
        if c == "comment" and ins.meta and ins.meta[0] == "drained":
            tag = ins.meta[1]
            if any(tag in o_.tags for o_ in vmq): err(i, f"ops tagged {tag} still outstanding")
            if retired.get(tag, -1) > last_barrier: err(i, f"ops tagged {tag} retired after the latest barrier")
        if c in ("label", "comment"): continue
        allr = ins.uses + ins.cuses
        for r in allr + ins.defs:
            if r in pend:
                err(i, f"register {r} touched while load pending ({pend[r].text})")
            if r in smem_pend and c != "smem":
                err(i, f"register {r} touched while scalar load pending")
        def gap(t): return T - t - 1
        for r in ins.uses + ins.cuses:
            if r not in wr: continue
            t, wc, w = wr[r]
            need = 0
            if wc in ("valu", "trans"):
                if c == "mfma" and r[0] in "va": need = 2
                elif r[0] == "s" and c in ("valu", "trans", "mfma") : need = 2
                elif r[0] == "s" and c in ("vmld", "vmst", "dma"): need = 5
                elif r[0] == "s" and c in ("salu", "branch", "smem"): need = 1
                elif ins.op in ("v_readfirstlane_b32", "v_readlane_b32") and r[0] == "v": need = 1
                elif ins.op.startswith("v_permlane") or "dpp" in ins.text or "row_" in ins.text: need = 2
                if wc == "trans" and c in ("valu", "dswr", "vmst", "vmld", "dma", "dsrd"): need = max(need, 1)
            elif wc == "mfma":
                p = w.passes
                if c == "mfma":
                    if r in ins.cuses and r not in ins.uses:
                        same = (ins.cuses == w.defs)
                        need = (2 if p == 2 else 0) if same else {2: 4, 4: 6, 8: 10, 16: 18}[p]
                    else:
                        need = {2: 5, 4: 8, 8: 12, 16: 20}[p]
                else:
                    need = {2: 5, 4: 8, 8: 12, 16: 20}[p]
            elif wc == "salu" and r == ("s", 124) and c == "dma":
                need = 1
            if gap(t) < need:
                err(i, f"RAW hazard on {r}: gap {gap(t)} < {need} after '{w.text}'")
        for r in ins.defs:
            if r in wr:
                t, wc, w = wr[r]
                if wc == "mfma" and c != "mfma":
                    need = {2: 5, 4: 8, 8: 12, 16: 20}[w.passes]
                    if gap(t) < need: err(i, f"WAW hazard on {r} after mfma: gap {gap(t)} < {need}")
                if wc == "mfma" and c == "mfma" and r not in ins.cuses:
                    need = {2: 4, 4: 6, 8: 10, 16: 18}[w.passes]
                    if gap(t) < need: err(i, f"mfma WAW on {r} without chain: gap {gap(t)} < {need}")
            if r in cread and c in ("valu", "trans"):
                t, p = cread[r]
                need = {2: 1, 4: 3, 8: 7, 16: 15}[p]
                if gap(t) < need: err(i, f"WAR hazard on mfma SrcC {r}: gap {gap(t)} < {need}")
            if r in stdata:
                need = 2 if c in ("valu", "trans") else 1
                if gap(stdata[r]) < need: err(i, f"store data {r} overwritten too early")
        if c == "dsrd" and ins.lds is not None:
            for f in fills:
                if overlap(f[0], ins.lds) and f[1] != "visible":
                    err(i, f"LDS read {ins.lds} of fill {f[0]} (#{f[2]}) not yet visible ({f[1]})")
            reads.append([ins.lds, "issued", i, ins])
        if c in ("dma", "dswr") and ins.lds is not None:
            for rd in reads:
                if overlap(rd[0], ins.lds) and rd[1] != "released":
                    err(i, f"LDS fill {ins.lds} overwrites range still read by #{rd[2]} ({rd[1]})")
            reads[:] = [rd for rd in reads if not (overlap(rd[0], ins.lds) and rd[1] == "released")]
            fills[:] = [f for f in fills if not (ins.lds[0] <= f[0][0] and f[0][1] <= ins.lds[1] and f[1] == "visible")]
            fills.append([ins.lds, "issued", i, ins])
        if c == "wait":
            vm, lg = ins.wait["vm"], ins.wait["lgkm"]
            assert not isinstance(vm, tuple) and not isinstance(lg, tuple), "unresolved wait"
            if vm is not None:
                while len(vmq) > vm:
                    o = vmq.pop(0)
                    for t_ in o.tags: retired[t_] = i
                    for r in o.defs: pend.pop(r, None)
                    for f in fills:
                        if f[3] is o and f[1] == "issued": f[1] = "done"
            if lg is not None:
                while len(lgq) > lg:
                    o = lgq.pop(0)
                    for r in o.defs: pend.pop(r, None)
                    for rd in reads:
                        if rd[3] is o and rd[1] == "issued": rd[1] = "done"
                    for f in fills:
                        if f[3] is o and f[1] == "issued": f[1] = "done"
                if lg == 0: smem_pend.clear()
        elif c == "barrier":
            last_barrier = i
            for f in fills:
                if f[1] == "done": f[1] = "visible"
            for rd in reads:
                if rd[1] == "done": rd[1] = "released"
        elif c in ("vmld", "dma", "vmst"):
            vmq.append(ins)
            if len(vmq) > 63: err(i, "more than 63 VMEM ops outstanding")
            if c == "vmld":
                for r in ins.defs: pend[r] = ins
            if c == "vmst" and ins.wide:
                for r in ins.meta: stdata[r] = T
        elif c in ("dsrd", "dswr"):
            lgq.append(ins)
            if len(lgq) > 15:
                o = lgq.pop(0)
                for r in o.defs: pend.pop(r, None)
                for rd in reads:
                    if rd[3] is o and rd[1] == "issued": rd[1] = "done"
                for f in fills:
                    if f[3] is o and f[1] == "issued": f[1] = "done"
            if c == "dsrd":
                for r in ins.defs: pend[r] = ins
        elif c == "smem":
            for r in ins.defs: smem_pend.add(r)
        for r in ins.defs:
            wr[r] = (T, c, ins)
        if c == "mfma":
            for r in ins.cuses: cread[r] = (T, ins.passes)
        T += 1 + (ins.nop if c == "nop" else 0)
    if errs:
        for e in errs[:40]: print(e)
        raise CheckError(f"{len(errs)} hazard errors in {name}")

def render(segs):
    out = []
    for s in segs:
        for ins in s:
            if ins.cls == "label": out.append(ins.text)
            else: out.append("    " + ins.text)
    return "\n".join(out) + "\n"

def kernel_text(name, body, vgpr=512, accum=256, sgpr=102):
    return f""".globl {name}
.p2align 8
.type {name},@function
{name}:
{body}
.section .rodata,"a"
.p2align 6
.amdhsa_kernel {name}
  .amdhsa_next_free_vgpr {vgpr}
  .amdhsa_next_free_sgpr {sgpr}
  .amdhsa_accum_offset {accum}
  .amdhsa_group_segment_fixed_size 0
  .amdhsa_kernarg_size 96
  .amdhsa_user_sgpr_count 2
  .amdhsa_user_sgpr_kernarg_segment_ptr 1
  .amdhsa_system_sgpr_workgroup_id_x 1
  .amdhsa_float_denorm_mode_32 3
.end_amdhsa_kernel
.text
"""

def weave(mf, fillers, cap=2):
    by = {}
    for g, ins in fillers:
        by.setdefault(g, []).append(ins)
    out = Seg()
    for ins in by.get(-1, []): out.add(ins)
    for i, m in enumerate(mf):
        out.add(m)
        for ins in by.get(i, []): out.add(ins)
    extra = [g for g in by if g >= len(mf) or g < -1]
    assert not extra, extra
    return out
```

```python
import sys, os, json
import build, k_mega
def compact(s):
    return "\n".join(l.strip() if not l.startswith(";") else l for l in s.split("\n"))
def make(variants, stamps, single_name=None):
    parts = [k_mega.gen_mega(n, stamps=stamps, opt=o) for n, o in variants.items()]
    s = build.build(parts, [(n, 256, 256, 163840) for n in variants])
    return compact(s)
if __name__ == "__main__":
    out = sys.argv[1]
    stamps = len(sys.argv) > 2 and sys.argv[2] == "stamps"
    variants = json.loads(sys.argv[3]) if len(sys.argv) > 3 else {"mega_kernel": {}}
    s = make(variants, stamps)
    open(out, "w").write(s); print(len(s))
```

```python
from asmgen import *

WS_XN, SZ_XN = 0x0, 128 * 18 * 1024
WS_H, SZ_H = 0x240000, 128 * 144 * 1024
WS_O, SZ_O = 0x1440000, 128 * 128 * 1024
WS_P, SZ_P = 0x2440000, 8 * 128 * 4 * 4608
KA = dict(x=0, k=8, v=16, wq=24, wo=32, bx=40, wg=48, wu=56, wd=64, out=72, dbg=80, ws=88)
SZ = dict(x=2048 * 576 * 2, k=16 * 2048 * 128 * 2, v=16 * 2048 * 128 * 2, wq=576 * 4096 * 2, wo=4096 * 576 * 2,
          wg=576 * 4608 * 2, wu=576 * 4608 * 2, wd=4608 * 576 * 2, out=2048 * 576 * 2)

def make_srd(p, srd, ptr, size, add=None):
    if add is None:
        p.s("s_mov_b32", srd[0], ptr[0])
        p.s("s_mov_b32", srd[1], ptr[1])
    else:
        p.s("s_add_u32", srd[0], ptr[0], add)
        p.s("s_addc_u32", srd[1], ptr[1], 0)
    p.s("s_mov_b32", srd[2], size)
    p.s("s_mov_b32", srd[3], 0x20000)

def wave_id(p, sdst, vtmp):
    p.v("v_lshrrev_b32", vtmp, 6, V(0))
    p.nop(0)
    p.v("v_readfirstlane_b32", sdst, vtmp)
    p.nop(3)

def guard(p, n, label):
    p.s("s_cmp_ge_u32", S(2), n)
    p.branch("s_cbranch_scc1", label)

WS_STAMP = 0x8000000
class Stamps:
    def __init__(self, enabled, vreg=0):
        self.on, self.v, self.n = enabled, vreg, 0
    def stamp(self, p):
        if not self.on: return
        i = self.n; self.n += 1
        assert 2 * i + 1 < 64
        p.add(Ins("s_memtime s[96:97]", "other"))
        p.add(Ins("s_memrealtime s[98:99]", "other"))
        p.add(Ins("s_waitcnt lgkmcnt(0)", "other"))
        p.add(Ins(f"v_writelane_b32 v{self.v}, s96, {2 * i}", "other"))
        p.add(Ins(f"v_writelane_b32 v{self.v}, s98, {2 * i + 1}", "other"))
    def dump(self, p, pws, swave):
        if not self.on: return
        srd = S(92, 4)
        make_srd(p, srd, pws, 0x100000, add=WS_STAMP)
        p.s("s_lshl_b32", S(96), S(2), 2)
        p.s("s_add_u32", S(96), S(96), swave)
        p.s("s_lshl_b32", S(96), S(96), 8)
        p.v("v_mbcnt_lo_u32_b32", V(1), -1, 0)
        p.v("v_mbcnt_hi_u32_b32", V(1), -1, V(1))
        p.v("v_lshlrev_b32", V(1), 2, V(1))
        p.add(Ins(f"buffer_store_dword v{self.v}, v1, s[92:95], s96 offen", "other"))
```

```python
from common import *
from k_gemm2 import lane_tr_addr, dma288_voffs

GREG = 36864
GR = [0, GREG, 2 * GREG]
QSZ = 24576
QR = [110592, 135168, 40960, 110592, 135168, 40960]
KRING, VRING = 0, 65536
QSCALE = 1.4426950408889634 / 128 ** 0.5
LTHR = float(2.0 ** 60)

class K1:
    def __init__(self, name, stamps=False, opt=None):
        self.name, self.opt = name, (opt or {})
        self.ST = Stamps(stamps)
        self.pk, self.pv, self.pwq, self.pwg, self.pwu, self.pws = S(4, 2), S(6, 2), S(8, 2), S(10, 2), S(12, 2), S(14, 2)
        self.sGU, self.sWq, self.sK, self.sV = S(16, 4), S(20, 4), S(24, 4), S(28, 4)
        self.sXN, self.sH, self.sO = S(32, 4), S(36, 4), S(40, 4)
        self.sw, self.shead, self.sP = S(44), S(45), S(46)
        self.sgoff, self.sxoff, self.sqoff, self.skvoff = S(47), S(48), S(49), S(50)
        self.sm9, self.sm1 = S(51), S(52)
        self.shb, self.sob = S(53), S(54)
        self.stmp, self.stmp2, self.sloop, self.sredo = S(55), S(56), S(57), S(58)
        self.sexec = S(60, 2)
        self.lane = V(1)
        self.VD = V(2, 9)
        self.VA = V(11, 3)
        self.VX = V(14, 4)
        self.V16 = V(18)
        self.t0, self.t1, self.t2 = V(19), V(20), V(21)
        self.VH = V(22)
        self.VWd = V(23)

    def setup(self, p):
        o = self
        guard(p, 256, o.name + "_end")
        o.ST.stamp(p)
        for r, k in ((o.pk, "k"), (o.pv, "v"), (o.pwq, "wq"), (o.pwg, "wg"), (o.pwu, "wu"), (o.pws, "ws")):
            p.s_load(r, S(0, 2), KA[k])
        wave_id(p, o.sw, o.lane)
        p.v("v_and_b32", o.lane, 63, V(0))
        p.s("s_and_b32", o.stmp, S(2), 7)
        p.s("s_lshl_b32", o.stmp, o.stmp, 2)
        p.s("s_bfe_u32", o.stmp2, S(2), 0x20003)
        p.s("s_add_u32", o.shead, o.stmp, o.stmp2)
        p.s("s_lshr_b32", o.sP, S(2), 5)
        p.s("s_mul_i32", o.sm9, o.sw, 9216)
        p.s("s_lshl_b32", o.sm1, o.sw, 10)
        dma288_voffs(p, o.VD, o.lane, o.t0, o.t1, o.t2, 9216, o.stmp)
        lane_tr_addr(p, o.VA[0], o.lane, o.t0, o.t1, 288)
        p.v("v_add_u32", o.VA[1], GR[1], o.VA[0])
        p.v("v_add_u32", o.VA[2], GR[2], o.VA[0])
        p.v("v_lshlrev_b32", o.V16, 4, o.lane)
        for pb in range(4):
            p.v("v_add_u32", o.VX[pb], pb * 18 * 1024, o.V16)
        p.wait(lgkm=0)
        p.s("s_cmp_lt_u32", o.sw, 2)
        p.s("s_cselect_b32", o.sGU[0], o.pwg[0], o.pwu[0])
        p.s("s_cselect_b32", o.sGU[1], o.pwg[1], o.pwu[1])
        p.s("s_mov_b32", o.sGU[2], SZ["wg"])
        p.s("s_mov_b32", o.sGU[3], 0x20000)
        make_srd(p, o.sXN, o.pws, SZ_XN, add=WS_XN)
        p.s("s_and_b32", o.stmp, o.sw, 1)
        p.s("s_mul_i32", o.sgoff, o.stmp, 32 * 9216)
        p.s("s_mul_i32", o.stmp, o.shead, 288)
        p.s("s_add_u32", o.sgoff, o.sgoff, o.stmp)
        p.s("s_lshl_b32", o.stmp, o.sP, 4)
        p.s("s_lshl_b32", o.stmp2, o.sw, 2)
        p.s("s_add_u32", o.stmp, o.stmp, o.stmp2)
        p.s("s_mul_i32", o.sxoff, o.stmp, 18 * 1024)
        p.s("s_mul_i32", o.shb, o.stmp, 144 * 1024)
        p.s("s_mul_i32", o.sob, o.stmp, 128 * 1024)

    def setup_late(self, p):
        o = self
        make_srd(p, o.sWq, o.pwq, SZ["wq"])
        make_srd(p, o.sH, o.pws, SZ_H, add=WS_H)
        make_srd(p, o.sO, o.pws, SZ_O, add=WS_O)
        p.s("s_lshr_b32", o.stmp, o.shead, 1)
        p.s("s_lshl_b32", o.stmp, o.stmp, 19)
        make_srd(p, o.sK, o.pk, 524288, add=o.stmp)
        make_srd(p, o.sV, o.pv, 524288, add=o.stmp)
        t0, t1, t2 = o.t0, o.t1, o.t2
        p.v("v_lshrrev_b32", t0, 4, o.lane)
        p.s("s_lshl_b32", o.stmp, o.sw, 2)
        p.v("v_add_u32", t0, o.stmp, t0)
        p.v("v_and_b32", t1, 7, t0)
        p.v("v_lshlrev_b32", t1, 1, t1)
        p.v("v_and_b32", t2, 15, o.lane)
        p.v("v_xor_b32", t1, t1, t2)
        p.v("v_lshlrev_b32", t1, 4, t1)
        p.v("v_lshl_add_u32", o.VWd, t0, 13, t1)
        p.s("s_lshl_b32", o.sqoff, o.shead, 8)
        p.s("s_lshl_b32", o.stmp, o.shead, 12)
        p.s("s_add_u32", o.sob, o.sob, o.stmp)

    def g_dma(self, c):
        o = self; out = []
        rg = (GR[c % 3], GR[c % 3] + GREG)
        for j in range(9):
            q = Seg()
            q.s("s_add_u32", M0, o.sm9, GR[c % 3] + 1024 * j)
            q.buf_dma(o.VD[j], o.sGU, o.sgoff, 0, flags=o.opt.get("wflags", ""), tags=[f"G{c}"], lds=rg)
            if j == 8: q.s("s_add_u32", o.sgoff, o.sgoff, 64 * 9216)
            out.append(q)
        return out
    def x_loads(self, dst, nks, tag, rewind=None):
        o = self; out = []
        for ks in range(nks):
            for pb in range(4):
                q = Seg()
                q.buf_load(dst(pb, ks), o.VX[pb], o.sXN, o.sxoff, 1024 * ks, tags=[tag])
                out.append(q)
        out[-1].s("s_add_u32", o.sxoff, o.sxoff, 1024 * nks)
        return out
    def q_dma(self, c):
        o = self; out = []
        rg = (QR[c], QR[c] + QSZ)
        for i in range(6):
            q = Seg()
            q.s("s_add_u32", M0, o.sm1, QR[c] + 4096 * i)
            q.buf_dma(o.VWd, o.sWq, o.sqoff, 0, flags=o.opt.get("wflags", ""), tags=[f"Q{c}"], lds=rg)
            q.s("s_add_u32", o.sqoff, o.sqoff, 16 * 8192)
            out.append(q)
        return out
    def kv_dma(self, j):
        o = self; out = []
        slot = j % 4
        for i in range(4):
            q = Seg()
            q.s("s_add_u32", M0, o.sm1, KRING + slot * 16384 + 4096 * i)
            q.buf_dma(o.VKd, o.sK, o.skvoff, 0, tags=[f"A{slot}"], lds=(KRING + slot * 16384, KRING + slot * 16384 + 16384))
            out.append(q)
            q = Seg()
            q.s("s_add_u32", M0, o.sm1, VRING + slot * 16384 + 4096 * i)
            q.buf_dma(o.VVd, o.sV, o.skvoff, 0, tags=[f"A{slot}"], lds=(VRING + slot * 16384, VRING + slot * 16384 + 16384))
            q.s("s_add_u32", o.skvoff, o.skvoff, 4096)
            out.append(q)
        return out

    @staticmethod
    def put_now(p, items):
        for q in items:
            if q[0].text.startswith("s_add_u32 m0"):
                p.add(q[0]); p.nop(0); p.extend(q[1:])
            else:
                p.extend(q)
    @staticmethod
    def place(fl, q, g):
        if q[0].text.startswith("s_add_u32 m0"):
            fl.append((g - 1, q[0])); fl += [(g, i) for i in q[1:]]
        else:
            fl += [(g, i) for i in q]

    def gacc(self, fb, m, pb):
        idx = ((fb * 2 + m) * 4 + pb) * 4
        return V(24 + idx, 4) if fb < 7 else A(idx - 224, 4)
    def gx(self, c, pb, ks): return A(64 + (c % 3) * 32 + (pb * 2 + ks) * 4, 4)
    def gaf(self, s_, m, ks): return A(160 + s_ * 16 + (m * 2 + ks) * 4, 4)
    def g_reads(self, c, fb, s_):
        out = []
        for m in range(2):
            for ks in range(2):
                for h in range(2):
                    q = Seg()
                    q.ds_read("ds_read_b64_tr_b16", self.gaf(s_, m, ks).sub(2 * h, 2), self.VA[c % 3],
                              m * 18432 + (32 * ks + 16 * h) * 288 + 32 * fb, lds=(GR[c % 3], GR[c % 3] + GREG), tags=["a"])
                    out.append(q)
        return out
    def qx(self, c, pb, ks): return A((c % 3) * 48 + (pb * 3 + ks) * 4, 4) if False else A(64 + (c % 3) * 48 + (pb * 3 + ks) * 4, 4)

    def phase_g(self, p):
        o = self
        xl = lambda c: o.x_loads(lambda pb, ks: o.gx(c, pb, ks), 2, f"G{c}")
        o.put_now(p, o.g_dma(0)); o.put_now(p, xl(0))
        o.setup_late(p)
        o.put_now(p, o.g_dma(1)); o.put_now(p, xl(1))
        o.ST.stamp(p)
        p.wait(vm=("tag", "G0")); p.barrier()
        o.ST.stamp(p)
        for q in o.g_reads(0, 0, 0): p.extend(q)
        p.wait(lgkm=0)
        gi = 0
        for c in range(9):
            if c + 2 < 9:
                dq, xq = o.g_dma(c + 2), xl(c + 2)
            elif c == 7:
                dq = o.q_dma(0)
                q = Seg(); q.s("s_sub_u32", o.sxoff, o.sxoff, 18 * 1024)
                xq = [q]
            else:
                dq, xq = o.q_dma(1), []
            for fb in range(9):
                s_ = gi % 2
                mf = Seg()
                for m in range(2):
                    for pb in range(4):
                        for ks in range(2):
                            cin = 0 if (c == 0 and ks == 0) else o.gacc(fb, m, pb)
                            mf.mfma(o.gacc(fb, m, pb), o.gaf(s_, m, ks), o.gx(c, pb, ks), cin)
                fl = []
                last = (c == 8 and fb == 8)
                g0 = 0
                if fb == 8 and not last:
                    q = Seg(); q.wait(vm=("tag", f"G{c+1}")); q.barrier()
                    fl += [(0, i) for i in q]; g0 = 1
                if not last:
                    nx = (c, fb + 1) if fb < 8 else (c + 1, 0)
                    for k, q in enumerate(o.g_reads(nx[0], nx[1], 1 - s_)):
                        fl += [(g0 + k // 2, i) for i in q]
                if dq: o.place(fl, dq.pop(0), 7)
                if xq: o.place(fl, xq.pop(0), 11)
                if not last:
                    q = Seg(); q.wait(lgkm=0); fl += [(15, i) for i in q]
                p.extend(weave(mf, fl)); gi += 1
            assert not dq and not xq
        o.ST.stamp(p)
        o.put_now(p, o.x_loads(lambda pb, ks: o.qx(0, pb, ks), 3, "Q0"))
        o.put_now(p, o.x_loads(lambda pb, ks: o.qx(1, pb, ks), 3, "Q1"))
        T = V(248, 8)
        for pb in range(4):
            pass
        vh = [o.t0, o.t1, o.t2, o.VH]
        for pb in range(4):
            p.v("v_add_u32", vh[pb], pb * 144 * 1024, o.V16)
        p.s("s_mul_i32", o.stmp2, o.shead, 9)
        for fb in range(9):
            p.s("s_add_u32", o.sloop, o.stmp2, fb)
            p.s("s_lshr_b32", o.stmp, o.sloop, 1)
            p.s("s_lshl_b32", o.stmp, o.stmp, 10)
            p.s("s_and_b32", o.sloop, o.sloop, 1)
            p.s("s_lshl_b32", o.sloop, o.sloop, 3)
            p.s("s_add_u32", o.stmp, o.stmp, o.sloop)
            p.s("s_add_u32", o.stmp, o.stmp, o.shb)
            for pb in range(4):
                g, u = o.gacc(fb, 0, pb), o.gacc(fb, 1, pb)
                if fb >= 7:
                    gg, uu = T.sub(0, 4), T.sub(4, 4)
                    for r in range(4): p.acc_read(gg[r], g[r])
                    for r in range(4): p.acc_read(uu[r], u[r])
                    g, u = gg, uu
                for r in range(4): p.v("v_max_f32", g[r], 0, g[r])
                for r in range(4): p.v("v_mul_f32", g[r], g[r], u[r])
                p.v("v_cvt_pk_bf16_f32", u[0], g[0], g[1])
                p.v("v_cvt_pk_bf16_f32", u[1], g[2], g[3])
                p.buf_store(u.sub(0, 2), vh[pb], o.sH, o.stmp, 0, tags=["hst"])
            if fb == 4: p.wait(vm=16)
        o.ST.stamp(p)

    def qacc(self, db, pb): return V(24 + (db * 4 + pb) * 4, 4)
    def qaf(self, s_, ks): return A(208 + s_ * 12 + ks * 4, 4)
    def sw_addr(self, p, regs, base):
        o = self
        p.v("v_lshrrev_b32", o.t0, 2, o.lane)
        p.v("v_and_b32", o.t1, 7, o.t0)
        p.v("v_lshlrev_b32", o.t0, 8, o.t0)
        p.v("v_and_b32", o.t2, 3, o.lane)
        p.v("v_lshl_add_u32", o.t0, o.t2, 3, o.t0)
        p.v("v_add_u32", o.t0, base, o.t0)
        for db in range(8):
            p.v("v_xor_b32", o.t2, db, o.t1)
            p.v("v_lshl_add_u32", regs[db], o.t2, 5, o.t0)
    def q_reads(self, c, db, s_):
        o = self; out = []
        regs, base = (o.VWlo, 40960) if QR[c] == 40960 else (o.VWhi, 110592)
        for ks in range(3):
            for h in range(2):
                q = Seg()
                q.ds_read("ds_read_b64_tr_b16", o.qaf(s_, ks).sub(2 * h, 2), regs[db], QR[c] - base + (32 * ks + 16 * h) * 256,
                          lds=(QR[c], QR[c] + QSZ), tags=["a"])
                out.append(q)
        return out
    def phase_q(self, p):
        o = self
        o.VWlo, o.VWhi = V(224, 8), V(232, 8)
        o.VKd, o.VVd = V(240), V(241)
        o.sw_addr(p, o.VWlo, 40960)
        for db in range(8): p.v("v_add_u32", o.VWhi[db], 110592 - 40960, o.VWlo[db])
        t0, t1, t2 = o.t0, o.t1, o.t2
        p.v("v_lshrrev_b32", t0, 4, o.lane)
        p.s("s_lshl_b32", o.stmp, o.sw, 2)
        p.v("v_add_u32", t0, o.stmp, t0)
        p.v("v_and_b32", t2, 15, o.lane)
        p.v("v_xor_b32", t1, t0, t2)
        p.v("v_lshlrev_b32", t1, 4, t1)
        p.v("v_lshl_add_u32", o.VKd, t0, 8, t1)
        p.v("v_and_b32", t1, 7, t0)
        p.v("v_lshlrev_b32", t1, 1, t1)
        p.v("v_xor_b32", t1, t1, t2)
        p.v("v_lshlrev_b32", t1, 4, t1)
        p.v("v_lshl_add_u32", o.VVd, t0, 8, t1)
        p.s("s_mov_b32", o.skvoff, 0)
        xl = lambda c: o.x_loads(lambda pb, ks: o.qx(c, pb, ks), 3, f"Q{c}")
        p.wait(vm=("tag", "Q0")); p.barrier()
        for q in o.q_reads(0, 0, 0): p.extend(q)
        p.wait(lgkm=0)
        gi = 0
        for c in range(6):
            if c + 2 < 6: dq, xq = o.q_dma(c + 2), xl(c + 2)
            else: dq, xq = o.kv_dma(c - 4), []
            if c == 0: hq_ = o.h_stores() if o.opt.get("hplan") in ("late5", "late4", "front") else []
            for db in range(8):
                s_ = gi % 2
                mf = Seg()
                for pb in range(4):
                    for ks in range(3):
                        cin = 0 if (c == 0 and ks == 0) else o.qacc(db, pb)
                        mf.mfma(o.qacc(db, pb), o.qaf(s_, ks), o.qx(c, pb, ks), cin)
                fl = []
                last = (c == 5 and db == 7)
                g0 = 0
                if db == 7 and not last:
                    q = Seg(); q.wait(vm=("tag", f"Q{c+1}")); q.barrier()
                    fl += [(0, i) for i in q]; g0 = 1
                if not last:
                    nx = (c, db + 1) if db < 7 else (c + 1, 0)
                    for k, q in enumerate(o.q_reads(nx[0], nx[1], 1 - s_)):
                        fl += [(g0 + k // 2, i) for i in q]
                if dq: o.place(fl, dq.pop(0), 5)
                for g in (7, 9):
                    if xq: o.place(fl, xq.pop(0), g)
                hplan = o.opt.get("hplan", "late5")
                if hq_ and hplan == "late5" and c < 5 and db >= 6:
                    for g in (5, 8): o.place(fl, hq_.pop(0), g)
                if hq_ and hplan == "late4" and c < 4 and db >= 6:
                    for g in ((4, 7, 10) if db == 6 else (4, 8)): o.place(fl, hq_.pop(0), g)
                if hq_ and hplan == "front" and c == 0 and db < 5:
                    for g in (4, 6, 8, 10): o.place(fl, hq_.pop(0), g)
                if not last:
                    q = Seg(); q.wait(lgkm=0); fl += [(11, i) for i in q]
                fl.sort(key=lambda x: x[0])
                p.extend(weave(mf, fl)); gi += 1
            assert not dq and not xq, (c, len(dq), len(xq))
        assert not hq_
        o.ST.stamp(p)
        if hasattr(o, "after_q_main"): o.after_q_main(p)
        p.s("s_mov_b32", o.stmp, QSCALE)
        p.nop(6)
        for pb in range(4):
            for s_ in range(4):
                a, b = o.qacc(2 * s_, pb), o.qacc(2 * s_ + 1, pb)
                f = a
                for r in range(4): p.v("v_mul_f32", a[r], o.stmp, a[r])
                for r in range(4): p.v("v_mul_f32", b[r], o.stmp, b[r])
                p.v("v_cvt_pk_bf16_f32", f[0], a[0], a[1]); p.v("v_cvt_pk_bf16_f32", f[1], a[2], a[3])
                p.v("v_cvt_pk_bf16_f32", f[2], b[0], b[1]); p.v("v_cvt_pk_bf16_f32", f[3], b[2], b[3])
                p.nop(0)
                p.v("v_permlane32_swap_b32", f[0], f[2]); p.v("v_permlane32_swap_b32", f[1], f[3])
                p.nop(0)
                p.v("v_permlane16_swap_b32", f[0], f[2]); p.v("v_permlane16_swap_b32", f[1], f[3])
        o.ST.stamp(p)

    def alloc_attn(self):
        o = self
        o.SS = V(40, 16); o.NEG = V(72, 16); o.L_ = V(104, 16)
        o.PP = V(136, 8); o.ONES = V(144, 4); o.VK = V(148, 4); o.VV = V(2, 8)
        o.vflag, o.vz = V(10), V(11)
    def ts8(self, qb): return (self.SS if qb < 2 else self.L_).sub((qb % 2) * 8, 8)
    def Oacc(self, db, qb): return A((qb * 8 + db) * 4, 4)
    def KF(self, t, kb, ds): return A(128 + (t % 2) * 32 + (kb * 4 + ds) * 4, 4)
    def VF(self, t, db): return A(192 + (t % 2) * 32 + db * 4, 4)
    def qf(self, qb, ds): return self.qacc(2 * ds, qb)
    def k_reads(self, t):
        o = self; out = []
        slot = (t // 2) % 4
        for kb in range(2):
            for ds in range(4):
                q = Seg()
                q.ds_read("ds_read_b128", o.KF(t, kb, ds), o.VK[ds], KRING + slot * 16384 + ((t % 2) * 32 + 16 * kb) * 256,
                          lds=(KRING + slot * 16384, KRING + slot * 16384 + 16384), tags=["k"])
                out.append(q)
        return out
    def v_reads(self, t):
        o = self; out = []
        slot = (t // 2) % 4
        for db in range(8):
            for h in range(2):
                q = Seg()
                q.ds_read("ds_read_b64_tr_b16", o.VF(t, db).sub(2 * h, 2), o.VV[db], slot * 16384 + ((t % 2) * 32 + 16 * h) * 256,
                          lds=(VRING + slot * 16384, VRING + slot * 16384 + 16384), tags=["v"])
                out.append(q)
        return out
    def attn_addr(self, p):
        o = self
        t0, t1, t2 = o.t0, o.t1, o.t2
        p.v("v_and_b32", t0, 15, o.lane)
        p.v("v_lshrrev_b32", t1, 4, o.lane)
        for ds in range(4):
            p.v("v_add_u32", t2, 4 * ds, t1)
            p.v("v_xor_b32", t2, t2, t0)
            p.v("v_lshlrev_b32", t2, 4, t2)
            p.v("v_lshl_add_u32", o.VK[ds], t0, 8, t2)
        for db in range(8): p.v("v_add_u32", o.VV[db], VRING - 40960, o.VWlo[db])
        for r in range(4): p.v("v_mov_b32", o.ONES[r], 0x3F803F80)

    def slot(self, u, qk=True, sm=True, pv=True, first_pv=False, kr=(), vr=(), dma=None, tail=(), extra=None, dma2=None):
        o = self; opt = o.opt
        rs = opt.get("rowsum", "mfma")
        mfq, mfp = Seg(), Seg(); fl = []
        un, up = u + 1, u - 1
        if qk:
            t, qb = un // 4, un % 4
            Sn = o.SS.sub((un % 2) * 8, 8)
            order = [(kb, ds) for kb in range(2) for ds in range(4)]
            if opt.get("qk_alt"): order = [(kb, ds) for ds in range(4) for kb in range(2)]
            for kb, ds in order:
                d = Sn.sub(kb * 4, 4)
                mfq.mfma(d, o.KF(t, kb, ds), o.qf(qb, ds), o.NEG.sub(qb * 4, 4) if ds == 0 else d)
        if pv:
            t, qb = up // 4, up % 4
            Pp = o.PP.sub((up % 2) * 4, 4)
            for db in range(8):
                mfp.mfma(o.Oacc(db, qb), o.VF(t, db), Pp, 0 if first_pv else o.Oacc(db, qb))
            if rs == "mfma":
                mfp.mfma(o.L_.sub(qb * 4, 4), o.ONES, Pp, 0 if first_pv else o.L_.sub(qb * 4, 4))
            if rs == "m4":
                lq = o.L_.sub(qb * 4, 4)
                q4 = Seg()
                q4.mfma4(lq, o.ONES.sub(0, 2), Pp.sub(0, 2), 0 if first_pv else lq)
                q4.mfma4(lq, o.ONES.sub(0, 2), Pp.sub(2, 2), lq)
                mfp.insert(4, q4[0]); mfp.append(q4[1])
        mf = Seg()
        if opt.get("mix") and qk and pv:
            mf.extend(mfq[0:4]); mf.extend(mfp[0:4]); mf.extend(mfq[4:8]); mf.extend(mfp[4:])
        else:
            mf.extend(mfq); mf.extend(mfp)
        n = len(mf)
        lds = list(kr) + list(vr)
        if opt.get("nolds"): lds_ = []
        else: lds_ = lds
        Sc, Pc = o.SS.sub((u % 2) * 8, 8), o.PP.sub((u % 2) * 4, 4)
        def E(i):
            q = Seg()
            if opt.get("noexp"): q.v("v_mov_b32", Sc[i], Sc[i])
            else: q.v("v_exp_f32", Sc[i], Sc[i])
            return list(q)
        def C(i):
            q = Seg(); q.v("v_cvt_pk_bf16_f32", Pc[i], Sc[2 * i], Sc[2 * i + 1]); return list(q)
        def AD(i, first=False):
            q = Seg(); lq = o.L_[(u % 4) * 4 + (i % 2)]
            q.v("v_add_f32", lq, lq, Sc[i]); return list(q)
        if n >= 16 and len(lds) <= 6:
            lds = lds_
            if rs == "valu":
                plan = ["L", "e", "L", "e", "L", "e", "e", "ca", "e", "e", "Da", "e", "e", "cc", "aa", "aa"]
                ei = ci = ai = 0
                plan = ["L", "e", "L", "e", "L", "e", "e", "cc", "e", "e", "D", "e", "e", "cc", "", ""]
                adds = {3: [0], 5: [], 7: [], 8: [], 10: [1, 2], 14: [3, 4, 5], 15: [6, 7]}
                for g in range(16):
                    for k in plan[g]:
                        if k == "L":
                            for _ in range(2):
                                if lds: fl += [(g, i) for i in lds.pop(0)]
                        elif k == "e" and sm: fl += [(g, i) for i in E(ei)]; ei += 1
                        elif k == "c" and sm: fl += [(g, i) for i in C(ci)]; ci += 1
                        elif k == "D" and dma is not None: o.place(fl, dma, g)
                if sm:
                    ap = opt.get("addpos", [2, 4, 7, 9, 14, 14, 15, 15])
                    for i in range(8): fl += [(max(ap[i], {0:1,1:3,2:5,3:6,4:8,5:9,6:11,7:12}[i] + 1), x) for x in AD(i)]
            else:
                plan = {0: "L", 1: "e", 2: "L", 3: "e", 4: "L", 5: "e", 6: "e", 7: "c", 8: "e", 9: "e", 10: "D", 11: "e", 12: "e", 13: "c"}
                if rs == "m4" and n == 18:
                    plan = {0: "L", 1: "e", 2: "L", 3: "e", 4: "L", 5: "e", 6: "e", 7: "c", 8: "e", 9: "e", 10: "D", 11: "e", 13: "e", 14: "c"}
                ei = ci = 0
                for g in range(n):
                    k = plan.get(g)
                    if k == "L":
                        for _ in range(2):
                            if lds: fl += [(g, i) for i in lds.pop(0)]
                    elif k == "e" and sm:
                        fl += [(g, i) for i in E(ei)]; ei += 1
                    elif k == "c" and sm:
                        fl += [(g, i) for i in C(ci) + C(ci + 1)]; ci += 2
                    elif k == "D" and dma is not None:
                        o.place(fl, dma, g)
            g_x = (15, 16) if n == 18 else (14, 15)
            if dma2 is not None: o.place(fl, dma2, g_x[1])
            for gi_, ex in zip(g_x, extra or []): fl += [(gi_, i) for i in ex]
            fl.sort(key=lambda x: x[0])
            fl += [(n - 1, i) for i in tail]
            return weave(mf, fl)
        out = Seg()
        for q in lds: out.extend(q)
        if dma is not None: o.put_now(out, [dma])
        if sm:
            for i in range(8): out.extend(E(i))
            out.nop(0)
            for i in range(4): out.extend(C(i))
            if rs == "valu":
                for i in range(8): out.extend(AD(i))
            out.nop(1)
        out.extend(mf)
        for ex in (extra or []): out.extend(ex)
        out.extend(tail)
        return out

    def prepass_max(self, p, t, first):
        o = self
        for qb in range(4):
            for kb in range(2):
                d = o.ts8(qb).sub(kb * 4, 4)
                for ds in range(4):
                    p.mfma(d, o.KF(t, kb, ds), o.qf(qb, ds), 0 if ds == 0 else d)
        p.nop(7)
        for qb in range(4):
            s8 = o.ts8(qb)
            m = o.NEG[qb * 4]
            p.v("v_max3_f32", s8[0], s8[0], s8[1], s8[2])
            p.v("v_max3_f32", s8[3], s8[3], s8[4], s8[5])
            p.v("v_max3_f32", s8[0], s8[0], s8[6], s8[7])
            if first: p.v("v_max_f32", m, s8[0], s8[3])
            else: p.v("v_max3_f32", m, m, s8[0], s8[3])
    def finish_max(self, p):
        o = self
        for qb in range(4):
            m, t = o.NEG[qb * 4], o.NEG[qb * 4 + 1]
            p.v("v_mov_b32", t, m); p.nop(1)
            p.v("v_permlane32_swap_b32", m, t); p.nop(1)
            p.v("v_max_f32", m, m, t)
            p.v("v_mov_b32", t, m); p.nop(1)
            p.v("v_permlane16_swap_b32", m, t); p.nop(1)
            p.v("v_max_f32", m, m, t)
            p.v("v_sub_f32", m, 0, m)
            for r in range(1, 4): p.v("v_mov_b32", o.NEG[qb * 4 + r], m)

    def loop_slot(self, u, first_pv=False, inloop=False, extra=None, early=False):
        o = self
        j = (u + 5) // 8
        pos = (u + 5) % 8
        tk, ik = (u + 1) // 4 + 1, (u + 1) % 4
        tv, iv = (u - 1) // 4 + 1, (u - 1) % 4
        kr = o.k_reads(tk)[2 * ik: 2 * ik + 2]
        vr = o.v_reads(tv)[4 * iv: 4 * iv + 4]
        dma = o.kv_dma(j + 2)[pos]; dma2 = None
        if early:
            d_ = o.kv_dma(j + 2)
            dma, dma2 = (d_[2 * pos], d_[2 * pos + 1]) if pos < 4 else (None, None)
            if inloop and pos == 3 and j % 4 == 2 and hasattr(o, "w2_touch") and not o.opt.get("now2touch"):
                dma2.extend(o.w2_touch())
        if not early and inloop and pos == 7 and j % 4 == 2 and hasattr(o, "w2_touch") and not o.opt.get("now2touch"):
            dma.extend(o.w2_touch())
        w = Seg()
        if u % 4 in (2, 0): w.wait(lgkm=0)
        if pos == 7:
            w.wait(vm=("tag", f"A{(j + 1) % 4}")); w.barrier()
        s_ = o.slot(u, first_pv=first_pv, kr=kr, vr=vr, dma=dma, tail=list(w), extra=extra, dma2=dma2)
        if inloop == 2 and pos == 7 and j % 4 == 2 and hasattr(o, 'h_signal'): o.h_signal(s_)
        return s_

    FLAG = 159744
    def phase_attn(self, mega=False):
        o = self; nm = o.name
        o.alloc_attn()
        pro = Seg(); p = pro
        o.attn_addr(p)
        p.s("s_mov_b32", o.sredo, 0)
        if mega: p.s("s_mov_b32", o.shflag, 1)
        vflag, vz = o.vflag, o.vz
        p.v("v_mov_b32", vflag, o.FLAG)
        p.v("v_mov_b32", vz, 0)
        p.ds_write("ds_write_b32", vflag, vz, lds=(o.FLAG, o.FLAG + 4))
        p.wait(lgkm=0)
        p.wait(vm=("tag", "A0")); p.barrier()
        for q in o.k_reads(0): p.extend(q)
        p.wait(lgkm=0)
        o.prepass_max(p, 0, True)
        o.finish_max(p)
        mp = Seg(); p = mp
        p.label(nm + "_amain")
        if o.opt.get("rowsum") in ("valu", "none"):
            for r in range(16): p.v("v_mov_b32", o.L_[r], 0.0 if o.opt.get("rowsum") == "valu" else 1.0)
        d2 = o.kv_dma(2)
        vr0, kr1, vr1 = o.v_reads(0), o.k_reads(1), o.v_reads(1)
        hs = o.h_stores() if (mega and o.opt.get("hplan", "gepi") == "attn") else []
        early_ = bool(hs)
        def X(u):
            pos = (u + 5) % 8
            if not (3 <= u <= 34) or pos < 4 or not hs: return None
            return [hs.pop(0) for _ in range(2 if pos == 4 else 1)]
        p.extend(o.slot(-1, qk=True, sm=False, pv=False, kr=kr1[0:2], vr=vr0[0:8], dma=d2[0]))
        o.put_now(p, [d2[1]])
        p.nop(3)
        w = Seg(); w.wait(lgkm=0)
        p.extend(o.slot(0, qk=True, sm=True, pv=False, kr=kr1[2:4], vr=vr0[8:16], dma=d2[2], tail=list(w)))
        o.put_now(p, [d2[3], d2[4]])
        p.extend(o.slot(1, first_pv=True, kr=kr1[4:6], vr=vr1[0:4], dma=d2[5]))
        w = Seg(); w.wait(lgkm=0); w.wait(vm=("tag", "A1")); w.barrier()
        o.put_now(p, [d2[6]])
        p.extend(o.slot(2, first_pv=True, kr=kr1[6:8], vr=vr1[4:8], dma=d2[7], tail=list(w)))
        p.extend(o.loop_slot(3, first_pv=True, early=early_))
        p.extend(o.loop_slot(4, first_pv=True, early=early_))
        base, nit = 5, 8
        if mega and early_:
            for u in range(5, 37): p.extend(o.loop_slot(u, inloop=1, extra=X(u), early=(early_ and u <= 34)))
            base, nit = 37, 7
        assert not hs
        p.s("s_mov_b32", o.sloop, 0)
        b1, b2 = Seg(), Seg()
        b1.label(nm + "_aloop")
        for k in range(32):
            (b1 if k <= 27 else b2).extend(o.loop_slot(base + k, inloop=2))
            if k == 27:
                b1.s("s_cmp_eq_u32", o.sloop, nit - 1)
                b1.branch("s_cbranch_scc1", nm + "_adone")
        b2.s("s_add_u32", o.sloop, o.sloop, 1)
        b2.branch("s_branch", nm + "_aloop")
        chk = Seg(); p = chk
        p.label(nm + "_adone")
        o.ST.stamp(p)
        if mega: o.pre_chk(p)
        p.wait(vm=0, lgkm=0)
        p.nop(7)
        if o.opt.get("rowsum") in ("valu", "m4"):
            for qb in range(4):
                m, t = o.L_[qb * 4], o.L_[qb * 4 + 1]
                if o.opt.get("rowsum") == "valu": p.v("v_add_f32", m, m, t)
                p.v("v_mov_b32", t, m); p.nop(1)
                p.v("v_permlane32_swap_b32", m, t); p.nop(1)
                p.v("v_add_f32", m, m, t)
                p.v("v_mov_b32", t, m); p.nop(1)
                p.v("v_permlane16_swap_b32", m, t); p.nop(1)
                p.v("v_add_f32", m, m, t)
        p.s("s_mov_b32", o.stmp, LTHR)
        p.v("v_mov_b32", vz, 0)
        for qb in range(4):
            p.v("v_cmp_nlt_f32", VCC, o.L_[qb * 4], o.stmp)
            p.nop(1)
            p.v("v_cndmask_b32", vz, vz, 1, VCC) if False else p.v("v_cndmask_b32_e64", vz, vz, 1, VCC)
        p.ds_write("ds_or_b32", vflag, vz, lds=(o.FLAG + 8, o.FLAG + 12))
        p.wait(lgkm=0); p.barrier()
        p.ds_read("ds_read_b32", vz, vflag)
        p.wait(lgkm=0)
        p.v("v_readfirstlane_b32", o.stmp, vz)
        p.nop(3)
        p.s("s_xor_b32", o.stmp2, o.sredo, 1)
        p.s("s_and_b32", o.stmp, o.stmp, o.stmp2)
        p.s("s_cmp_lg_u32", o.stmp, 0)
        p.branch("s_cbranch_scc1", nm + "_afall")
        epi = Seg(); p = epi
        if mega: p = Seg()
        RL = V(24, 4); T = V(32, 64)
        for qb in range(4): p.v("v_rcp_f32", RL[qb], o.L_[qb * 4])
        VO = V(28, 4)
        for qb in range(4): p.v("v_add_u32", VO[qb], qb * 128 * 1024, o.V16)
        k = 0
        for qb in range(4):
            for s_ in range(4):
                t = T.sub((k % 4) * 16, 16); k += 1
                a, b = o.Oacc(2 * s_, qb), o.Oacc(2 * s_ + 1, qb)
                for r in range(4): p.acc_read(t[r], a[r])
                for r in range(4): p.acc_read(t[4 + r], b[r])
                for r in range(8): p.v("v_mul_f32", t[r], t[r], RL[qb])
                for r in range(4): p.v("v_cvt_pk_bf16_f32", t[8 + r], t[2 * r], t[2 * r + 1])
                p.buf_store(t.sub(8, 4), VO[qb], o.sO, o.sob, 1024 * s_)
        if o.ST.on and not mega:
            o.ST.stamp(p); p.wait(vm=0); o.ST.stamp(p); o.ST.dump(p, o.pws, o.sw)
        p.endpgm()
        fb = Seg(); p = fb
        p.label(nm + "_afall")
        p.s("s_mov_b32", o.sredo, 1)
        for qb in range(4): p.v("v_mov_b32", o.NEG[qb * 4], 0xFF800000)
        p.s("s_mov_b32", o.skvoff, 0)
        p.s("s_mov_b32", o.sloop, 0)
        fl_ = Seg(); p = fl_
        p.label(nm + "_afloop")
        for i in range(4):
            p.s("s_add_u32", M0, o.sm1, KRING + 4096 * i); p.nop(0)
            p.buf_dma(o.VKd, o.sK, o.skvoff, 0, lds=(KRING, KRING + 16384))
            p.s("s_add_u32", o.skvoff, o.skvoff, 4096)
        p.wait(vm=0); p.barrier()
        for tt in range(2):
            for q in o.k_reads(tt): p.extend(q)
            p.wait(lgkm=0)
            o.prepass_max(p, tt, False)
        p.barrier()
        p.s("s_add_u32", o.sloop, o.sloop, 1)
        p.s("s_cmp_lt_u32", o.sloop, 32)
        p.branch("s_cbranch_scc1", nm + "_afloop")
        f2 = Seg(); p = f2
        o.finish_max(p)
        p.s("s_mov_b32", o.skvoff, 0)
        o.put_now(p, o.kv_dma(0)); o.put_now(p, o.kv_dma(1))
        p.wait(vm=("tag", "A0")); p.barrier()
        for q in o.k_reads(0): p.extend(q)
        p.wait(lgkm=0)
        p.branch("s_branch", nm + "_amain")
        return dict(pro=pro, mp=mp, b1=b1, b2=b2, chk=chk, epi=epi, fb=fb, fl=fl_, f2=f2)

def gen_main(name="main_kernel", stamps=False, opt=None):
    k = K1(name, stamps, opt)
    a = Seg()
    k.setup(a); k.phase_g(a); k.phase_q(a)
    d = k.phase_attn()
    end = Seg(); end.label(name + "_end"); end.endpgm()
    head = list(a) + list(d["pro"]) + list(d["mp"])
    loop = list(d["b1"]) + list(d["b2"])
    t1 = head + loop + loop + list(d["b1"]) + list(d["chk"]) + list(d["epi"])
    t2 = head + loop + list(d["b1"]) + list(d["chk"]) + list(d["fb"]) + list(d["fl"]) * 2 + list(d["f2"]) + list(d["mp"]) + loop + list(d["b1"]) + list(d["chk"]) + list(d["epi"])
    resolve_waits(t1 + t2)
    if not (opt or {}).get("nocheck"):
        check(t1, name + ":normal"); check(t2, name + ":fallback")
    return kernel_text(name, render([a, d["pro"], d["mp"], d["b1"], d["b2"], d["chk"], d["epi"], d["fb"], d["fl"], d["f2"], end]),
                       vgpr=512, accum=256, sgpr=100)

if __name__ == "__main__":
    t = gen_main(); print(len(t), t.count("\n"))
```

```python
from common import *
from k_gemm2 import lane_tr_addr, dma288_voffs
import k_main
from k_main import K1, GR, GREG, QR, QSZ, KRING, VRING, QSCALE, LTHR

REG2 = 36864
KS = 131072
C_XN, C_H, C_O, C_PART = 0, 1, 2, 3
SPIN_MAX = 1 << 18

class Mega(K1):
    def __init__(self, name, stamps=False, opt=None):
        super().__init__(name, stamps, opt)
        self.px, self.pwo, self.pwd, self.pout, self.pdbg = S(62, 2), S(64, 2), S(66, 2), S(68, 2), S(70, 2)
        self.sDbg = S(72, 4)
        self.sX = S(76, 4)
        self.sW2, self.sB2, self.sPart = S(16, 4), S(20, 4), S(32, 4)
        self.sOut = S(80, 4)
        self.ssig, self.sP2, self.sN = S(84), S(85), S(86)
        self.swoff, self.sboff, self.spart = S(87), S(88), S(89)
        self.scnt = S(90)
        self.stoff = S(47)
        self.shflag = S(60)
        self.sHS = [S(92), S(93), S(94), S(95), S(59)]
        self.lab = 0
        self.SC = self.opt.get("sc", "sc1")
        self.SCS = self.opt.get("scs", self.SC)

    def L(self, s):
        self.lab += 1
        return f"{self.name}_{s}{self.lab}"

    def raw(self, p, text):
        p.add(Ins(text, "other"))
    def signal(self, p, sP, slot, vt, inc=1):
        o = self; skip = o.L("sig")
        p.s("s_cmp_lg_u32", o.sw, 0)
        p.branch("s_cbranch_scc1", skip)
        p.s("s_lshl_b32", o.scnt, sP, 3)
        p.s("s_add_u32", o.scnt, o.scnt, slot)
        p.s("s_lshl_b32", o.scnt, o.scnt, 2)
        o.raw(p, f"v_mov_b32 {vt[0]}, {o.scnt}")
        o.raw(p, f"v_mov_b32 {vt[1]}, {inc}")
        o.raw(p, "s_mov_b64 exec, 1")
        o.raw(p, f"buffer_atomic_add {vt[1]}, {vt[0]}, {o.sDbg}, 0 offen sc1")
        o.raw(p, "s_mov_b64 exec, -1")
        p.label(skip)
    def await_o(self, p, vt):
        o = self
        p.s("s_lshl_b32", o.stmp2, o.ssig, 3)
        o.await_(p, o.sP2, C_O, 8, vt, field=o.stmp2)
    def await_(self, p, sP, slot, target, vt, field=None):
        o = self; loop, done = o.L("poll"), o.L("got")
        p.s("s_cmp_lg_u32", o.sw, 0)
        p.branch("s_cbranch_scc1", done)
        p.s("s_lshl_b32", o.scnt, sP, 3)
        p.s("s_add_u32", o.scnt, o.scnt, slot)
        p.s("s_lshl_b32", o.scnt, o.scnt, 2)
        o.raw(p, f"v_mov_b32 {vt[0]}, {o.scnt}")
        o.raw(p, f"s_mov_b32 {o.scnt}, {SPIN_MAX}")
        p.label(loop)
        o.raw(p, f"buffer_load_dword {vt[1]}, {vt[0]}, {o.sDbg}, 0 offen sc1")
        o.raw(p, "s_waitcnt vmcnt(0)")
        o.raw(p, f"v_readfirstlane_b32 {o.stmp}, {vt[1]}")
        o.raw(p, "s_nop 3")
        if field is not None:
            o.raw(p, f"s_lshr_b32 {o.stmp}, {o.stmp}, {field}")
            o.raw(p, f"s_and_b32 {o.stmp}, {o.stmp}, 0xff")
        o.raw(p, f"s_cmp_ge_u32 {o.stmp}, {target}")
        o.raw(p, f"s_cbranch_scc1 {done}")
        o.raw(p, "s_sleep 1")
        o.raw(p, f"s_sub_u32 {o.scnt}, {o.scnt}, 1")
        o.raw(p, f"s_cmp_lg_u32 {o.scnt}, 0")
        o.raw(p, f"s_cbranch_scc1 {loop}")
        p.label(done)
        p.barrier()

    def setup(self, p):
        o = self
        guard(p, 256, o.name + "_end")
        if o.ST.on:
            p.add(Ins("s_memrealtime s[100:101]", "other"))
        for r, k in ((o.px, "x"), (o.pws, "ws"), (o.pwg, "wg"), (o.pwu, "wu"), (o.pwq, "wq"), (o.pdbg, "dbg"), (o.pk, "k"), (o.pv, "v"),
                     (o.pwo, "wo"), (o.pwd, "wd"), (o.pout, "out")):
            p.s_load(r, S(0, 2), KA[k])
        wave_id(p, o.sw, o.lane)
        p.v("v_and_b32", o.lane, 63, V(0))
        o.ST.stamp(p)
        if o.ST.on:
            p.add(Ins("v_writelane_b32 v0, s100, 63", "other"))
        p.s("s_and_b32", o.stmp, S(2), 7)
        p.s("s_lshl_b32", o.stmp, o.stmp, 2)
        p.s("s_bfe_u32", o.stmp2, S(2), 0x20003)
        p.s("s_add_u32", o.shead, o.stmp, o.stmp2)
        p.s("s_lshr_b32", o.sP, S(2), 5)
        p.s("s_mul_i32", o.sm9, o.sw, 9216)
        p.s("s_lshl_b32", o.sm1, o.sw, 10)
        p.wait(lgkm=0)
        make_srd(p, o.sX, o.px, SZ["x"])
        make_srd(p, o.sXN, o.pws, SZ_XN, add=WS_XN)
        make_srd(p, o.sDbg, o.pdbg, 256)
        RAW = V(24, 20)
        va, vs = V(44), V(45)
        o.ln_issue(p, RAW, va, vs)
        p.v("v_lshlrev_b32", o.V16, 4, o.lane)
        p.s("s_cmp_lt_u32", o.sw, 2)
        p.s("s_cselect_b32", o.sGU[0], o.pwg[0], o.pwu[0])
        p.s("s_cselect_b32", o.sGU[1], o.pwg[1], o.pwu[1])
        p.s("s_mov_b32", o.sGU[2], SZ["wg"])
        p.s("s_mov_b32", o.sGU[3], 0x20000)
        p.s("s_and_b32", o.stmp, o.sw, 1)
        p.s("s_mul_i32", o.sgoff, o.stmp, 32 * 9216)
        p.s("s_mul_i32", o.stmp, o.shead, 288)
        p.s("s_add_u32", o.sgoff, o.sgoff, o.stmp)
        dma288_voffs(p, o.VD, o.lane, o.t0, o.t1, o.t2, 9216, o.stmp)
        early = o.opt.get("g0early", 0)
        if early: o.put_now(p, o.g_dma(0))
        make_srd(p, o.sWq, o.pwq, SZ["wq"])
        lane_tr_addr(p, o.VA[0], o.lane, o.t0, o.t1, 288)
        p.v("v_add_u32", o.VA[1], GR[1], o.VA[0])
        p.v("v_add_u32", o.VA[2], GR[2], o.VA[0])
        for ks in range(3):
            p.v("v_add_u32", o.VX[ks], ks * KS, o.V16)
        p.s("s_lshl_b32", o.stmp, o.sP, 4)
        p.s("s_lshl_b32", o.stmp2, o.sw, 2)
        p.s("s_add_u32", o.stmp, o.stmp, o.stmp2)
        p.s("s_lshl_b32", o.sxoff, o.stmp, 10)
        p.s("s_mov_b32", o.shb, o.sxoff)
        p.s("s_mov_b32", o.sob, o.sxoff)
        o.setup_late(p)
        lnskip2 = o.L("lnskip")
        p.s("s_cmp_ge_u32", S(2), 128)
        p.branch("s_cbranch_scc1", lnskip2)
        ln = Seg()
        o.ln_compute(ln, RAW, vs)
        p.extend(ln)
        o.raw(p, "s_waitcnt vmcnt(0)")
        p.barrier()
        p.s("s_lshr_b32", o.stmp2, S(2), 4)
        o.signal(p, o.stmp2, C_XN, (V(46), V(47)))
        p.label(lnskip2)
        o.ST.stamp(p)
        if not early: o.put_now(p, o.g_dma(0))
        o.put_now(p, o.g_dma(1))
        o.await_(p, o.sP, C_XN, 16, (V(46), V(47)))
        o.ST.stamp(p)

    def ln_issue(self, p, RAW, va, vs):
        o = self; t0, t1, t2 = o.t0, o.t1, o.t2
        p.v("v_lshrrev_b32", t0, 4, o.lane)
        p.s("s_lshl_b32", o.stmp2, o.sw, 2)
        p.v("v_add_u32", t0, o.stmp2, t0)
        p.v("v_and_b32", t1, 3, o.lane)
        p.v("v_bfe_u32", t2, o.lane, 2, 2)
        p.v("v_mul_u32_u24", va, 1152, t0)
        p.v("v_lshl_add_u32", va, t1, 3, va)
        p.v("v_lshl_add_u32", va, t2, 6, va)
        vb = V(48); xf = o.opt.get("xflags", "")
        p.v("v_cmp_gt_u32", VCC, 2, t2)
        p.v("v_mov_b32", V(49), 0x7FFF0000)
        p.nop(0)
        p.v("v_cndmask_b32", vb, V(49), va, VCC)
        skip = o.L("lnskip")
        p.s("s_cmp_ge_u32", S(2), 128)
        p.branch("s_cbranch_scc1", skip)
        p.s("s_mul_i32", o.stmp, S(2), 16 * 1152)
        for i in range(4):
            p.buf_load(RAW.sub(4 * i, 2), va, o.sX, o.stmp, 256 * i, flags=xf, tags=["ln"])
            p.buf_load(RAW.sub(4 * i + 2, 2), va, o.sX, o.stmp, 256 * i + 32, flags=xf, tags=["ln"])
        p.buf_load(RAW.sub(16, 2), vb, o.sX, o.stmp, 1024, flags=xf, tags=["ln"])
        p.buf_load(RAW.sub(18, 2), vb, o.sX, o.stmp, 1056, flags=xf, tags=["ln"])
        p.label(skip)
        p.v("v_lshlrev_b32", vs, 17, t2)
        p.v("v_lshl_add_u32", vs, t0, 4, vs)
        p.v("v_lshl_add_u32", vs, t1, 8, vs)
        p.v("v_cndmask_b32", V(50), V(49), vs, VCC)
        p.v("v_cndmask_b32_e64", V(52), 0, 1.0, VCC)
        p.v("v_mov_b32", V(53), V(52))

    def ln_compute(self, p, RAW, vs):
        o = self
        F = V(56, 40); ACC = V(96, 4); M = V(100, 2); O_ = V(104, 20)
        smask = o.stmp
        p.s("s_mov_b32", smask, 0xFFFF0000)
        p.wait(vm=("tag", "ln"))
        for d in range(20):
            p.v("v_lshlrev_b32", F[2 * d], 16, RAW[d])
            p.v("v_and_b32", F[2 * d + 1], smask, RAW[d])
        def pk(op, d, a, b, c=None, mods=""):
            if c is None: p.v(op, d, a, b, mods=mods)
            else: p.v(op, d, a, b, c, mods=mods)
        pk("v_pk_add_f32", ACC.sub(0, 2), F.sub(0, 2), F.sub(2, 2))
        pk("v_pk_add_f32", ACC.sub(2, 2), F.sub(4, 2), F.sub(6, 2))
        for d in range(4, 20):
            a = ACC.sub(2 * (d % 2), 2)
            pk("v_pk_add_f32", a, a, F.sub(2 * d, 2))
        pk("v_pk_add_f32", ACC.sub(0, 2), ACC.sub(0, 2), ACC.sub(2, 2))
        p.nop(0)
        p.v("v_add_f32", ACC[0], ACC[0], ACC[1])
        def rowreduce(x):
            for sh in (8, 4, 2, 1):
                p.nop(1)
                p.v("v_add_f32_dpp", x, x, x, mods=f"row_ror:{sh} row_mask:0xf bank_mask:0xf")
        rowreduce(ACC[0])
        p.v("v_mul_f32", M[0], -1.0 / 576.0, ACC[0])
        p.v("v_mov_b32", M[1], M[0])
        p.nop(0)
        for d in range(20):
            pk("v_pk_add_f32", F.sub(2 * d, 2), F.sub(2 * d, 2), M)
        for d in range(16, 20):
            pk("v_pk_mul_f32", F.sub(2 * d, 2), F.sub(2 * d, 2), V(52, 2))
        pk("v_pk_mul_f32", ACC.sub(0, 2), F.sub(0, 2), F.sub(0, 2))
        pk("v_pk_mul_f32", ACC.sub(2, 2), F.sub(2, 2), F.sub(2, 2))
        for d in range(2, 20):
            a = ACC.sub(2 * (d % 2), 2)
            pk("v_pk_fma_f32", a, F.sub(2 * d, 2), F.sub(2 * d, 2), a)
        pk("v_pk_add_f32", ACC.sub(0, 2), ACC.sub(0, 2), ACC.sub(2, 2))
        p.nop(0)
        p.v("v_add_f32", ACC[0], ACC[0], ACC[1])
        rowreduce(ACC[0])
        p.v("v_mov_b32", ACC[1], 1e-5)
        p.v("v_fmac_f32", ACC[1], 1.0 / 576.0, ACC[0])
        p.v("v_sqrt_f32", ACC[2], ACC[1])
        p.nop(0)
        p.v("v_rcp_f32", M[0], ACC[2])
        p.nop(0)
        p.v("v_mov_b32", M[1], M[0])
        p.nop(0)
        for d in range(20):
            pk("v_pk_mul_f32", F.sub(2 * d, 2), F.sub(2 * d, 2), M)
        for d in range(20):
            p.v("v_cvt_pk_bf16_f32", O_[d], F[2 * d], F[2 * d + 1])
        p.s("s_lshl_b32", o.stmp, S(2), 10)
        for i in range(5):
            p.buf_store(O_.sub(4 * i, 4), vs if i < 4 else V(50), o.sXN, o.stmp, 0, flags=o.SC)
            if i < 4: p.s("s_add_u32", o.stmp, o.stmp, 4 * KS)

    def touch_weights(self, p):
        o = self; t0, t1, t2 = o.t0, o.t1, o.t2
        J = V(54)
        fl = o.opt.get("tflags", "")
        p.v("v_and_b32", t1, 3, o.lane)
        p.v("v_lshlrev_b32", t1, 7, t1)
        p.v("v_min_u32", t1, 284, t1)
        p.s("s_mul_i32", o.stmp, o.sP, 72)
        p.s("s_and_b32", o.stmp2, o.sw, 1)
        p.s("s_mul_i32", o.stmp2, o.stmp2, 36)
        p.s("s_add_u32", o.stmp, o.stmp, o.stmp2)
        p.s("s_mul_i32", o.stmp, o.stmp, 9216)
        p.s("s_mul_i32", o.stmp2, o.shead, 288)
        p.s("s_add_u32", o.stmp, o.stmp, o.stmp2)
        for i in range(3):
            p.v("v_lshrrev_b32", t0, 2, o.lane)
            p.v("v_add_u32", t0, 16 * i, t0)
            p.v("v_min_u32", t0, 35, t0)
            p.v("v_mul_u32_u24", t0, 9216, t0)
            p.v("v_add_u32", t2, t0, t1)
            p.buf_load(A(192 + i), t2, o.sGU, o.stmp, 0, flags=fl, tags=["touch"])
        p.v("v_lshrrev_b32", t0, 1, o.lane)
        p.v("v_min_u32", t0, 17, t0)
        p.v("v_lshlrev_b32", t0, 13, t0)
        p.v("v_and_b32", t1, 1, o.lane)
        p.v("v_lshl_add_u32", t2, t1, 7, t0)
        p.s("s_mul_i32", o.stmp, o.sP, 72)
        p.s("s_mul_i32", o.stmp2, o.sw, 18)
        p.s("s_add_u32", o.stmp, o.stmp, o.stmp2)
        p.s("s_lshl_b32", o.stmp, o.stmp, 13)
        p.s("s_lshl_b32", o.stmp2, o.shead, 8)
        p.s("s_add_u32", o.stmp, o.stmp, o.stmp2)
        p.buf_load(A(195), t2, o.sWq, o.stmp, 0, flags=fl, tags=["touch"])

    def setup_late(self, p):
        o = self
        make_srd(p, o.sH, o.pws, SZ_H, add=WS_H)
        make_srd(p, o.sO, o.pws, SZ_O, add=WS_O)
        p.s("s_lshr_b32", o.stmp, o.shead, 1)
        p.s("s_lshl_b32", o.stmp, o.stmp, 19)
        make_srd(p, o.sK, o.pk, 524288, add=o.stmp)
        make_srd(p, o.sV, o.pv, 524288, add=o.stmp)
        t0, t1, t2 = o.t0, o.t1, o.t2
        p.v("v_lshrrev_b32", t0, 4, o.lane)
        p.s("s_lshl_b32", o.stmp, o.sw, 2)
        p.v("v_add_u32", t0, o.stmp, t0)
        p.v("v_and_b32", t1, 7, t0)
        p.v("v_lshlrev_b32", t1, 1, t1)
        p.v("v_and_b32", t2, 15, o.lane)
        p.v("v_xor_b32", t1, t1, t2)
        p.v("v_lshlrev_b32", t1, 4, t1)
        p.v("v_lshl_add_u32", o.VWd, t0, 13, t1)
        p.s("s_lshl_b32", o.sqoff, o.shead, 8)
        p.s("s_lshl_b32", o.stmp, o.shead, 19)
        p.s("s_add_u32", o.sob, o.sob, o.stmp)
        p.s("s_and_b32", o.ssig, S(2), 7)
        p.s("s_lshr_b32", o.sP2, S(2), 5)
        p.s("s_bfe_u32", o.sN, S(2), 0x20003)

    def x_loads(self, dst, nks, tag, rewind=None):
        o = self; out = []
        for ks in range(nks):
            for pb in range(4):
                q = Seg()
                q.buf_load(dst(pb, ks), o.VX[ks], o.sXN, o.sxoff, 1024 * pb, flags=o.SC, tags=[tag])
                out.append(q)
        out[-1].s("s_add_u32", o.sxoff, o.sxoff, KS * nks)
        return out

    def touch_kv(self):
        o = self; out = []
        q = Seg()
        vt = V(248)
        q.s("s_and_b32", o.stmp, o.shead, 1)
        q.s("s_lshl_b32", o.stmp, o.stmp, 3)
        q.s("s_add_u32", o.stmp, o.stmp, o.sP)
        q.s("s_lshl_b32", o.stmp, o.stmp, 2)
        q.s("s_add_u32", o.stmp, o.stmp, o.sw)
        q.s("s_lshl_b32", o.stmp2, o.stmp, 13)
        q.v("v_lshlrev_b32", vt, 7, o.lane)
        out.append(q)
        q = Seg(); q.buf_load(V(249), vt, o.sK, o.stmp2, 0, flags=o.opt.get("tflags", ""), tags=["touch"]); out.append(q)
        q = Seg(); q.buf_load(V(250), vt, o.sV, o.stmp2, 0, flags=o.opt.get("tflags", ""), tags=["touch"]); out.append(q)
        return out

    def phase_g(self, p):
        o = self
        xl = lambda c: o.x_loads(lambda pb, ks: o.gx(c, pb, ks), 2, f"G{c}")
        o.put_now(p, xl(0)); o.put_now(p, xl(1))
        if o.opt.get("wtouch"): o.touch_weights(p)
        p.wait(vm=("tag", "G0")); p.barrier()
        o.ST.stamp(p)
        for q in o.g_reads(0, 0, 0): p.extend(q)
        p.wait(lgkm=0)
        gi = 0
        for c in range(9):
            if c + 2 < 9:
                dq, xq = o.g_dma(c + 2), xl(c + 2)
            elif c == 7:
                dq = o.q_dma(0)
                q = Seg(); q.s("s_sub_u32", o.sxoff, o.sxoff, 18 * KS)
                xq = [q]
            else:
                dq, xq = o.q_dma(1), o.x_loads(lambda pb, ks: o.qx(0, pb, ks), 3, "Q0")
            if c == 2 and o.opt.get("kvtouch"):
                xq = xq + [None] * 0
                tq = o.touch_kv()
            else:
                tq = []
            for fb in range(9):
                s_ = gi % 2
                mf = Seg()
                for m in range(2):
                    for pb in range(4):
                        for ks in range(2):
                            cin = 0 if (c == 0 and ks == 0) else o.gacc(fb, m, pb)
                            mf.mfma(o.gacc(fb, m, pb), o.gaf(s_, m, ks), o.gx(c, pb, ks), cin)
                fl = []
                last = (c == 8 and fb == 8)
                g0 = 0
                if fb == 8 and not last:
                    q = Seg(); q.wait(vm=("tag", f"G{c+1}")); q.barrier()
                    fl += [(0, i) for i in q]; g0 = 1
                if not last:
                    nx = (c, fb + 1) if fb < 8 else (c + 1, 0)
                    for k, q in enumerate(o.g_reads(nx[0], nx[1], 1 - s_)):
                        fl += [(g0 + k // 2, i) for i in q]
                if dq: o.place(fl, dq.pop(0), 7)
                if xq: o.place(fl, xq.pop(0), 10)
                if c == 8 and xq: o.place(fl, xq.pop(0), 13)
                if tq and fb >= 2:
                    q = tq.pop(0)
                    if len(q) > 1:
                        fl += [(12 + min(k // 2, 3), i) for k, i in enumerate(q)]
                    else: o.place(fl, q, 13)
                if not last:
                    q = Seg(); q.wait(lgkm=0); fl += [(15, i) for i in q]
                fl.sort(key=lambda x: x[0])
                p.extend(weave(mf, fl)); gi += 1
            assert not dq and not xq and not tq, (c, len(dq), len(xq))
        o.ST.stamp(p)
        o.put_now(p, o.x_loads(lambda pb, ks: o.qx(1, pb, ks), 3, "Q1"))
        vh = None
        p.s("s_mul_i32", o.stmp2, o.shead, 9)
        p.s("s_lshr_b32", o.stmp2, o.stmp2, 1)
        p.s("s_lshl_b32", o.stmp2, o.stmp2, 17)
        p.s("s_add_u32", o.shb, o.shb, o.stmp2)
        odd, join = o.L("godd"), o.L("gjoin")
        p.s("s_bitcmp1_b32", o.shead, 0)
        p.branch("s_cbranch_scc1", odd)
        ev, od = Seg(), Seg()
        o.g_epilogue(ev, 0, vh); ev.branch("s_branch", join)
        od.label(odd); o.g_epilogue(od, 1, vh); od.label(join)
        o.alt = (ev, od)
        return ev, od

    def hq(self, i): return V(152 + 4 * i, 4)
    def g_epilogue(self, p, par, vh):
        o = self
        T = V(248, 8)
        def hblock(fb, pb, dst):
            g, u = o.gacc(fb, 0, pb), o.gacc(fb, 1, pb)
            if fb >= 7:
                gg, uu = T.sub(0, 4), T.sub(4, 4)
                for r in range(4): p.acc_read(gg[r], g[r])
                for r in range(4): p.acc_read(uu[r], u[r])
                g, u = gg, uu
            for r in range(4): p.v("v_max_f32", g[r], 0, g[r])
            p.v("v_pk_mul_f32", g.sub(0, 2), g.sub(0, 2), u.sub(0, 2))
            p.v("v_pk_mul_f32", g.sub(2, 2), g.sub(2, 2), u.sub(2, 2))
            p.v("v_cvt_pk_bf16_f32", dst[0], g[0], g[1])
            p.v("v_cvt_pk_bf16_f32", dst[1], g[2], g[3])
        A_, B_, C_, D_ = 0, 4, 8, 12
        if par == 0:
            plan = [(4, B_, 0), (5, B_, 2), (0, A_, 0), (1, A_, 2), (2, C_, 0), (3, C_, 2), (6, D_, 0), (7, D_, 2), (8, None, 0)]
            delta = {A_: 0, C_: KS, B_: 2 * KS, D_: 3 * KS, "S": 4 * KS}
        else:
            plan = [(4, B_, 2), (3, B_, 0), (5, D_, 0), (6, D_, 2), (1, A_, 0), (2, A_, 2), (7, C_, 0), (8, C_, 2), (0, None, 0)]
            delta = {A_: KS, B_: 2 * KS, D_: 3 * KS, C_: 4 * KS, "S": 8}
        for fb, slot, half in plan:
            for pb in range(4):
                dst = o.hq(slot + pb).sub(half, 2) if slot is not None else V(216 + 2 * pb, 2)
                hblock(fb, pb, dst)
        for k, key in enumerate((A_, B_, C_, D_, "S")):
            p.s("s_add_u32", o.sHS[k], o.shb, delta[key])
    def h_block(self, p, cls):
        o = self; skip = o.L("hblk")
        p.s("s_bitcmp1_b32", S(2), 3)
        br = p.branch("s_cbranch_scc1" if cls == 0 else "s_cbranch_scc0", skip)
        blk = Seg()
        for q in o.h_stores(): blk.extend(q)
        for i in blk: i.meta = i.meta; i.tags = set(i.tags) | {f"cls{cls}"}
        p.extend(blk)
        p.label(skip)
    def after_q_main(self, p):
        if self.opt.get("hplan") == "split2": self.h_block(p, 1)
    def h_stores(self):
        o = self; out = []
        for k, slot in enumerate((0, 4, 8, 12)):
            for pb in range(4):
                q = Seg(); q.buf_store(o.hq(slot + pb), o.V16, o.sH, o.sHS[k], 1024 * pb, flags=o.SCS, tags=["hst"]); out.append(q)
        for pb in range(4):
            q = Seg(); q.buf_store(V(216 + 2 * pb, 2), o.V16, o.sH, o.sHS[4], 1024 * pb, flags=o.SCS, tags=["hst"]); out.append(q)
        return out

    def alloc_g2(self):
        o = self
        o.VD2, o.VA2, o.VB2 = V(242, 9), V(208, 4), V(212, 4)
        o.ACC2, o.AF2 = V(32, 144), V(176, 32)
    def g2_addr(self, p):
        o = self
        dma288_voffs(p, o.VD2, o.lane, o.t0, o.t1, o.t2, 1152, o.stmp)
    def g2_addr2(self, p):
        o = self
        lane_tr_addr(p, o.VA2[0], o.lane, o.t0, o.t1, 288)
        for r in range(1, 4): p.v("v_add_u32", o.VA2[r], r * REG2, o.VA2[0])
    def bf2(self, c, pb, ks): return A(((2 + c % 4) * 64) % 256 + (pb * 4 + ks) * 4, 4)
    def rng2(self, c): return ((c % 4) * REG2, (c % 4) * REG2 + REG2)
    def g2_dma(self, c):
        o = self; out = []
        for j in range(9):
            q = Seg()
            q.s("s_add_u32", M0, o.sm9, (c % 4) * REG2 + 1024 * j)
            q.buf_dma(o.VD2[j], o.sW2, o.swoff, 0, flags=o.opt.get("w2flags", ""), tags=[f"c{c}"], lds=o.rng2(c))
            if j == 8: q.s("s_add_u32", o.swoff, o.swoff, 128 * 1152)
            out.append(q)
        return out
    def g2_b(self, c):
        o = self; out = []
        for ks in range(4):
            for pb in range(4):
                q = Seg(); q.buf_load(o.bf2(c, pb, ks), o.VB2[ks], o.sB2, o.sboff, 1024 * pb, flags=o.opt.get("bflags", o.SC), tags=[f"c{c}", f"b{c}"]); out.append(q)
        out[-1].s("s_add_u32", o.sboff, o.sboff, 4 * KS)
        return out
    def g2_reads(self, c, nb, s_):
        o = self; out = []
        for ks in range(4):
            for h in range(2):
                q = Seg()
                q.ds_read("ds_read_b64_tr_b16", o.AF2.sub(s_ * 16 + ks * 4 + 2 * h, 2), o.VA2[c % 4], (32 * ks + 16 * h) * 288 + 32 * nb,
                          lds=o.rng2(c), tags=["a"])
                out.append(q)
        return out
    def w2_srd(self, p):
        o = self
        p.s("s_and_b32", o.stmp, o.ssig, 3)
        p.s("s_mov_b32", o.stmp2, 1152 * 1152)
        p.s("s_cmp_lt_u32", o.ssig, 4)
        p.s("s_cselect_b32", o.stmp2, 1024 * 1152, o.stmp2)
        p.s("s_mul_i32", o.stmp, o.stmp, o.stmp2)
        p.s("s_cselect_b32", o.sW2[0], o.pwo[0], o.pwd[0])
        p.s("s_cselect_b32", o.sW2[1], o.pwo[1], o.pwd[1])
        p.s("s_add_u32", o.sW2[0], o.sW2[0], o.stmp)
        p.s("s_addc_u32", o.sW2[1], o.sW2[1], 0)
        p.s("s_mov_b32", o.sW2[2], o.stmp2)
        p.s("s_mov_b32", o.sW2[3], 0x20000)
        o.sw2t, o.VW2T = S(91), V(251)
        p.s("s_lshr_b32", o.stmp, S(2), 3)
        p.s("s_lshl_b32", o.stmp, o.stmp, 2)
        p.s("s_add_u32", o.stmp, o.stmp, o.sw)
        nl = o.opt.get("w2lines", 16)
        p.s("s_mul_i32", o.sw2t, o.stmp, nl * 128)
        p.v("v_min_u32", o.VW2T, nl - 1, o.lane)
        p.v("v_lshlrev_b32", o.VW2T, 7, o.VW2T)
    def w2_touch(self):
        o = self
        q = Seg()
        q.buf_load(V(252), o.VW2T, o.sW2, o.sw2t, 0, flags=o.opt.get("w2tflags", ""), tags=["touch"])
        q.s("s_add_u32", o.sw2t, o.sw2t, o.opt.get("w2lines", 16) * 128 * 128)
        return q

    def g2_setup(self, p, mode):
        o = self
        if mode == "s":
            make_srd(p, o.sB2, o.pws, SZ_O, add=WS_O)
            p.s("s_mul_i32", o.sboff, o.ssig, 32 * KS)
        else:
            make_srd(p, o.sB2, o.pws, SZ_H, add=WS_H)
            p.s("s_sub_u32", o.stmp, o.ssig, 4)
            p.s("s_mul_i32", o.sboff, o.stmp, 36 * KS)
        p.s("s_mov_b32", o.stoff, o.sboff)
        p.s("s_mul_i32", o.swoff, o.sw, 32 * 1152)
        p.s("s_mul_i32", o.stmp, o.sN, 288)
        p.s("s_add_u32", o.swoff, o.swoff, o.stmp)
        p.s("s_lshl_b32", o.stmp, o.sP2, 4)
        p.s("s_lshl_b32", o.stmp2, o.sw, 2)
        p.s("s_add_u32", o.stmp, o.stmp, o.stmp2)
        p.s("s_lshl_b32", o.stmp, o.stmp, 10)
        p.s("s_add_u32", o.sboff, o.sboff, o.stmp)
        for ks in range(4):
            p.v("v_add_u32", o.VB2[ks], ks * KS, o.V16)
        make_srd(p, o.sPart, o.pws, SZ_P, add=WS_P)
        p.s("s_lshl_b32", o.stmp, o.ssig, 5)
        p.s("s_lshl_b32", o.stmp2, o.sP2, 2)
        p.s("s_add_u32", o.stmp, o.stmp, o.stmp2)
        p.s("s_add_u32", o.stmp, o.stmp, o.sw)
        p.s("s_lshl_b32", o.stmp, o.stmp, 2)
        p.s("s_add_u32", o.stmp, o.stmp, o.sN)
        p.s("s_mul_i32", o.spart, o.stmp, 18432)

    def attn_epilogue(self, p):
        o = self
        RL = V(24, 4); T = V(32, 64); VO = V(28, 4)
        for qb in range(4): p.v("v_rcp_f32", RL[qb], o.L_[qb * 4])
        for s_ in range(4): p.v("v_add_u32", VO[s_], s_ * KS, o.V16)
        k = 0
        RP = V(96, 2)
        for qb in range(4):
            p.v("v_mov_b32", RP[0], RL[qb]); p.v("v_mov_b32", RP[1], RL[qb])
            for s_ in range(4):
                t = T.sub((k % 4) * 16, 16); k += 1
                a, b = o.Oacc(2 * s_, qb), o.Oacc(2 * s_ + 1, qb)
                for r in range(4): p.acc_read(t[r], a[r])
                for r in range(4): p.acc_read(t[4 + r], b[r])
                for r in range(4): p.v("v_pk_mul_f32", t.sub(2 * r, 2), t.sub(2 * r, 2), RP)
                for r in range(4): p.v("v_cvt_pk_bf16_f32", t[8 + r], t[2 * r], t[2 * r + 1])
                p.buf_store(t.sub(8, 4), VO[s_], o.sO, o.sob, 1024 * qb, flags=o.SCS, tags=["ost"])

    def h_signal(self, p):
        o = self; skip = o.L("hsig")
        p.assert_drained("hst")
        p.s("s_cmp_eq_u32", o.shflag, 0)
        p.branch("s_cbranch_scc1", skip)
        p.s("s_mov_b32", o.shflag, 0)
        o.signal(p, o.sP, C_H, (V(12), V(13)))
        p.label(skip)
    def pre_chk(self, p):
        o = self
        p.s("s_lshl_b32", o.scnt, o.sP2, 5)
        p.s("s_add_u32", o.scnt, o.scnt, 4 * C_H)
        p.v("v_mov_b32", V(12), o.scnt)
        p.buf_load(V(13), V(12), o.sDbg, 0, 0, flags="sc1")
    def await_wave(self, p, vt, target):
        o = self; loop, done = o.L("wpoll"), o.L("wgot")
        o.raw(p, f"s_mov_b32 {o.scnt}, {SPIN_MAX}")
        p.label(loop)
        o.raw(p, f"v_readfirstlane_b32 {o.stmp}, {vt[1]}")
        o.raw(p, "s_nop 3")
        o.raw(p, f"s_cmp_ge_u32 {o.stmp}, {target}")
        o.raw(p, f"s_cbranch_scc1 {done}")
        o.raw(p, "s_sleep 2")
        o.raw(p, f"buffer_load_dword {vt[1]}, {vt[0]}, {o.sDbg}, 0 offen sc1")
        o.raw(p, "s_waitcnt vmcnt(0)")
        o.raw(p, f"s_sub_u32 {o.scnt}, {o.scnt}, 1")
        o.raw(p, f"s_cmp_lg_u32 {o.scnt}, 0")
        o.raw(p, f"s_cbranch_scc1 {loop}")
        p.label(done)

    def g2_touch_setup(self, p, mode):
        o = self
        o.VT2 = V(216)
        p.s("s_lshr_b32", o.stmp, S(2), 3)
        p.s("s_lshl_b32", o.stmp, o.stmp, 2)
        p.s("s_add_u32", o.stmp, o.stmp, o.sw)
        p.s("s_lshl_b32", o.stmp, o.stmp, 12)
        p.s("s_add_u32", o.stoff, o.stoff, o.stmp)
        p.s("s_add_u32", o.stoff, o.stoff, 2 * 4 * KS)
        p.v("v_min_u32", o.VT2, 31, o.lane)
        p.v("v_lshlrev_b32", o.VT2, 7, o.VT2)
    def g2_touch(self, c):
        o = self
        q = Seg()
        q.buf_load(V(217 + c % 4), o.VT2, o.sB2, o.stoff, 0, flags=o.opt.get("t2flags", ""), tags=["touch"])
        q.s("s_add_u32", o.stoff, o.stoff, 4 * KS)
        return q

    def phase_g2(self, mode):
        o = self
        p = Seg()
        nch = 8 if mode == "s" else 9
        vt = (V(12), V(13))
        touch = bool(o.opt.get("g2touch"))
        o.attn_epilogue(p)
        o.ST.stamp(p)
        o.g2_setup(p, mode)
        o.g2_addr2(p)
        if touch: o.g2_touch_setup(p, mode)
        ahead = o.opt.get("g2ahead", 10)
        items = {c: o.g2_dma(c) + o.g2_b(c) for c in range(nch)}
        queue = [q for c in range(2, nch) for q in items[c]]
        pre = o.opt.get("gpre", 1)
        if mode == "g":
            o.await_wave(p, vt, 32)
            if pre: o.put_now(p, items[0])
        elif pre:
            o.put_now(p, items[0][:9]); o.put_now(p, items[1][:9])
        p.wait(vm=("tag", "ost")); p.barrier()
        if o.opt.get("finestamps"): o.ST.stamp(p)
        p.assert_drained("ost")
        p.s("s_lshr_b32", o.stmp, o.shead, 3)
        p.s("s_lshl_b32", o.stmp, o.stmp, 3)
        p.s("s_lshl_b32", o.stmp2, 1, o.stmp)
        o.signal(p, o.sP, C_O, vt, inc=o.stmp2)
        if mode == "g":
            if o.opt.get("finestamps"): o.ST.stamp(p); o.ST.stamp(p)
            if not pre: o.put_now(p, items[0])
            o.put_now(p, items[1])
        else:
            if not pre: o.put_now(p, items[0][:9]); o.put_now(p, items[1][:9])
            if o.opt.get("finestamps"): o.ST.stamp(p)
            o.await_o(p, vt)
            if o.opt.get("finestamps"): o.ST.stamp(p)
            o.put_now(p, items[0][9:]); o.put_now(p, items[1][9:])
        if touch:
            o.put_now(p, [o.g2_touch(2), o.g2_touch(3)])
        o.ST.stamp(p)
        p.wait(vm=("tag", "c0")); p.barrier()
        o.ST.stamp(p)
        for q in o.g2_reads(0, 0, 0): p.extend(q)
        p.wait(lgkm=0)
        acc = lambda nb, pb: o.ACC2.sub((nb * 4 + pb) * 4, 4)
        PK = V(2, 16)
        def pack_store(pr, pb, k):
            q = Seg()
            d = PK.sub((k % 4) * 4, 4)
            a_, b_ = acc(2 * pr, pb), acc(2 * pr + 1, pb)
            q.v("v_cvt_pk_bf16_f32", d[0], a_[0], a_[1]); q.v("v_cvt_pk_bf16_f32", d[1], a_[2], a_[3])
            q.v("v_cvt_pk_bf16_f32", d[2], b_[0], b_[1]); q.v("v_cvt_pk_bf16_f32", d[3], b_[2], b_[3])
            q.buf_store(d, o.VST[pb], o.sPart, o.spart, pr * 1024, flags=o.SCS)
            return q
        o.VST = V(212, 4)
        gi = 0; kst = 0
        for c in range(nch):
            tq = [o.g2_touch(c + 4)] if (touch and c + 4 < nch) else []
            quota = 25 + (ahead if c == 0 else 0)
            for nb in range(9):
                s_ = gi % 2
                mf = Seg()
                for pb in range(4):
                    for ks in range(4):
                        cin = 0 if (c == 0 and ks == 0) else acc(nb, pb)
                        mf.mfma(acc(nb, pb), o.AF2.sub(s_ * 16 + ks * 4, 4), o.bf2(c, pb, ks), cin)
                fl = []
                last = (c == nch - 1 and nb == 8)
                g0 = 0
                if nb == 8 and not last:
                    q = Seg(); q.wait(vm=("tag", f"c{c+1}")); q.barrier()
                    fl += [(0, i) for i in q]; g0 = 1
                if not last:
                    nx = (c, nb + 1) if nb < 8 else (c + 1, 0)
                    for k, q in enumerate(o.g2_reads(nx[0], nx[1], 1 - s_)):
                        fl += [(g0 + k // 2, i) for i in q]
                for g in (((5, 8, 11, 14) if c == 0 else (6, 9, 13)) if nb < 7 else (7, 11)):
                    if queue and quota:
                        o.place(fl, queue.pop(0), g); quota -= 1
                if nb == 8 and tq: o.place(fl, tq.pop(0), 11)
                if c == nch - 1:
                    if nb == 0:
                        for pb in range(4):
                            q = Seg(); q.v("v_add_u32", o.VST[pb], pb * 4096, o.V16); fl.append((6 + pb, q[0]))
                    if nb in (2, 4, 6, 8):
                        for pb in range(4):
                            q = pack_store((nb - 2) // 2, pb, kst); kst += 1
                            g = 5 + (5 * pb) // 2
                            for k, i in enumerate(q): fl.append((min(15, g + k // 2), i))
                if not last:
                    q = Seg(); q.wait(lgkm=0); fl += [(15, i) for i in q]
                fl.sort(key=lambda x: x[0])
                p.extend(weave(mf, fl)); gi += 1
            assert not tq
            if o.opt.get("chunkstamps"):
                if c < 8: o.ST.stamp(p)
        assert not queue
        p.nop(7)
        o.ST.stamp(p)
        p.s("s_add_u32", o.spart, o.spart, 16384)
        for pp in range(2):
            d = PK.sub((kst % 4) * 4, 4); kst += 1
            a_, b_ = acc(8, 2 * pp), acc(8, 2 * pp + 1)
            p.v("v_cvt_pk_bf16_f32", d[0], a_[0], a_[1]); p.v("v_cvt_pk_bf16_f32", d[1], a_[2], a_[3])
            p.v("v_cvt_pk_bf16_f32", d[2], b_[0], b_[1]); p.v("v_cvt_pk_bf16_f32", d[3], b_[2], b_[3])
            p.buf_store(d, o.V16, o.sPart, o.spart, pp * 1024, flags=o.SCS)
        return p

    def phase_fin(self):
        o = self
        p = Seg()
        vt = (V(12), V(13))
        make_srd(p, o.sOut, o.pout, SZ["out"])
        lane = o.lane
        v8, vx, t0 = V(2), V(3), V(4)
        sPB, sPT = S(47), S(48)
        p.s("s_and_b32", sPB, o.ssig, 1)
        p.s("s_lshl_b32", sPB, sPB, 1)
        p.s("s_lshr_b32", o.stmp, o.sw, 1)
        p.s("s_add_u32", sPB, sPB, o.stmp)
        p.s("s_and_b32", sPT, o.sw, 1)
        sq = S(49)
        p.s("s_lshl_b32", sq, o.sP2, 2)
        p.s("s_lshr_b32", o.stmp, o.ssig, 1)
        p.s("s_add_u32", sq, sq, o.stmp)
        s0 = S(50)
        p.s("s_lshl_b32", o.stmp, sq, 2)
        p.s("s_add_u32", o.stmp, o.stmp, o.sN)
        p.s("s_mul_i32", s0, o.stmp, 18432)
        s1 = S(51)
        p.s("s_lshr_b32", o.stmp, sPB, 1)
        p.s("s_lshl_b32", o.stmp, o.stmp, 10)
        p.s("s_and_b32", o.stmp2, sPB, 1)
        p.s("s_lshl_b32", o.stmp2, o.stmp2, 3)
        p.s("s_add_u32", o.stmp, o.stmp, o.stmp2)
        p.s("s_add_u32", s1, s0, o.stmp)
        p.s("s_add_u32", s1, s1, 16384)
        p.s("s_lshl_b32", o.stmp, sPB, 12)
        p.s("s_add_u32", s0, s0, o.stmp)
        p.s("s_lshl_b32", o.stmp, sPT, 11)
        p.s("s_add_u32", s0, s0, o.stmp)
        p.v("v_and_b32", t0, 15, lane)
        p.v("v_mul_u32_u24", vx, 1152, t0)
        p.v("v_lshrrev_b32", t0, 4, lane)
        p.v("v_lshl_add_u32", vx, t0, 3, vx)
        sxo = S(52)
        p.s("s_lshl_b32", o.stmp, sq, 2)
        p.s("s_add_u32", o.stmp, o.stmp, sPB)
        p.s("s_mul_i32", sxo, o.stmp, 16 * 1152)
        p.s("s_mul_i32", o.stmp, o.sN, 288)
        p.s("s_add_u32", sxo, sxo, o.stmp)
        sxs = S(53)
        p.s("s_add_u32", sxs, sxo, 256)
        p.s("s_lshl_b32", o.stmp, sPT, 7)
        p.s("s_add_u32", sxo, sxo, o.stmp)
        X = V(160, 10)
        for b in range(4): p.buf_load(X.sub(2 * b, 2), vx, o.sX, sxo, 32 * b, tags=["x"])
        p.buf_load(X.sub(8, 2), vx, o.sX, sxs, 0, tags=["x"])
        p.wait(vm=0); p.barrier()
        p.s("s_add_u32", o.stmp2, o.sN, C_PART)
        sslot = S(54)
        p.s("s_mov_b32", sslot, o.stmp2)
        o.signal(p, o.sP2, sslot, vt)
        o.ST.stamp(p)
        o.await_(p, o.sP2, sslot, 8, vt)
        o.ST.stamp(p)
        PP = V(24, 64); PS = V(88, 16)
        SSTR = 32 * 4 * 18432
        for pr in range(2):
            for s_ in range(8):
                if pr == 0 and s_ == 0: p.s("s_mov_b32", o.stmp, s0)
                elif s_ == 0: p.s("s_add_u32", o.stmp, s0, 1024)
                else: p.s("s_add_u32", o.stmp, o.stmp, SSTR)
                p.buf_load(PP.sub((s_ * 2 + pr) * 4, 4), o.V16, o.sPart, o.stmp, 0, flags=o.SC, tags=[f"p{pr}"])
        for s_ in range(8):
            if s_ == 0: p.s("s_mov_b32", o.stmp, s1)
            else: p.s("s_add_u32", o.stmp, o.stmp, SSTR)
            p.buf_load(PS.sub(s_ * 2, 2), o.V16, o.sPart, o.stmp, 0, flags=o.SC, tags=["p2"])
        smask, slog = S(57), S(58)
        p.s("s_mov_b32", smask, 0xFFFF0000)
        p.s("s_mov_b32", slog, -1.4426950408889634)
        T = V(180, 16)
        def finish(xr, srcs, so, off):
            sa, ga, tmp = T.sub(0, 4), T.sub(4, 4), T.sub(8, 4)
            for grp, dst in ((range(0, 4), sa), (range(4, 8), ga)):
                for k, s_ in enumerate(grp):
                    r = srcs[s_]
                    d = dst if k == 0 else tmp
                    p.v("v_lshlrev_b32", d[0], 16, r[0]); p.v("v_and_b32", d[1], smask, r[0])
                    p.v("v_lshlrev_b32", d[2], 16, r[1]); p.v("v_and_b32", d[3], smask, r[1])
                    if k:
                        p.v("v_pk_add_f32", dst.sub(0, 2), dst.sub(0, 2), tmp.sub(0, 2))
                        p.v("v_pk_add_f32", dst.sub(2, 2), dst.sub(2, 2), tmp.sub(2, 2))
            ex = T.sub(12, 4)
            for e in range(4): p.v("v_mul_f32", ex[e], slog, ga[e])
            for e in range(4): p.v("v_exp_f32", ex[e], ex[e])
            p.nop(0)
            for e in range(4): p.v("v_add_f32", ex[e], 1.0, ex[e])
            for e in range(4): p.v("v_rcp_f32", ex[e], ex[e])
            p.nop(0)
            for e in range(4): p.v("v_mul_f32", ga[e], ga[e], ex[e])
            p.v("v_lshlrev_b32", tmp[0], 16, xr[0]); p.v("v_and_b32", tmp[1], smask, xr[0])
            p.v("v_lshlrev_b32", tmp[2], 16, xr[1]); p.v("v_and_b32", tmp[3], smask, xr[1])
            for e in range(4): p.v("v_fmac_f32", tmp[e], sa[e], ga[e])
            p.v("v_cvt_pk_bf16_f32", xr[0], tmp[0], tmp[1])
            p.v("v_cvt_pk_bf16_f32", xr[1], tmp[2], tmp[3])
            p.buf_store(xr, vx, o.sOut, so, off)
        for pr in range(2):
            p.wait(vm=("tag", f"p{pr}"))
            for hf in range(2):
                finish(X.sub(4 * pr + 2 * hf, 2), [PP.sub((s_ * 2 + pr) * 4 + 2 * hf, 2) for s_ in range(8)], sxo, 64 * pr + 32 * hf)
        done = o.L("fdone")
        p.s("s_cmp_eq_u32", sPT, 0)
        p.branch("s_cbranch_scc1", done)
        p.wait(vm=("tag", "p2"))
        finish(X.sub(8, 2), [PS.sub(s_ * 2, 2) for s_ in range(8)], sxs, 0)
        p.label(done)
        if o.ST.on:
            o.ST.stamp(p); o.raw(p, "s_waitcnt vmcnt(0)"); o.ST.stamp(p); o.ST.dump(p, o.pws, o.sw)
        p.endpgm()
        return p

def gen_mega(name="mega_kernel", stamps=False, opt=None):
    k = Mega(name, stamps, opt)
    a = Seg()
    k.setup(a)
    ev, od = k.phase_g(a)
    b = Seg()
    if (opt or {}).get("hplan", "gepi") == "gepi":
        for q in k.h_stores(): b.extend(q)
    if (opt or {}).get("hplan") == "split2": k.h_block(b, 0)
    k.ST.stamp(b)
    k.alloc_g2()
    k.phase_q(b)
    k.g2_addr(b)
    k.w2_srd(b)
    d = k.phase_attn(mega=True)
    disp = Seg()
    disp.s("s_cmp_ge_u32", k.ssig, 4)
    disp.branch("s_cbranch_scc1", name + "_g2g")
    n0 = k.ST.n
    ps = k.phase_g2("s"); ps.branch("s_branch", name + "_fin")
    k.ST.n = n0
    pg = k.phase_g2("g"); pg.insert(0, Ins(name + "_g2g:", "label"))
    pf = k.phase_fin(); pf.insert(0, Ins(name + "_fin:", "label"))
    end = Seg(); end.label(name + "_end"); end.endpgm()
    loop = list(d["b1"]) + list(d["b2"])
    traces = []
    for gp in (ev, od):
        head = list(a) + list(gp) + list(b) + list(d["pro"]) + list(d["mp"])
        for g2 in (ps, pg):
            traces.append(head + loop + loop + list(d["b1"]) + list(d["chk"]) + list(disp) + list(g2) + list(pf))
    head = list(a) + list(ev) + list(b) + list(d["pro"]) + list(d["mp"])
    traces.append(head + loop + list(d["b1"]) + list(d["chk"]) + list(d["fb"]) + list(d["fl"]) * 2 + list(d["f2"]) + list(d["mp"]) + loop
                  + list(d["b1"]) + list(d["chk"]) + list(disp) + list(ps) + list(pf))
    if (opt or {}).get("hplan") == "split2":
        traces = [[i for i in t if f"cls{1 - c}" not in i.tags] for t in traces for c in (0, 1)]
    resolve_waits(traces)
    if not (opt or {}).get("nocheck"):
        for i, t in enumerate(traces): check(t, f"{name}:{i}")
    segs = [a, ev, od, b, d["pro"], d["mp"], d["b1"], d["b2"], d["chk"], disp, ps, pg, pf, d["fb"], d["fl"], d["f2"], end]
    return kernel_text(name, render(segs), vgpr=512, accum=256, sgpr=102)

if __name__ == "__main__":
    t = gen_mega(); print(len(t), t.count("\n"))
```

```python
import sys, json, build_mega
K = "recurrent_scan__gqa_block_cached__glu_gated_reglu__prompt_kernel"
def make(opt):
    s = build_mega.make({K: opt}, False)
    return s.replace(f"; @launch kernel={K} grid=(256,1,1) block=(256,1,1) lds=163840", "; @launch grid=(256,1,1) block=(256,1,1) lds=163840")
if __name__ == "__main__":
    opt = json.loads(sys.argv[2]) if len(sys.argv) > 2 else {}
    s = make(opt)
    open(sys.argv[1], "w").write(s); print(len(s))
```

```python
import re

class R:
    __slots__ = ("k", "i", "n")
    def __init__(self, k, i, n=1):
        self.k, self.i, self.n = k, i, n
    def __str__(self):
        if self.k in ("vcc", "exec", "m0", "scc"):
            return self.k
        return f"{self.k}{self.i}" if self.n == 1 else f"{self.k}[{self.i}:{self.i+self.n-1}]"
    __repr__ = __str__
    def __getitem__(self, j):
        assert 0 <= j < self.n, (self, j)
        return R(self.k, self.i + j, 1)
    def sub(self, j, n):
        assert 0 <= j and j + n <= self.n, (self, j, n)
        return R(self.k, self.i + j, n)
    def regs(self):
        if self.k == "vcc": return [("s", 106), ("s", 107)]
        if self.k == "exec": return [("s", 126), ("s", 127)]
        if self.k == "m0": return [("s", 124)]
        if self.k == "scc": return [("scc", 0)]
        return [(self.k, self.i + j) for j in range(self.n)]

def V(i, n=1): return R("v", i, n)
def A(i, n=1): return R("a", i, n)
def S(i, n=1): return R("s", i, n)
VCC = R("vcc", 0); EXEC = R("exec", 0); M0 = R("m0", 0); SCC = R("scc", 0)

TRANS = ("v_exp_f32", "v_log_f32", "v_rcp_f32", "v_rsq_f32", "v_sqrt_f32", "v_sin_f32", "v_cos_f32")

def regs_of(x):
    out = []
    if isinstance(x, R):
        return x.regs()
    if isinstance(x, (list, tuple)):
        for y in x: out += regs_of(y)
    if isinstance(x, Neg):
        return x.r.regs()
    return out

class Neg:
    def __init__(self, r, pre="-", post=""):
        self.r, self.pre, self.post = r, pre, post
    def __str__(self): return f"{self.pre}{self.r}{self.post}"

def fmt(x):
    if isinstance(x, float):
        import struct
        if x in (0.5, 1.0, 2.0, 4.0, -0.5, -1.0, -2.0, -4.0): return repr(x)
        if x == 0.0: return "0"
        return "0x%08x" % struct.unpack("<I", struct.pack("<f", x))[0]
    if isinstance(x, int):
        return str(x) if -16 <= x <= 64 else hex(x & 0xFFFFFFFF)
    return str(x)

class Ins:
    __slots__ = ("text", "cls", "defs", "uses", "cuses", "passes", "tags", "lds", "wait", "nop", "wide", "op", "meta", "sccsrc")
    def __init__(self, text, cls, defs=(), uses=(), cuses=(), passes=0, tags=(), lds=None, op=""):
        self.text, self.cls = text, cls
        self.defs, self.uses, self.cuses = list(defs), list(uses), list(cuses)
        self.passes = passes
        self.tags = set(tags)
        self.lds = lds
        self.wait = None
        self.nop = 0
        self.wide = False
        self.op = op
        self.meta = None
        self.sccsrc = None
    def cost(self):
        if self.cls == "trans": return 2
        if self.cls in ("label", "comment"): return 0
        return 1

class Seg(list):
    def add(self, ins):
        self.append(ins); return ins
    def raw(self, text, cls="other", defs=(), uses=()):
        return self.add(Ins(text, cls, regs_of(list(defs)), regs_of(list(uses))))
    def label(self, name):
        return self.add(Ins(name + ":", "label"))
    def comment(self, t):
        return self.add(Ins("; " + t, "comment"))
    def v(self, op, dst, *srcs, mods="", extra_defs=(), extra_uses=()):
        base = re.sub(r"_(e32|e64|dpp|sdwa)$", "", op)
        cls = "trans" if base in TRANS else "valu"
        defs = regs_of(dst) + regs_of(list(extra_defs))
        uses = regs_of(list(srcs)) + regs_of(list(extra_uses))
        if base in ("v_fmac_f32", "v_pk_fmac_f16", "v_dot2c_f32_bf16", "v_writelane_b32"):
            uses += regs_of(dst)
        if base in ("v_permlane32_swap_b32", "v_permlane16_swap_b32"):
            uses += regs_of(dst); defs += regs_of(srcs[0])
        if base.startswith("v_cndmask") and len(srcs) == 2:
            uses += VCC.regs()
        text = f"{op} {fmt(dst)}" + "".join(", " + fmt(s) for s in srcs) + (" " + mods if mods else "")
        return self.add(Ins(text, cls, defs, uses, op=base))
    def acc_read(self, dst, src):  return self.v("v_accvgpr_read_b32", dst, src)
    def acc_write(self, dst, src): return self.v("v_accvgpr_write_b32", dst, src)
    def s(self, op, dst, *srcs):
        defs = regs_of(dst); uses = regs_of(list(srcs))
        if op.startswith("s_cmp") or op.startswith("s_bitcmp"):
            uses += regs_of(dst); defs = SCC.regs()
        elif op in ("s_add_u32", "s_sub_u32", "s_addc_u32", "s_subb_u32", "s_lshl_b32", "s_lshr_b32", "s_and_b32", "s_or_b32",
                    "s_xor_b32", "s_and_b64", "s_or_b64", "s_add_i32", "s_sub_i32", "s_ashr_i32", "s_min_u32", "s_max_u32",
                    "s_andn2_b64", "s_lshl_b64", "s_xor_b64", "s_bfe_u32"):
            defs += SCC.regs()
        if op in ("s_addc_u32", "s_subb_u32", "s_cselect_b32", "s_cselect_b64"):
            uses += SCC.regs()
        if op.endswith("saveexec_b64"):
            defs += EXEC.regs() + SCC.regs(); uses += EXEC.regs()
        text = f"{op} {fmt(dst)}" + "".join(", " + fmt(s) for s in srcs)
        ins = Ins(text, "salu", defs, uses, op=op)
        if ("scc", 0) in uses: ins.sccsrc = getattr(self, "_scc", None)
        if ("scc", 0) in defs: self._scc = ins
        return self.add(ins)
    def s_load(self, dst, base, off):
        op = {1: "s_load_dword", 2: "s_load_dwordx2", 4: "s_load_dwordx4", 8: "s_load_dwordx8", 16: "s_load_dwordx16"}[dst.n]
        return self.add(Ins(f"{op} {dst}, {base}, {hex(off)}", "smem", dst.regs(), base.regs(), op=op))
    def mfma(self, d, a, b, c, shape=16):
        op, w, p = ("v_mfma_f32_16x16x32_bf16", 4, 4) if shape == 16 else ("v_mfma_f32_32x32x16_bf16", 16, 8)
        assert d.n == w and a.n == 4 and b.n == 4, (d, a, b)
        cu = regs_of(c)
        if isinstance(c, R): assert c.n == w and c.k == d.k, (c, d)
        ins = Ins(f"{op} {d}, {a}, {b}, {fmt(c)}", "mfma", d.regs(), a.regs() + b.regs(), cu, passes=p, op=op)
        return self.add(ins)
    def mfma4(self, d, a, b, c):
        assert d.n == 4 and a.n == 2 and b.n == 2
        ins = Ins(f"v_mfma_f32_4x4x4_16b_bf16 {d}, {a}, {b}, {fmt(c)}", "mfma", d.regs(), a.regs() + b.regs(), regs_of(c), passes=2, op="mfma4")
        return self.add(ins)
    def ds_read(self, op, dst, addr, off=0, tags=(), lds=None):
        assert 0 <= off < 65536, off
        t = f"{op} {dst}, {addr}" + (f" offset:{off}" if off else "")
        return self.add(Ins(t, "dsrd", dst.regs(), addr.regs(), tags=tags, lds=lds, op=op))
    def ds_write(self, op, addr, data, off=0, tags=(), lds=None):
        assert 0 <= off < 65536, off
        t = f"{op} {addr}, {data}" + (f" offset:{off}" if off else "")
        return self.add(Ins(t, "dswr", [], addr.regs() + data.regs(), tags=tags, lds=lds, op=op))
    def _boff(self, voff, srd, soff, off, flags):
        assert 0 <= off < 4096, off
        t = f"{voff if voff is not None else 'off'}, {srd}, {fmt(soff)}"
        if voff is not None: t += " offen"
        if off: t += f" offset:{off}"
        if flags: t += " " + flags
        return t, regs_of([voff, srd, soff])
    def buf_load(self, dst, voff, srd, soff=0, off=0, flags="", tags=()):
        op = {1: "buffer_load_dword", 2: "buffer_load_dwordx2", 4: "buffer_load_dwordx4"}[dst.n]
        t, u = self._boff(voff, srd, soff, off, flags)
        return self.add(Ins(f"{op} {dst}, {t}", "vmld", dst.regs(), u, tags=tags, op=op))
    def buf_dma(self, voff, srd, soff=0, off=0, flags="", tags=(), lds=None):
        t, u = self._boff(voff, srd, soff, off, flags)
        return self.add(Ins(f"buffer_load_dwordx4 {t} lds", "dma", [], u + M0.regs(), tags=tags, lds=lds, op="dma"))
    def buf_store(self, data, voff, srd, soff=0, off=0, flags="", tags=()):
        op = {1: "buffer_store_dword", 2: "buffer_store_dwordx2", 4: "buffer_store_dwordx4"}[data.n]
        t, u = self._boff(voff, srd, soff, off, flags)
        ins = Ins(f"{op} {data}, {t}", "vmst", [], u + data.regs(), tags=tags, op=op)
        ins.wide = data.n >= 3
        ins.meta = data.regs()
        return self.add(ins)
    def wait(self, vm=None, lgkm=None):
        ins = Ins("s_waitcnt", "wait"); ins.wait = dict(vm=vm, lgkm=lgkm); return self.add(ins)
    def barrier(self): return self.add(Ins("s_barrier", "barrier"))
    def nop(self, n=0):
        ins = Ins(f"s_nop {n}", "nop"); ins.nop = n; return self.add(ins)
    def branch(self, op, target):
        u = SCC.regs() if "scc" in op else (VCC.regs() if "vcc" in op else (EXEC.regs() if "exec" in op else []))
        ins = Ins(f"{op} {target}", "branch", [], u, op=op)
        if "scc" in op: ins.sccsrc = getattr(self, "_scc", None)
        return self.add(ins)
    def endpgm(self): return self.add(Ins("s_endpgm", "end"))
    def assert_drained(self, tag, window=None):
        ins = Ins("; drained " + tag, "comment"); ins.meta = ("drained", tag, window); return self.add(ins)
    def setprio(self, n): return self.add(Ins(f"s_setprio {n}", "salu"))

class CheckError(Exception):
    pass

def resolve_waits(traces):
    if traces and isinstance(traces[0], Ins): traces = [traces]
    best = {}
    for trace in traces:
        vmq, lgq = [], []
        for ins in trace:
            if ins.cls in ("vmld", "dma", "vmst"): vmq.append(ins)
            elif ins.cls in ("dsrd", "dswr"): lgq.append(ins)
            elif ins.cls == "wait":
                for key, q in (("vm", vmq), ("lgkm", lgq)):
                    w = ins.wait[key]
                    if isinstance(w, tuple):
                        n = None
                        for k, o in enumerate(reversed(q)):
                            if w[1] in o.tags:
                                n = k; break
                        kk = (id(ins), key)
                        if n is not None and len(w) > 2: n = min(n, w[2])
                        if n is not None:
                            best[kk] = min(best.get(kk, (10**9, ins))[0], n), ins
                        else:
                            best.setdefault(kk, (10**9, ins))
    for (i, key), (n, ins) in best.items():
        mx = 63 if key == "vm" else 15
        ins.wait = dict(ins.wait)
        ins.wait[key] = min(n, mx) if n < 10**9 else None
    for trace in traces:
        for ins in trace:
            if ins.cls == "wait":
                vm, lg = ins.wait["vm"], ins.wait["lgkm"]
                assert not (isinstance(vm, tuple) or isinstance(lg, tuple))
                parts = []
                if vm is not None: parts.append(f"vmcnt({vm})")
                if lg is not None: parts.append(f"lgkmcnt({lg})")
                ins.text = "s_waitcnt " + " ".join(parts) if parts else "s_nop 0"

def overlap(a, b):
    return a is not None and b is not None and a[0] < b[1] and b[0] < a[1]

def check(trace, name="", verbose=False):
    errs = []
    def err(i, msg):
        ctx = " | ".join(x.text for x in trace[max(0, i - 2): i + 1])
        errs.append(f"[{name}] #{i}: {msg}   <<{ctx}>>")
    T = 0
    wr = {}
    cread = {}
    stdata = {}
    vmq, lgq = [], []
    pend = {}
    smem_pend = set()
    m0_t = -10
    retired = {}; last_barrier = -1; visits = {}; retire_log = {}
    fills = []
    reads = []
    for i, ins in enumerate(trace):
        c = ins.cls
        if c == "comment" and ins.meta and ins.meta[0] == "drained":
            tag, win = ins.meta[1], ins.meta[2]
            if win is None:
                if any(tag in o_.tags for o_ in vmq): err(i, f"ops tagged {tag} still outstanding")
                if retired.get(tag, -1) > last_barrier: err(i, f"ops tagged {tag} retired after the latest barrier")
            else:
                visits[id(ins)] = visits.get(id(ins), 0) + 1
                if visits[id(ins)] == win[1]:
                    rl = retire_log.get(tag, [])
                    if len(rl) < win[0] or rl[win[0] - 1] > last_barrier: err(i, f"first {win[0]} ops tagged {tag} not drained before the latest barrier")
        if c in ("label", "comment"): continue
        allr = ins.uses + ins.cuses
        if ins.sccsrc is not None and ("scc", 0) in wr and wr[("scc", 0)][2] is not ins.sccsrc:
            err(i, f"SCC consumer sees '{wr[('scc', 0)][2].text}' instead of '{ins.sccsrc.text}'")
        for r in allr + ins.defs:
            if r in pend:
                err(i, f"register {r} touched while load pending ({pend[r].text})")
            if r in smem_pend and c != "smem":
                err(i, f"register {r} touched while scalar load pending")
        def gap(t): return T - t - 1
        for r in ins.uses + ins.cuses:
            if r not in wr: continue
            t, wc, w = wr[r]
            need = 0
            if wc in ("valu", "trans"):
                if c == "mfma" and r[0] in "va": need = 2
                elif r[0] == "s" and c in ("valu", "trans", "mfma") : need = 2
                elif r[0] == "s" and c in ("vmld", "vmst", "dma"): need = 5
                elif r[0] == "s" and c in ("salu", "branch", "smem"): need = 1
                elif ins.op in ("v_readfirstlane_b32", "v_readlane_b32") and r[0] == "v": need = 1
                elif ins.op.startswith("v_permlane") or "dpp" in ins.text or "row_" in ins.text: need = 2
                if wc == "trans" and c in ("valu", "dswr", "vmst", "vmld", "dma", "dsrd"): need = max(need, 1)
            elif wc == "mfma":
                p = w.passes
                if c == "mfma":
                    if r in ins.cuses and r not in ins.uses:
                        same = (ins.cuses == w.defs)
                        need = (2 if p == 2 else 0) if same else {2: 4, 4: 6, 8: 10, 16: 18}[p]
                    else:
                        need = {2: 5, 4: 8, 8: 12, 16: 20}[p]
                else:
                    need = {2: 5, 4: 8, 8: 12, 16: 20}[p]
            elif wc == "salu" and r == ("s", 124) and c == "dma":
                need = 1
            if gap(t) < need:
                err(i, f"RAW hazard on {r}: gap {gap(t)} < {need} after '{w.text}'")
        for r in ins.defs:
            if r in wr:
                t, wc, w = wr[r]
                if wc == "mfma" and c != "mfma":
                    need = {2: 5, 4: 8, 8: 12, 16: 20}[w.passes]
                    if gap(t) < need: err(i, f"WAW hazard on {r} after mfma: gap {gap(t)} < {need}")
                if wc == "mfma" and c == "mfma" and r not in ins.cuses:
                    need = {2: 4, 4: 6, 8: 10, 16: 18}[w.passes]
                    if gap(t) < need: err(i, f"mfma WAW on {r} without chain: gap {gap(t)} < {need}")
            if r in cread and c in ("valu", "trans"):
                t, p = cread[r]
                need = {2: 1, 4: 3, 8: 7, 16: 15}[p]
                if gap(t) < need: err(i, f"WAR hazard on mfma SrcC {r}: gap {gap(t)} < {need}")
            if r in stdata:
                need = 2 if c in ("valu", "trans") else 1
                if gap(stdata[r]) < need: err(i, f"store data {r} overwritten too early")
        if c == "dsrd" and ins.lds is not None:
            for f in fills:
                if overlap(f[0], ins.lds) and f[1] != "visible":
                    err(i, f"LDS read {ins.lds} of fill {f[0]} (#{f[2]}) not yet visible ({f[1]})")
            reads.append([ins.lds, "issued", i, ins])
        if c in ("dma", "dswr") and ins.lds is not None:
            for rd in reads:
                if overlap(rd[0], ins.lds) and rd[1] != "released":
                    err(i, f"LDS fill {ins.lds} overwrites range still read by #{rd[2]} ({rd[1]})")
            reads[:] = [rd for rd in reads if not (overlap(rd[0], ins.lds) and rd[1] == "released")]
            fills[:] = [f for f in fills if not (ins.lds[0] <= f[0][0] and f[0][1] <= ins.lds[1] and f[1] == "visible")]
            fills.append([ins.lds, "issued", i, ins])
        if c == "wait":
            vm, lg = ins.wait["vm"], ins.wait["lgkm"]
            assert not isinstance(vm, tuple) and not isinstance(lg, tuple), "unresolved wait"
            if vm is not None:
                while len(vmq) > vm:
                    o = vmq.pop(0)
                    for t_ in o.tags:
                        retired[t_] = i; retire_log.setdefault(t_, []).append(i)
                    for r in o.defs: pend.pop(r, None)
                    for f in fills:
                        if f[3] is o and f[1] == "issued": f[1] = "done"
            if lg is not None:
                while len(lgq) > lg:
                    o = lgq.pop(0)
                    for r in o.defs: pend.pop(r, None)
                    for rd in reads:
                        if rd[3] is o and rd[1] == "issued": rd[1] = "done"
                    for f in fills:
                        if f[3] is o and f[1] == "issued": f[1] = "done"
                if lg == 0: smem_pend.clear()
        elif c == "barrier":
            last_barrier = i
            for f in fills:
                if f[1] == "done": f[1] = "visible"
            for rd in reads:
                if rd[1] == "done": rd[1] = "released"
        elif c in ("vmld", "dma", "vmst"):
            vmq.append(ins)
            if len(vmq) > 63: err(i, "more than 63 VMEM ops outstanding")
            if c == "vmld":
                for r in ins.defs: pend[r] = ins
            if c == "vmst" and ins.wide:
                for r in ins.meta: stdata[r] = T
        elif c in ("dsrd", "dswr"):
            lgq.append(ins)
            if len(lgq) > 15:
                o = lgq.pop(0)
                for r in o.defs: pend.pop(r, None)
                for rd in reads:
                    if rd[3] is o and rd[1] == "issued": rd[1] = "done"
                for f in fills:
                    if f[3] is o and f[1] == "issued": f[1] = "done"
            if c == "dsrd":
                for r in ins.defs: pend[r] = ins
        elif c == "smem":
            for r in ins.defs: smem_pend.add(r)
        for r in ins.defs:
            wr[r] = (T, c, ins)
        if c == "mfma":
            for r in ins.cuses: cread[r] = (T, ins.passes)
        T += 1 + (ins.nop if c == "nop" else 0)
    if errs:
        for e in errs[:40]: print(e)
        raise CheckError(f"{len(errs)} hazard errors in {name}")

def render(segs):
    out = []
    for s in segs:
        for ins in s:
            if ins.cls == "label": out.append(ins.text)
            else: out.append("    " + ins.text)
    return "\n".join(out) + "\n"

def kernel_text(name, body, vgpr=512, accum=256, sgpr=102):
    return f""".globl {name}
.p2align 8
.type {name},@function
{name}:
{body}
.section .rodata,"a"
.p2align 6
.amdhsa_kernel {name}
  .amdhsa_next_free_vgpr {vgpr}
  .amdhsa_next_free_sgpr {sgpr}
  .amdhsa_accum_offset {accum}
  .amdhsa_group_segment_fixed_size 0
  .amdhsa_kernarg_size 96
  .amdhsa_user_sgpr_count 2
  .amdhsa_user_sgpr_kernarg_segment_ptr 1
  .amdhsa_system_sgpr_workgroup_id_x 1
  .amdhsa_float_denorm_mode_32 3
.end_amdhsa_kernel
.text
"""

def weave(mf, fillers, cap=2):
    by = {}
    for g, ins in fillers:
        by.setdefault(g, []).append(ins)
    out = Seg()
    for ins in by.get(-1, []): out.add(ins)
    for i, m in enumerate(mf):
        out.add(m)
        for ins in by.get(i, []): out.add(ins)
    extra = [g for g in by if g >= len(mf) or g < -1]
    assert not extra, extra
    return out
```

```python
from common import *
from k_gemm2 import lane_tr_addr, dma288_voffs

GREG = 36864
GR = [0, GREG, 2 * GREG]
QSZ = 24576
QR = [110592, 135168, 40960, 110592, 135168, 40960]
KRING, VRING = 0, 65536
QSCALE = 1.4426950408889634 / 128 ** 0.5
LTHR = float(2.0 ** 60)

class K1:
    def __init__(self, name, stamps=False, opt=None):
        self.name, self.opt = name, (opt or {})
        self.ST = Stamps(stamps)
        self.pk, self.pv, self.pwq, self.pwg, self.pwu, self.pws = S(4, 2), S(6, 2), S(8, 2), S(10, 2), S(12, 2), S(14, 2)
        self.sGU, self.sWq, self.sK, self.sV = S(16, 4), S(20, 4), S(24, 4), S(28, 4)
        self.sXN, self.sH, self.sO = S(32, 4), S(36, 4), S(40, 4)
        self.sw, self.shead, self.sP = S(44), S(45), S(46)
        self.sgoff, self.sxoff, self.sqoff, self.skvoff = S(47), S(48), S(49), S(50)
        self.sm9, self.sm1 = S(51), S(52)
        self.shb, self.sob = S(53), S(54)
        self.stmp, self.stmp2, self.sloop, self.sredo = S(55), S(56), S(57), S(58)
        self.sexec = S(60, 2)
        self.lane = V(1)
        self.VD = V(2, 9)
        self.VA = V(11, 3)
        self.VX = V(14, 4)
        self.V16 = V(18)
        self.t0, self.t1, self.t2 = V(19), V(20), V(21)
        self.VH = V(22)
        self.VWd = V(23)

    def setup(self, p):
        o = self
        guard(p, 256, o.name + "_end")
        o.ST.stamp(p)
        for r, k in ((o.pk, "k"), (o.pv, "v"), (o.pwq, "wq"), (o.pwg, "wg"), (o.pwu, "wu"), (o.pws, "ws")):
            p.s_load(r, S(0, 2), KA[k])
        wave_id(p, o.sw, o.lane)
        p.v("v_and_b32", o.lane, 63, V(0))
        p.s("s_and_b32", o.stmp, S(2), 7)
        p.s("s_lshl_b32", o.stmp, o.stmp, 2)
        p.s("s_bfe_u32", o.stmp2, S(2), 0x20003)
        p.s("s_add_u32", o.shead, o.stmp, o.stmp2)
        p.s("s_lshr_b32", o.sP, S(2), 5)
        p.s("s_mul_i32", o.sm9, o.sw, 9216)
        p.s("s_lshl_b32", o.sm1, o.sw, 10)
        dma288_voffs(p, o.VD, o.lane, o.t0, o.t1, o.t2, 9216, o.stmp)
        lane_tr_addr(p, o.VA[0], o.lane, o.t0, o.t1, 288)
        p.v("v_add_u32", o.VA[1], GR[1], o.VA[0])
        p.v("v_add_u32", o.VA[2], GR[2], o.VA[0])
        p.v("v_lshlrev_b32", o.V16, 4, o.lane)
        for pb in range(4):
            p.v("v_add_u32", o.VX[pb], pb * 18 * 1024, o.V16)
        p.wait(lgkm=0)
        p.s("s_cmp_lt_u32", o.sw, 2)
        p.s("s_cselect_b32", o.sGU[0], o.pwg[0], o.pwu[0])
        p.s("s_cselect_b32", o.sGU[1], o.pwg[1], o.pwu[1])
        p.s("s_mov_b32", o.sGU[2], SZ["wg"])
        p.s("s_mov_b32", o.sGU[3], 0x20000)
        make_srd(p, o.sXN, o.pws, SZ_XN, add=WS_XN)
        p.s("s_and_b32", o.stmp, o.sw, 1)
        p.s("s_mul_i32", o.sgoff, o.stmp, 32 * 9216)
        p.s("s_mul_i32", o.stmp, o.shead, 288)
        p.s("s_add_u32", o.sgoff, o.sgoff, o.stmp)
        p.s("s_lshl_b32", o.stmp, o.sP, 4)
        p.s("s_lshl_b32", o.stmp2, o.sw, 2)
        p.s("s_add_u32", o.stmp, o.stmp, o.stmp2)
        p.s("s_mul_i32", o.sxoff, o.stmp, 18 * 1024)
        p.s("s_mul_i32", o.shb, o.stmp, 144 * 1024)
        p.s("s_mul_i32", o.sob, o.stmp, 128 * 1024)

    def setup_late(self, p):
        o = self
        make_srd(p, o.sWq, o.pwq, SZ["wq"])
        make_srd(p, o.sH, o.pws, SZ_H, add=WS_H)
        make_srd(p, o.sO, o.pws, SZ_O, add=WS_O)
        p.s("s_lshr_b32", o.stmp, o.shead, 1)
        p.s("s_lshl_b32", o.stmp, o.stmp, 19)
        make_srd(p, o.sK, o.pk, 524288, add=o.stmp)
        make_srd(p, o.sV, o.pv, 524288, add=o.stmp)
        t0, t1, t2 = o.t0, o.t1, o.t2
        p.v("v_lshrrev_b32", t0, 4, o.lane)
        p.s("s_lshl_b32", o.stmp, o.sw, 2)
        p.v("v_add_u32", t0, o.stmp, t0)
        p.v("v_and_b32", t1, 7, t0)
        p.v("v_lshlrev_b32", t1, 1, t1)
        p.v("v_and_b32", t2, 15, o.lane)
        p.v("v_xor_b32", t1, t1, t2)
        p.v("v_lshlrev_b32", t1, 4, t1)
        p.v("v_lshl_add_u32", o.VWd, t0, 13, t1)
        p.s("s_lshl_b32", o.sqoff, o.shead, 8)
        p.s("s_lshl_b32", o.stmp, o.shead, 12)
        p.s("s_add_u32", o.sob, o.sob, o.stmp)

    def g_dma(self, c):
        o = self; out = []
        rg = (GR[c % 3], GR[c % 3] + GREG)
        for j in range(9):
            q = Seg()
            q.s("s_add_u32", M0, o.sm9, GR[c % 3] + 1024 * j)
            q.buf_dma(o.VD[j], o.sGU, o.sgoff, 0, flags=o.opt.get("wflags", ""), tags=[f"G{c}"], lds=rg)
            if j == 8: q.s("s_add_u32", o.sgoff, o.sgoff, 64 * 9216)
            out.append(q)
        return out
    def x_loads(self, dst, nks, tag, rewind=None):
        o = self; out = []
        for ks in range(nks):
            for pb in range(4):
                q = Seg()
                q.buf_load(dst(pb, ks), o.VX[pb], o.sXN, o.sxoff, 1024 * ks, tags=[tag])
                out.append(q)
        out[-1].s("s_add_u32", o.sxoff, o.sxoff, 1024 * nks)
        return out
    def q_dma(self, c):
        o = self; out = []
        rg = (QR[c], QR[c] + QSZ)
        for i in range(6):
            q = Seg()
            q.s("s_add_u32", M0, o.sm1, QR[c] + 4096 * i)
            q.buf_dma(o.VWd, o.sWq, o.sqoff, 0, flags=o.opt.get("wflags", ""), tags=[f"Q{c}"], lds=rg)
            q.s("s_add_u32", o.sqoff, o.sqoff, 16 * 8192)
            out.append(q)
        return out
    def kv_dma(self, j):
        o = self; out = []
        slot = j % 4
        for i in range(4):
            q = Seg()
            q.s("s_add_u32", M0, o.sm1, KRING + slot * 16384 + 4096 * i)
            q.buf_dma(o.VKd, o.sK, o.skvoff, 0, tags=[f"A{slot}", "kvdma"], lds=(KRING + slot * 16384, KRING + slot * 16384 + 16384))
            out.append(q)
            q = Seg()
            q.s("s_add_u32", M0, o.sm1, VRING + slot * 16384 + 4096 * i)
            q.buf_dma(o.VVd, o.sV, o.skvoff, 0, tags=[f"A{slot}", "kvdma"], lds=(VRING + slot * 16384, VRING + slot * 16384 + 16384))
            q.s("s_add_u32", o.skvoff, o.skvoff, 4096)
            out.append(q)
        return out

    @staticmethod
    def put_now(p, items):
        for q in items:
            if q[0].text.startswith("s_add_u32 m0"):
                p.add(q[0]); p.nop(0); p.extend(q[1:])
            else:
                p.extend(q)
    @staticmethod
    def place(fl, q, g):
        if q[0].text.startswith("s_add_u32 m0"):
            fl.append((g - 1, q[0])); fl += [(g, i) for i in q[1:]]
        else:
            fl += [(g, i) for i in q]

    def gacc(self, fb, m, pb):
        idx = ((fb * 2 + m) * 4 + pb) * 4
        return V(24 + idx, 4) if fb < 7 else A(idx - 224, 4)
    def gx(self, c, pb, ks): return A(64 + (c % 3) * 32 + (pb * 2 + ks) * 4, 4)
    def gaf(self, s_, m, ks): return A(160 + s_ * 16 + (m * 2 + ks) * 4, 4)
    def g_reads(self, c, fb, s_):
        out = []
        for m in range(2):
            for ks in range(2):
                for h in range(2):
                    q = Seg()
                    q.ds_read("ds_read_b64_tr_b16", self.gaf(s_, m, ks).sub(2 * h, 2), self.VA[c % 3],
                              m * 18432 + (32 * ks + 16 * h) * 288 + 32 * fb, lds=(GR[c % 3], GR[c % 3] + GREG), tags=["a"])
                    out.append(q)
        return out
    def qx(self, c, pb, ks): return A((c % 3) * 48 + (pb * 3 + ks) * 4, 4) if False else A(64 + (c % 3) * 48 + (pb * 3 + ks) * 4, 4)

    def phase_g(self, p):
        o = self
        xl = lambda c: o.x_loads(lambda pb, ks: o.gx(c, pb, ks), 2, f"G{c}")
        o.put_now(p, o.g_dma(0)); o.put_now(p, xl(0))
        o.setup_late(p)
        o.put_now(p, o.g_dma(1)); o.put_now(p, xl(1))
        o.ST.stamp(p)
        p.wait(vm=("tag", "G0")); p.barrier()
        o.ST.stamp(p)
        for q in o.g_reads(0, 0, 0): p.extend(q)
        p.wait(lgkm=0)
        gi = 0
        for c in range(9):
            if c + 2 < 9:
                dq, xq = o.g_dma(c + 2), xl(c + 2)
            elif c == 7:
                dq = o.q_dma(0)
                q = Seg(); q.s("s_sub_u32", o.sxoff, o.sxoff, 18 * 1024)
                xq = [q]
            else:
                dq, xq = o.q_dma(1), []
            for fb in range(9):
                s_ = gi % 2
                mf = Seg()
                for m in range(2):
                    for pb in range(4):
                        for ks in range(2):
                            cin = 0 if (c == 0 and ks == 0) else o.gacc(fb, m, pb)
                            mf.mfma(o.gacc(fb, m, pb), o.gaf(s_, m, ks), o.gx(c, pb, ks), cin)
                fl = []
                last = (c == 8 and fb == 8)
                g0 = 0
                if fb == 8 and not last:
                    q = Seg(); q.wait(vm=("tag", f"G{c+1}")); q.barrier()
                    fl += [(0, i) for i in q]; g0 = 1
                if not last:
                    nx = (c, fb + 1) if fb < 8 else (c + 1, 0)
                    for k, q in enumerate(o.g_reads(nx[0], nx[1], 1 - s_)):
                        fl += [(g0 + k // 2, i) for i in q]
                if dq: o.place(fl, dq.pop(0), 7)
                if xq: o.place(fl, xq.pop(0), 11)
                if not last:
                    q = Seg(); q.wait(lgkm=0); fl += [(15, i) for i in q]
                p.extend(weave(mf, fl)); gi += 1
            assert not dq and not xq
        o.ST.stamp(p)
        o.put_now(p, o.x_loads(lambda pb, ks: o.qx(0, pb, ks), 3, "Q0"))
        o.put_now(p, o.x_loads(lambda pb, ks: o.qx(1, pb, ks), 3, "Q1"))
        T = V(248, 8)
        for pb in range(4):
            pass
        vh = [o.t0, o.t1, o.t2, o.VH]
        for pb in range(4):
            p.v("v_add_u32", vh[pb], pb * 144 * 1024, o.V16)
        p.s("s_mul_i32", o.stmp2, o.shead, 9)
        for fb in range(9):
            p.s("s_add_u32", o.sloop, o.stmp2, fb)
            p.s("s_lshr_b32", o.stmp, o.sloop, 1)
            p.s("s_lshl_b32", o.stmp, o.stmp, 10)
            p.s("s_and_b32", o.sloop, o.sloop, 1)
            p.s("s_lshl_b32", o.sloop, o.sloop, 3)
            p.s("s_add_u32", o.stmp, o.stmp, o.sloop)
            p.s("s_add_u32", o.stmp, o.stmp, o.shb)
            for pb in range(4):
                g, u = o.gacc(fb, 0, pb), o.gacc(fb, 1, pb)
                if fb >= 7:
                    gg, uu = T.sub(0, 4), T.sub(4, 4)
                    for r in range(4): p.acc_read(gg[r], g[r])
                    for r in range(4): p.acc_read(uu[r], u[r])
                    g, u = gg, uu
                for r in range(4): p.v("v_max_f32", g[r], 0, g[r])
                for r in range(4): p.v("v_mul_f32", g[r], g[r], u[r])
                p.v("v_cvt_pk_bf16_f32", u[0], g[0], g[1])
                p.v("v_cvt_pk_bf16_f32", u[1], g[2], g[3])
                p.buf_store(u.sub(0, 2), vh[pb], o.sH, o.stmp, 0, tags=["hst"])
            if fb == 4: p.wait(vm=16)
        o.ST.stamp(p)

    def qacc(self, db, pb): return V(24 + (db * 4 + pb) * 4, 4)
    def qaf(self, s_, ks): return A(208 + s_ * 12 + ks * 4, 4)
    def sw_addr(self, p, regs, base):
        o = self
        p.v("v_lshrrev_b32", o.t0, 2, o.lane)
        p.v("v_and_b32", o.t1, 7, o.t0)
        p.v("v_lshlrev_b32", o.t0, 8, o.t0)
        p.v("v_and_b32", o.t2, 3, o.lane)
        p.v("v_lshl_add_u32", o.t0, o.t2, 3, o.t0)
        p.v("v_add_u32", o.t0, base, o.t0)
        for db in range(8):
            p.v("v_xor_b32", o.t2, db, o.t1)
            p.v("v_lshl_add_u32", regs[db], o.t2, 5, o.t0)
    def q_reads(self, c, db, s_):
        o = self; out = []
        regs, base = (o.VWlo, 40960) if QR[c] == 40960 else (o.VWhi, 110592)
        for ks in range(3):
            for h in range(2):
                q = Seg()
                q.ds_read("ds_read_b64_tr_b16", o.qaf(s_, ks).sub(2 * h, 2), regs[db], QR[c] - base + (32 * ks + 16 * h) * 256,
                          lds=(QR[c], QR[c] + QSZ), tags=["a"])
                out.append(q)
        return out
    def phase_q(self, p):
        o = self
        o.VWlo, o.VWhi = V(224, 8), V(232, 8)
        o.VKd, o.VVd = V(240), V(241)
        o.sw_addr(p, o.VWhi, 110592)
        f = Seg()
        for db in range(8): f.v("v_subrev_u32", o.VWlo[db], 110592 - 40960, o.VWhi[db])
        t0, t1, t2 = o.t0, o.t1, o.t2
        f.v("v_lshrrev_b32", t0, 4, o.lane)
        f.s("s_lshl_b32", o.stmp, o.sw, 2)
        f.v("v_add_u32", t0, o.stmp, t0)
        f.v("v_and_b32", t2, 15, o.lane)
        f.v("v_xor_b32", t1, t0, t2)
        f.v("v_lshlrev_b32", t1, 4, t1)
        f.v("v_lshl_add_u32", o.VKd, t0, 8, t1)
        f.v("v_and_b32", t1, 7, t0)
        f.v("v_lshlrev_b32", t1, 1, t1)
        f.v("v_xor_b32", t1, t1, t2)
        f.v("v_lshlrev_b32", t1, 4, t1)
        f.v("v_lshl_add_u32", o.VVd, t0, 8, t1)
        f.s("s_mov_b32", o.skvoff, 0)
        late = Seg()
        atomic = Seg()
        if hasattr(o, "q_fill"): o.q_fill(f, late, atomic)
        fq, lq = list(f), list(late)
        xl = lambda c: o.x_loads(lambda pb, ks: o.qx(c, pb, ks), 3, f"Q{c}")
        p.wait(vm=("tag", "Q0")); p.barrier()
        for q in o.q_reads(0, 0, 0): p.extend(q)
        p.wait(lgkm=0)
        gi = 0
        for c in range(6):
            if c + 2 < 6: dq, xq = o.q_dma(c + 2), xl(c + 2)
            else: dq, xq = o.kv_dma(c - 4), []
            if c == 0: hq_ = o.h_stores() if o.opt.get("hplan") in ("late5", "late4", "front") else []
            for db in range(8):
                s_ = gi % 2
                mf = Seg()
                for pb in range(4):
                    for ks in range(3):
                        cin = 0 if (c == 0 and ks == 0) else o.qacc(db, pb)
                        mf.mfma(o.qacc(db, pb), o.qaf(s_, ks), o.qx(c, pb, ks), cin)
                fl = []
                last = (c == 5 and db == 7)
                g0 = 0
                if db == 7 and not last:
                    q = Seg(); q.wait(vm=("tag", f"Q{c+1}")); q.barrier()
                    fl += [(0, i) for i in q]; g0 = 1
                if not last:
                    nx = (c, db + 1) if db < 7 else (c + 1, 0)
                    for k, q in enumerate(o.q_reads(nx[0], nx[1], 1 - s_)):
                        fl += [(g0 + k // 2, i) for i in q]
                spread = hasattr(o, "h_next") and o.opt.get("hplan", "spread") == "spread"
                if spread and c >= 4:
                    for g in (5, 9):
                        if dq: o.place(fl, dq.pop(0), g)
                    if db in (4, 6): o.place(fl, o.h_next(), 4)
                else:
                    if dq: o.place(fl, dq.pop(0), 5)
                    if spread and db == 6: o.place(fl, o.h_next(), 4)
                for g in (7, 9):
                    if xq: o.place(fl, xq.pop(0), g)
                hplan = o.opt.get("hplan", "spread")
                if hq_ and hplan == "late5" and c < 5 and db >= 6:
                    for g in (5, 8): o.place(fl, hq_.pop(0), g)
                if hq_ and hplan == "late4" and c < 4 and db >= 6:
                    for g in ((4, 7, 10) if db == 6 else (4, 8)): o.place(fl, hq_.pop(0), g)
                if hq_ and hplan == "front" and c == 0 and db < 5:
                    for g in (4, 6, 8, 10): o.place(fl, hq_.pop(0), g)
                if c == 5 and db == 0 and atomic: fl += [(3, i) for i in atomic]
                used = {g for g, _ in fl}
                for g in (3, 6, 8, 10):
                    if g in used or (g == 3 and g0): continue
                    src = fq if fq else (lq if c >= 4 else [])
                    for _ in range(2):
                        if src: fl.append((g, src.pop(0)))
                if not last:
                    q = Seg(); q.wait(lgkm=0); fl += [(11, i) for i in q]
                fl.sort(key=lambda x: x[0])
                p.extend(weave(mf, fl)); gi += 1
            assert not dq and not xq, (c, len(dq), len(xq))
            if o.opt.get("gstamps") and c < 5: o.ST.stamp(p)
        assert not hq_ and not fq and not lq, (len(fq), len(lq))
        o.ST.stamp(p)
        if hasattr(o, "after_q_main"): o.after_q_main(p)
        SC2 = V(20, 2)
        p.v("v_mov_b32", SC2[0], QSCALE); p.v("v_mov_b32", SC2[1], QSCALE)
        p.nop(5)
        for pb in range(4):
            for s2 in range(2):
                grp = [(o.qacc(2 * s_, pb), o.qacc(2 * s_ + 1, pb)) for s_ in (2 * s2, 2 * s2 + 1)]
                for a, b in grp:
                    for x in (a, b):
                        p.v("v_pk_mul_f32", x.sub(0, 2), x.sub(0, 2), SC2); p.v("v_pk_mul_f32", x.sub(2, 2), x.sub(2, 2), SC2)
                for a, b in grp:
                    p.v("v_cvt_pk_bf16_f32", a[0], a[0], a[1]); p.v("v_cvt_pk_bf16_f32", a[1], a[2], a[3])
                    p.v("v_cvt_pk_bf16_f32", a[2], b[0], b[1]); p.v("v_cvt_pk_bf16_f32", a[3], b[2], b[3])
                p.nop(0)
                for a, b in grp:
                    p.v("v_permlane32_swap_b32", a[0], a[2]); p.v("v_permlane32_swap_b32", a[1], a[3])
                for a, b in grp:
                    p.v("v_permlane16_swap_b32", a[0], a[2]); p.v("v_permlane16_swap_b32", a[1], a[3])
                if hasattr(o, "h_next") and o.opt.get("hplan", "spread") == "spread" and s2 == 0:
                    p.extend(o.h_next())
        o.ST.stamp(p)

    def alloc_attn(self):
        o = self
        o.SS = V(40, 16); o.NEG = V(72, 16); o.L_ = V(104, 16)
        o.PP = V(136, 8); o.ONES = V(144, 4); o.VK = V(14, 4); o.VV = V(2, 8)
        o.vflag, o.vz = V(10), V(11)
    def ts8(self, qb): return (self.SS if qb < 2 else self.L_).sub((qb % 2) * 8, 8)
    def Oacc(self, db, qb): return A((qb * 8 + db) * 4, 4)
    def KF(self, t, kb, ds): return A(128 + (t % 2) * 32 + (kb * 4 + ds) * 4, 4)
    def VF(self, t, db): return A(192 + (t % 2) * 32 + db * 4, 4)
    def qf(self, qb, ds): return self.qacc(2 * ds, qb)
    def k_reads(self, t):
        o = self; out = []
        slot = (t // 2) % 4
        for kb in range(2):
            for ds in range(4):
                q = Seg()
                q.ds_read("ds_read_b128", o.KF(t, kb, ds), o.VK[ds], KRING + slot * 16384 + ((t % 2) * 32 + 16 * kb) * 256,
                          lds=(KRING + slot * 16384, KRING + slot * 16384 + 16384), tags=["k"])
                out.append(q)
        return out
    def v_reads(self, t):
        o = self; out = []
        slot = (t // 2) % 4
        for db in range(8):
            for h in range(2):
                q = Seg()
                q.ds_read("ds_read_b64_tr_b16", o.VF(t, db).sub(2 * h, 2), o.VV[db], slot * 16384 + ((t % 2) * 32 + 16 * h) * 256,
                          lds=(VRING + slot * 16384, VRING + slot * 16384 + 16384), tags=["v"])
                out.append(q)
        return out
    def k_addr(self, p):
        o = self
        t0, t1, t2 = o.t0, o.t1, o.t2
        VK = V(14, 4)
        p.v("v_and_b32", t0, 15, o.lane)
        p.v("v_lshrrev_b32", t1, 4, o.lane)
        for ds in range(4):
            p.v("v_add_u32", t2, 4 * ds, t1)
            p.v("v_xor_b32", t2, t2, t0)
            p.v("v_lshlrev_b32", t2, 4, t2)
            p.v("v_lshl_add_u32", VK[ds], t0, 8, t2)
    def attn_addr(self, p):
        o = self
        for db in range(8): p.v("v_add_u32", o.VV[db], VRING - 40960, o.VWlo[db])
        for r in range(4): p.v("v_mov_b32", o.ONES[r], 0x3F803F80)

    def slot(self, u, qk=True, sm=True, pv=True, first_pv=False, kr=(), vr=(), dma=None, tail=(), extra=None, dma2=None):
        o = self; opt = o.opt
        rs = opt.get("rowsum", "mfma")
        mfq, mfp = Seg(), Seg(); fl = []
        un, up = u + 1, u - 1
        if qk:
            t, qb = un // 4, un % 4
            Sn = o.SS.sub((un % 2) * 8, 8)
            order = [(kb, ds) for kb in range(2) for ds in range(4)]
            if opt.get("qk_alt"): order = [(kb, ds) for ds in range(4) for kb in range(2)]
            for kb, ds in order:
                d = Sn.sub(kb * 4, 4)
                mfq.mfma(d, o.KF(t, kb, ds), o.qf(qb, ds), o.NEG.sub(qb * 4, 4) if ds == 0 else d)
        if pv:
            t, qb = up // 4, up % 4
            Pp = o.PP.sub((up % 2) * 4, 4)
            for db in range(8):
                mfp.mfma(o.Oacc(db, qb), o.VF(t, db), Pp, 0 if first_pv else o.Oacc(db, qb))
            if rs == "mfma":
                mfp.mfma(o.L_.sub(qb * 4, 4), o.ONES, Pp, 0 if first_pv else o.L_.sub(qb * 4, 4))
            if rs == "m4":
                lq = o.L_.sub(qb * 4, 4)
                q4 = Seg()
                q4.mfma4(lq, o.ONES.sub(0, 2), Pp.sub(0, 2), 0 if first_pv else lq)
                q4.mfma4(lq, o.ONES.sub(0, 2), Pp.sub(2, 2), lq)
                mfp.insert(4, q4[0]); mfp.append(q4[1])
        mf = Seg()
        if opt.get("mix") and qk and pv:
            mf.extend(mfq[0:4]); mf.extend(mfp[0:4]); mf.extend(mfq[4:8]); mf.extend(mfp[4:])
        else:
            mf.extend(mfq); mf.extend(mfp)
        n = len(mf)
        lds = list(kr) + list(vr)
        if opt.get("nolds"): lds_ = []
        else: lds_ = lds
        Sc, Pc = o.SS.sub((u % 2) * 8, 8), o.PP.sub((u % 2) * 4, 4)
        def E(i):
            q = Seg()
            if opt.get("noexp"): q.v("v_mov_b32", Sc[i], Sc[i])
            else: q.v("v_exp_f32", Sc[i], Sc[i])
            return list(q)
        def C(i):
            q = Seg(); q.v("v_cvt_pk_bf16_f32", Pc[i], Sc[2 * i], Sc[2 * i + 1]); return list(q)
        def AD(i, first=False):
            q = Seg(); lq = o.L_[(u % 4) * 4 + (i % 2)]
            q.v("v_add_f32", lq, lq, Sc[i]); return list(q)
        if n >= 16 and len(lds) <= 6:
            lds = lds_
            if rs == "valu":
                plan = ["L", "e", "L", "e", "L", "e", "e", "ca", "e", "e", "Da", "e", "e", "cc", "aa", "aa"]
                ei = ci = ai = 0
                plan = ["L", "e", "L", "e", "L", "e", "e", "cc", "e", "e", "D", "e", "e", "cc", "", ""]
                adds = {3: [0], 5: [], 7: [], 8: [], 10: [1, 2], 14: [3, 4, 5], 15: [6, 7]}
                for g in range(16):
                    for k in plan[g]:
                        if k == "L":
                            for _ in range(2):
                                if lds: fl += [(g, i) for i in lds.pop(0)]
                        elif k == "e" and sm: fl += [(g, i) for i in E(ei)]; ei += 1
                        elif k == "c" and sm: fl += [(g, i) for i in C(ci)]; ci += 1
                        elif k == "D" and dma is not None: o.place(fl, dma, g)
                if sm:
                    ap = opt.get("addpos", [2, 4, 7, 9, 14, 14, 15, 15])
                    for i in range(8): fl += [(max(ap[i], {0:1,1:3,2:5,3:6,4:8,5:9,6:11,7:12}[i] + 1), x) for x in AD(i)]
            else:
                plan = {0: "L", 1: "e", 2: "L", 3: "e", 4: "L", 5: "e", 6: "e", 7: "c", 8: "e", 9: "e", 10: "D", 11: "e", 12: "e", 13: "c"}
                if opt.get("aplan", 2) == 1 and dma2 is None and not extra:
                    plan = {0: "L", 1: "e", 2: "L", 3: "e", 4: "L", 5: "e", 6: "e", 7: "c", 8: "e", 9: "e", 10: "e", 11: "e", 12: "c", 14: "D"}
                if opt.get("aplan", 2) == 2 and dma2 is None and not extra:
                    plan = {0: "e", 1: "L", 2: "e", 3: "L", 4: "e", 5: "L", 6: "e", 7: "c", 8: "e", 9: "e", 10: "e", 11: "e", 12: "c", 14: "D"}
                if opt.get("aplan", 2) == 3 and dma2 is None and not extra:
                    plan = {0: "e", 1: "e", 2: "L", 3: "e", 4: "e", 5: "c", 6: "L", 7: "e", 8: "e", 9: "L", 10: "e", 11: "e", 12: "c", 14: "D"}
                if opt.get("aplan", 2) == 4 and dma2 is None and not extra:
                    plan = {0: "e", 1: "L", 2: "e", 3: "L", 4: "e", 5: "L", 6: "e", 7: "c", 8: "e", 9: "e", 10: "e", 11: "e", 12: "c", 15: "D"}
                if opt.get("aplan", 2) == 5 and dma2 is None and not extra:
                    plan = {0: "e", 1: "L", 2: "e", 3: "L", 4: "e", 5: "L", 6: "e", 7: "c", 9: "D", 10: "e", 11: "e", 12: "e", 13: "e", 14: "c"}
                if rs == "m4" and n == 18:
                    plan = {0: "L", 1: "e", 2: "L", 3: "e", 4: "L", 5: "e", 6: "e", 7: "c", 8: "e", 9: "e", 10: "D", 11: "e", 13: "e", 14: "c"}
                ei = ci = 0
                for g in range(n):
                    k = plan.get(g)
                    if k == "L":
                        for _ in range(2):
                            if lds: fl += [(g, i) for i in lds.pop(0)]
                    elif k == "e" and sm:
                        fl += [(g, i) for i in E(ei)]; ei += 1
                    elif k == "c" and sm:
                        fl += [(g, i) for i in C(ci) + C(ci + 1)]; ci += 2
                    elif k == "D" and dma is not None:
                        o.place(fl, dma, g)
            g_x = (15, 16) if n == 18 else (14, 15)
            if dma2 is not None: o.place(fl, dma2, g_x[1])
            for gi_, ex in zip(g_x, extra or []): fl += [(gi_, i) for i in ex]
            fl.sort(key=lambda x: x[0])
            fl += [(n - 1, i) for i in tail]
            return weave(mf, fl)
        out = Seg()
        for q in lds: out.extend(q)
        if dma is not None: o.put_now(out, [dma])
        if sm:
            for i in range(8): out.extend(E(i))
            out.nop(0)
            for i in range(4): out.extend(C(i))
            if rs == "valu":
                for i in range(8): out.extend(AD(i))
            out.nop(1)
        out.extend(mf)
        for ex in (extra or []): out.extend(ex)
        out.extend(tail)
        return out

    def prepass_max(self, p, t, first):
        o = self
        for qb in range(4):
            for kb in range(2):
                d = o.ts8(qb).sub(kb * 4, 4)
                for ds in range(4):
                    p.mfma(d, o.KF(t, kb, ds), o.qf(qb, ds), 0 if ds == 0 else d)
        p.nop(7)
        for qb in range(4):
            s8 = o.ts8(qb)
            m = o.NEG[qb * 4]
            p.v("v_max3_f32", s8[0], s8[0], s8[1], s8[2])
            p.v("v_max3_f32", s8[3], s8[3], s8[4], s8[5])
            p.v("v_max3_f32", s8[0], s8[0], s8[6], s8[7])
            if first: p.v("v_max_f32", m, s8[0], s8[3])
            else: p.v("v_max3_f32", m, m, s8[0], s8[3])
    def finish_max(self, p):
        o = self
        for qb in range(4):
            m, t = o.NEG[qb * 4], o.NEG[qb * 4 + 1]
            p.v("v_mov_b32", t, m); p.nop(1)
            p.v("v_permlane32_swap_b32", m, t); p.nop(1)
            p.v("v_max_f32", m, m, t)
            p.v("v_mov_b32", t, m); p.nop(1)
            p.v("v_permlane16_swap_b32", m, t); p.nop(1)
            p.v("v_max_f32", m, m, t)
            p.v("v_sub_f32", m, 0, m)
            for r in range(1, 4): p.v("v_mov_b32", o.NEG[qb * 4 + r], m)

    def loop_slot(self, u, first_pv=False, inloop=False, extra=None, early=False):
        o = self
        j = (u + 5) // 8
        pos = (u + 5) % 8
        tk, ik = (u + 1) // 4 + 1, (u + 1) % 4
        tv, iv = (u - 1) // 4 + 1, (u - 1) % 4
        kr = o.k_reads(tk)[2 * ik: 2 * ik + 2]
        vr = o.v_reads(tv)[4 * iv: 4 * iv + 4]
        dma = o.kv_dma(j + 2)[pos]; dma2 = None
        if early:
            d_ = o.kv_dma(j + 2)
            dma, dma2 = (d_[2 * pos], d_[2 * pos + 1]) if pos < 4 else (None, None)
            if inloop and pos == 3 and j % 4 == 2 and hasattr(o, "w2_touch") and not o.opt.get("now2touch"):
                dma2.extend(o.w2_touch())
        if not early and inloop and pos == 7 and j % 4 == 2 and hasattr(o, "w2_touch") and not o.opt.get("now2touch"):
            dma.extend(o.w2_touch())
        w = Seg()
        if u % 4 in (2, 0): w.wait(lgkm=0)
        if pos == 7:
            w.wait(vm=("tag", f"A{(j + 1) % 4}")); w.barrier()
        s_ = o.slot(u, first_pv=first_pv, kr=kr, vr=vr, dma=dma, tail=list(w), extra=extra, dma2=dma2)
        if inloop == 2 and pos == 7 and j % 4 == 2 and hasattr(o, 'h_signal'): o.h_signal(s_)
        return s_

    FLAG = 159744
    def phase_attn(self, mega=False):
        o = self; nm = o.name
        o.alloc_attn()
        pro = Seg(); p = pro
        o.attn_addr(p)
        p.s("s_mov_b32", o.sredo, 0)
        if mega: p.s("s_mov_b32", o.shflag, 2 if o.opt.get("hplan") == "loop" else 1)
        vflag, vz = o.vflag, o.vz
        p.v("v_mov_b32", vflag, o.FLAG)
        p.v("v_mov_b32", vz, 0)
        p.ds_write("ds_write_b32", vflag, vz, lds=(o.FLAG, o.FLAG + 4))
        p.wait(lgkm=0)
        p.wait(vm=("tag", "A0")); p.barrier()
        if mega and o.opt.get("codewarm2", 1): o.code_warm2(p)
        for q in o.k_reads(0): p.extend(q)
        p.wait(lgkm=0)
        sp_ = mega and o.opt.get("hplan", "spread") == "spread"
        if sp_: p.extend(o.h_next())
        o.prepass_max(p, 0, True)
        if sp_: p.extend(o.h_next())
        o.finish_max(p)
        mp = Seg(); p = mp
        p.label(nm + "_amain")
        if o.opt.get("rowsum") in ("valu", "none"):
            for r in range(16): p.v("v_mov_b32", o.L_[r], 0.0 if o.opt.get("rowsum") == "valu" else 1.0)
        d2 = o.kv_dma(2)
        vr0, kr1, vr1 = o.v_reads(0), o.k_reads(1), o.v_reads(1)
        hs = o.h_stores() if (mega and o.opt.get("hplan", "spread") == "attn") else []
        early_ = bool(hs)
        def X(u):
            pos = (u + 5) % 8
            if not (3 <= u <= 34) or pos < 4 or not hs: return None
            return [hs.pop(0) for _ in range(2 if pos == 4 else 1)]
        p.extend(o.slot(-1, qk=True, sm=False, pv=False, kr=kr1[0:2], vr=vr0[0:8], dma=d2[0]))
        o.put_now(p, [d2[1]])
        p.nop(3)
        w = Seg(); w.wait(lgkm=0)
        p.extend(o.slot(0, qk=True, sm=True, pv=False, kr=kr1[2:4], vr=vr0[8:16], dma=d2[2], tail=list(w)))
        o.put_now(p, [d2[3], d2[4]])
        p.extend(o.slot(1, first_pv=True, kr=kr1[4:6], vr=vr1[0:4], dma=d2[5]))
        w = Seg(); w.wait(lgkm=0); w.wait(vm=("tag", "A1")); w.barrier()
        o.put_now(p, [d2[6]])
        p.extend(o.slot(2, first_pv=True, kr=kr1[6:8], vr=vr1[4:8], dma=d2[7], tail=list(w)))
        p.extend(o.loop_slot(3, first_pv=True, early=early_))
        p.extend(o.loop_slot(4, first_pv=True, early=early_))
        base, nit = 5, 8
        if mega and early_:
            for u in range(5, 37): p.extend(o.loop_slot(u, inloop=1, extra=X(u), early=(early_ and u <= 34)))
            base, nit = 37, 7
        assert not hs
        p.s("s_mov_b32", o.sloop, 0)
        b1, b2 = Seg(), Seg()
        b1.label(nm + "_aloop")
        hl = o.h_stores() if (mega and o.opt.get("hplan") == "loop") else []
        for k in range(32):
            ex = [hl.pop(0)] if (hl and (k * 20) // 32 != ((k + 1) * 20) // 32) else None
            (b1 if k <= 27 else b2).extend(o.loop_slot(base + k, inloop=2, extra=ex))
            if k == 27:
                b1.s("s_cmp_eq_u32", o.sloop, nit - 1)
                b1.branch("s_cbranch_scc1", nm + "_adone")
        if mega and o.opt.get("hplan") == "loop":
            assert not hl
            for r in o.sHS: b2.s("s_mov_b32", r, 0x7FF00000)
        b2.s("s_add_u32", o.sloop, o.sloop, 1)
        b2.branch("s_branch", nm + "_aloop")
        chk = Seg(); p = chk
        p.label(nm + "_adone")
        o.ST.stamp(p)
        if mega: o.pre_chk(p)
        p.wait(lgkm=0)
        p.nop(7)
        if o.opt.get("rowsum") in ("valu", "m4"):
            for qb in range(4):
                m, t = o.L_[qb * 4], o.L_[qb * 4 + 1]
                if o.opt.get("rowsum") == "valu": p.v("v_add_f32", m, m, t)
                p.v("v_mov_b32", t, m); p.nop(1)
                p.v("v_permlane32_swap_b32", m, t); p.nop(1)
                p.v("v_add_f32", m, m, t)
                p.v("v_mov_b32", t, m); p.nop(1)
                p.v("v_permlane16_swap_b32", m, t); p.nop(1)
                p.v("v_add_f32", m, m, t)
        if mega: o.attn_epilogue(p)
        p.s("s_mov_b32", o.stmp, LTHR)
        p.v("v_mov_b32", vz, 0)
        for qb in range(4):
            p.v("v_cmp_nlt_f32", VCC, o.L_[qb * 4], o.stmp)
            p.nop(1)
            p.v("v_cndmask_b32", vz, vz, 1, VCC) if False else p.v("v_cndmask_b32_e64", vz, vz, 1, VCC)
        p.ds_write("ds_or_b32", vflag, vz, lds=(o.FLAG + 8, o.FLAG + 12))
        p.wait(vm=("tag", "kvdma") if mega else 0, lgkm=0); p.barrier()
        p.ds_read("ds_read_b32", vz, vflag)
        p.wait(lgkm=0)
        p.v("v_readfirstlane_b32", o.stmp, vz)
        p.nop(3)
        p.s("s_xor_b32", o.stmp2, o.sredo, 1)
        p.s("s_and_b32", o.stmp, o.stmp, o.stmp2)
        p.s("s_cmp_lg_u32", o.stmp, 0)
        p.branch("s_cbranch_scc1", nm + "_afall")
        epi = Seg(); p = epi
        if mega: p = Seg()
        RL = V(24, 4); T = V(32, 64)
        for qb in range(4): p.v("v_rcp_f32", RL[qb], o.L_[qb * 4])
        VO = V(28, 4)
        for qb in range(4): p.v("v_add_u32", VO[qb], qb * 128 * 1024, o.V16)
        k = 0
        for qb in range(4):
            for s_ in range(4):
                t = T.sub((k % 4) * 16, 16); k += 1
                a, b = o.Oacc(2 * s_, qb), o.Oacc(2 * s_ + 1, qb)
                for r in range(4): p.acc_read(t[r], a[r])
                for r in range(4): p.acc_read(t[4 + r], b[r])
                for r in range(8): p.v("v_mul_f32", t[r], t[r], RL[qb])
                for r in range(4): p.v("v_cvt_pk_bf16_f32", t[8 + r], t[2 * r], t[2 * r + 1])
                p.buf_store(t.sub(8, 4), VO[qb], o.sO, o.sob, 1024 * s_)
        if o.ST.on and not mega:
            o.ST.stamp(p); p.wait(vm=0); o.ST.stamp(p); o.ST.dump(p, o.pws, o.sw)
        p.endpgm()
        fb = Seg(); p = fb
        p.label(nm + "_afall")
        p.wait(vm=0)
        p.s("s_mov_b32", o.sredo, 1)
        for qb in range(4): p.v("v_mov_b32", o.NEG[qb * 4], 0xFF800000)
        p.s("s_mov_b32", o.skvoff, 0)
        p.s("s_mov_b32", o.sloop, 0)
        fl_ = Seg(); p = fl_
        p.label(nm + "_afloop")
        for i in range(4):
            p.s("s_add_u32", M0, o.sm1, KRING + 4096 * i); p.nop(0)
            p.buf_dma(o.VKd, o.sK, o.skvoff, 0, lds=(KRING, KRING + 16384))
            p.s("s_add_u32", o.skvoff, o.skvoff, 4096)
        p.wait(vm=0); p.barrier()
        for tt in range(2):
            for q in o.k_reads(tt): p.extend(q)
            p.wait(lgkm=0)
            o.prepass_max(p, tt, False)
        p.barrier()
        p.s("s_add_u32", o.sloop, o.sloop, 1)
        p.s("s_cmp_lt_u32", o.sloop, 32)
        p.branch("s_cbranch_scc1", nm + "_afloop")
        f2 = Seg(); p = f2
        o.finish_max(p)
        p.s("s_mov_b32", o.skvoff, 0)
        o.put_now(p, o.kv_dma(0)); o.put_now(p, o.kv_dma(1))
        p.wait(vm=("tag", "A0")); p.barrier()
        for q in o.k_reads(0): p.extend(q)
        p.wait(lgkm=0)
        p.branch("s_branch", nm + "_amain")
        return dict(pro=pro, mp=mp, b1=b1, b2=b2, chk=chk, epi=epi, fb=fb, fl=fl_, f2=f2)

def gen_main(name="main_kernel", stamps=False, opt=None):
    k = K1(name, stamps, opt)
    a = Seg()
    k.setup(a); k.phase_g(a); k.phase_q(a)
    d = k.phase_attn()
    end = Seg(); end.label(name + "_end"); end.endpgm()
    head = list(a) + list(d["pro"]) + list(d["mp"])
    loop = list(d["b1"]) + list(d["b2"])
    t1 = head + loop + loop + list(d["b1"]) + list(d["chk"]) + list(d["epi"])
    t2 = head + loop + list(d["b1"]) + list(d["chk"]) + list(d["fb"]) + list(d["fl"]) * 2 + list(d["f2"]) + list(d["mp"]) + loop + list(d["b1"]) + list(d["chk"]) + list(d["epi"])
    resolve_waits(t1 + t2)
    if not (opt or {}).get("nocheck"):
        check(t1, name + ":normal"); check(t2, name + ":fallback")
    return kernel_text(name, render([a, d["pro"], d["mp"], d["b1"], d["b2"], d["chk"], d["epi"], d["fb"], d["fl"], d["f2"], end]),
                       vgpr=512, accum=256, sgpr=100)

if __name__ == "__main__":
    t = gen_main(); print(len(t), t.count("\n"))
```

```python
from common import *
from k_gemm2 import lane_tr_addr, dma288_voffs
import k_main
from k_main import K1, GR, GREG, QR, QSZ, KRING, VRING, QSCALE, LTHR

REG2 = 36864
KS = 131072
C_XN, C_H, C_O, C_PART = 0, 1, 2, 3
SPIN_MAX = 1 << 18

class Mega(K1):
    def __init__(self, name, stamps=False, opt=None):
        super().__init__(name, stamps, opt)
        self.px, self.pwo, self.pwd, self.pout, self.pdbg = S(62, 2), S(64, 2), S(66, 2), S(68, 2), S(70, 2)
        self.sDbg = S(72, 4)
        self.sX = S(76, 4)
        self.sW2, self.sB2, self.sPart = S(16, 4), S(20, 4), S(32, 4)
        self.sOut = S(80, 4)
        self.ssig, self.sP2, self.sN = S(84), S(85), S(86)
        self.swoff, self.sboff, self.spart = S(87), S(88), S(89)
        self.scnt = S(90)
        self.stoff = S(47)
        self.shflag = S(60)
        self.swqt = S(61)
        self.hpos = 6
        self.vpoll2 = V(22)
        self.sHS = [S(92), S(93), S(94), S(95), S(59)]
        self.lab = 0
        self.SC = self.opt.get("sc", "sc1")
        self.SCS = self.opt.get("scs", self.SC)

    def L(self, s):
        self.lab += 1
        return f"{self.name}_{s}{self.lab}"

    def raw(self, p, text):
        p.add(Ins(text, "other"))
    def signal(self, p, sP, slot, vt, inc=1):
        o = self; skip = o.L("sig")
        p.s("s_cmp_lg_u32", o.sw, 0)
        p.branch("s_cbranch_scc1", skip)
        p.s("s_lshl_b32", o.scnt, sP, 3)
        p.s("s_add_u32", o.scnt, o.scnt, slot)
        p.s("s_lshl_b32", o.scnt, o.scnt, 2)
        o.raw(p, f"v_mov_b32 {vt[0]}, {o.scnt}")
        o.raw(p, f"v_mov_b32 {vt[1]}, {inc}")
        o.raw(p, "s_mov_b64 exec, 1")
        o.raw(p, f"buffer_atomic_add {vt[1]}, {vt[0]}, {o.sDbg}, 0 offen sc1")
        o.raw(p, "s_mov_b64 exec, -1")
        p.label(skip)
    def sample_o(self, p, vs):
        o = self
        p.s("s_lshl_b32", o.scnt, o.sP2, 5)
        p.s("s_add_u32", o.scnt, o.scnt, 4 * C_O)
        p.v("v_mov_b32", vs[0], o.scnt)
        p.buf_load(vs[1], vs[0], o.sDbg, 0, 0, flags="sc1", tags=["osample"])
    def await_o(self, p, vt, presampled=False):
        o = self
        p.s("s_lshl_b32", o.stmp2, o.ssig, 3)
        o.await_(p, o.sP2, C_O, 8, vt, field=o.stmp2, presampled=presampled)
    def await_(self, p, sP, slot, target, vt, field=None, presampled=False):
        o = self; loop, chk, done = o.L("poll"), o.L("pchk"), o.L("got")
        p.s("s_cmp_lg_u32", o.sw, 0)
        p.branch("s_cbranch_scc1", done)
        if not presampled:
            p.s("s_lshl_b32", o.scnt, sP, 3)
            p.s("s_add_u32", o.scnt, o.scnt, slot)
            p.s("s_lshl_b32", o.scnt, o.scnt, 2)
            o.raw(p, f"v_mov_b32 {vt[0]}, {o.scnt}")
        o.raw(p, f"s_mov_b32 {o.scnt}, {SPIN_MAX}")
        def test(v):
            o.raw(p, f"v_readfirstlane_b32 {o.stmp}, {v}")
            o.raw(p, "s_nop 3")
            if field is not None:
                o.raw(p, f"s_lshr_b32 {o.stmp}, {o.stmp}, {field}")
                o.raw(p, f"s_and_b32 {o.stmp}, {o.stmp}, 0xff")
            o.raw(p, f"s_cmp_ge_u32 {o.stmp}, {target}")
        if o.opt.get("poll2") and not presampled:
            vb = V(vt[1].i + 1) if o.opt.get("poll2") else None
            vb = o.vpoll2
            fin = o.L("pdone")
            o.raw(p, f"buffer_load_dword {vt[1]}, {vt[0]}, {o.sDbg}, 0 offen sc1")
            p.label(loop)
            o.raw(p, f"s_sleep {o.opt.get('poll2')}")
            o.raw(p, f"buffer_load_dword {vb}, {vt[0]}, {o.sDbg}, 0 offen sc1")
            o.raw(p, "s_waitcnt vmcnt(1)")
            test(vt[1])
            o.raw(p, f"s_cbranch_scc1 {fin}")
            o.raw(p, f"s_sleep {o.opt.get('poll2')}")
            o.raw(p, f"buffer_load_dword {vt[1]}, {vt[0]}, {o.sDbg}, 0 offen sc1")
            o.raw(p, "s_waitcnt vmcnt(1)")
            test(vb)
            o.raw(p, f"s_cbranch_scc1 {fin}")
            o.raw(p, f"s_sub_u32 {o.scnt}, {o.scnt}, 1")
            o.raw(p, f"s_cmp_lg_u32 {o.scnt}, 0")
            o.raw(p, f"s_cbranch_scc1 {loop}")
            p.label(fin)
        else:
            if presampled: o.raw(p, f"s_branch {chk}")
            p.label(loop)
            o.raw(p, f"buffer_load_dword {vt[1]}, {vt[0]}, {o.sDbg}, 0 offen sc1")
            o.raw(p, "s_waitcnt vmcnt(0)")
            p.label(chk)
            test(vt[1])
            o.raw(p, f"s_cbranch_scc1 {done}")
            o.raw(p, f"s_sleep {o.opt.get('psleep', 1)}")
            o.raw(p, f"s_sub_u32 {o.scnt}, {o.scnt}, 1")
            o.raw(p, f"s_cmp_lg_u32 {o.scnt}, 0")
            o.raw(p, f"s_cbranch_scc1 {loop}")
        p.label(done)
        p.barrier()

    def setup(self, p):
        o = self
        guard(p, 256, o.name + "_end")
        if o.ST.on:
            p.add(Ins("s_memrealtime s[100:101]", "other"))
        for r, k in ((o.px, "x"), (o.pws, "ws"), (o.pwg, "wg"), (o.pwu, "wu"), (o.pwq, "wq"), (o.pdbg, "dbg"), (o.pk, "k"), (o.pv, "v"),
                     (o.pwo, "wo"), (o.pwd, "wd"), (o.pout, "out")):
            p.s_load(r, S(0, 2), KA[k])
        wave_id(p, o.sw, o.lane)
        p.v("v_and_b32", o.lane, 63, V(0))
        if o.opt.get("codewarm", 1) == 2: o.code_warm(p, o.name, o.name + "_adone", 128)
        o.ST.stamp(p)
        if o.ST.on:
            p.add(Ins("v_writelane_b32 v0, s100, 63", "other"))
        p.s("s_and_b32", o.stmp, S(2), 7)
        p.s("s_lshl_b32", o.stmp, o.stmp, 2)
        p.s("s_bfe_u32", o.stmp2, S(2), 0x20003)
        p.s("s_add_u32", o.shead, o.stmp, o.stmp2)
        p.s("s_lshr_b32", o.sP, S(2), 5)
        p.s("s_mul_i32", o.sm9, o.sw, 9216)
        p.s("s_lshl_b32", o.sm1, o.sw, 10)
        p.wait(lgkm=0)
        make_srd(p, o.sX, o.px, SZ["x"])
        make_srd(p, o.sXN, o.pws, SZ_XN, add=WS_XN)
        make_srd(p, o.sDbg, o.pdbg, 256)
        RAW = V(24, 20)
        va, vs = V(44), V(45)
        o.ln_issue(p, RAW, va, vs)
        p.v("v_lshlrev_b32", o.V16, 4, o.lane)
        p.s("s_cmp_lt_u32", o.sw, 2)
        p.s("s_cselect_b32", o.sGU[0], o.pwg[0], o.pwu[0])
        p.s("s_cselect_b32", o.sGU[1], o.pwg[1], o.pwu[1])
        p.s("s_mov_b32", o.sGU[2], SZ["wg"])
        p.s("s_mov_b32", o.sGU[3], 0x20000)
        p.s("s_and_b32", o.stmp, o.sw, 1)
        p.s("s_mul_i32", o.sgoff, o.stmp, 32 * 9216)
        p.s("s_mul_i32", o.stmp, o.shead, 288)
        p.s("s_add_u32", o.sgoff, o.sgoff, o.stmp)
        dma288_voffs(p, o.VD, o.lane, o.t0, o.t1, o.t2, 9216, o.stmp)
        early = o.opt.get("g0early", 0)
        if early: o.put_now(p, o.g_dma(0))
        make_srd(p, o.sWq, o.pwq, SZ["wq"])
        lane_tr_addr(p, o.VA[0], o.lane, o.t0, o.t1, 288)
        p.v("v_add_u32", o.VA[1], GR[1], o.VA[0])
        p.v("v_add_u32", o.VA[2], GR[2], o.VA[0])
        for ks in range(3):
            p.v("v_add_u32", o.VX[ks], ks * KS, o.V16)
        p.s("s_lshl_b32", o.stmp, o.sP, 4)
        p.s("s_lshl_b32", o.stmp2, o.sw, 2)
        p.s("s_add_u32", o.stmp, o.stmp, o.stmp2)
        p.s("s_lshl_b32", o.sxoff, o.stmp, 10)
        p.s("s_mov_b32", o.shb, o.sxoff)
        p.s("s_mov_b32", o.sob, o.sxoff)
        o.setup_late(p)
        lnskip2 = o.L("lnskip")
        p.s("s_cmp_ge_u32", S(2), 128)
        p.branch("s_cbranch_scc1", lnskip2)
        ln = Seg()
        o.ln_compute(ln, RAW, vs)
        p.extend(ln)
        if o.opt.get("lnstamps"): o.ST.stamp(p)
        o.raw(p, "s_waitcnt vmcnt(0)")
        if o.opt.get("lnstamps"): o.ST.stamp(p)
        p.barrier()
        p.s("s_lshr_b32", o.stmp2, S(2), 4)
        o.signal(p, o.stmp2, C_XN, (V(46), V(47)))
        p.label(lnskip2)
        o.ST.stamp(p)
        if o.opt.get("codewarm", 1) == 1: o.code_warm(p, o.name, o.name + o.opt.get("cwend", "_aloop"), 128)
        if o.opt.get("tlbwarm"): o.tlb_warm(p)
        if not early: o.put_now(p, o.g_dma(0))
        o.put_now(p, o.g_dma(1))
        if o.opt.get("wqstart"): o.touch_wq_start(p)
        o.await_(p, o.sP, C_XN, 16, (V(46), V(47)))
        o.ST.stamp(p)

    def code_addr(self, p, va, lo, hi, nwave_bits, sidx, forward=False):
        o = self; here = o.L("pc")
        sp = S(96, 2) if not o.ST.on else S(92, 2)
        o.raw(p, f"s_getpc_b64 {sp}")
        p.label(here)
        if forward:
            o.raw(p, f"s_add_u32 {sp[0]}, {sp[0]}, {lo}-{here}")
            o.raw(p, f"s_addc_u32 {sp[1]}, {sp[1]}, 0")
        else:
            o.raw(p, f"s_sub_u32 {sp[0]}, {sp[0]}, {here}-{lo}")
            o.raw(p, f"s_subb_u32 {sp[1]}, {sp[1]}, 0")
        o.raw(p, f"s_mul_i32 {o.stmp}, {sidx}, ((({hi}-{lo})+127)/128+{(1 << nwave_bits) - 1})/{1 << nwave_bits}")
        o.raw(p, f"v_min_u32 {va[0]}, ((({hi}-{lo})+127)/128+{(1 << nwave_bits) - 1})/{1 << nwave_bits}-1, {o.lane}")
        o.raw(p, f"v_add_u32 {va[0]}, {o.stmp}, {va[0]}")
        o.raw(p, f"v_lshlrev_b32 {va[0]}, 7, {va[0]}")
        o.raw(p, f"v_min_u32 {va[0]}, {hi}-{lo}-4, {va[0]}")
        o.raw(p, f"v_mov_b32 {va[1]}, {sp[1]}")
        o.raw(p, f"v_add_co_u32 {va[0]}, vcc, {sp[0]}, {va[0]}")
        o.raw(p, "s_nop 1")
        o.raw(p, f"v_addc_co_u32 {va[1]}, vcc, 0, {va[1]}, vcc")
    def code_warm(self, p, lo, hi, first):
        o = self; skip = o.L("cw")
        p.s("s_cmp_lt_u32", S(2), first)
        p.branch("s_cbranch_scc1", skip)
        p.s("s_sub_u32", o.stmp2, S(2), first)
        p.s("s_lshr_b32", o.stmp2, o.stmp2, 3)
        p.s("s_lshl_b32", o.stmp2, o.stmp2, 2)
        p.s("s_add_u32", o.stmp2, o.stmp2, o.sw)
        va = V(62, 2)
        o.code_addr(p, va, lo, hi, 6, o.stmp2)
        p.add(Ins(f"global_load_dword a197, {va}, off", "vmld", [("a", 197)], va.regs(), tags=["cw"]))
        p.label(skip)

    def code_warm2(self, p):
        o = self
        p.s("s_lshr_b32", o.stmp2, S(2), 3)
        p.s("s_lshl_b32", o.stmp2, o.stmp2, 2)
        p.s("s_add_u32", o.stmp2, o.stmp2, o.sw)
        va = V(254, 2)
        o.code_addr(p, va, o.name + "_adone", o.name + "_afall", 7, o.stmp2, forward=True)
        p.add(Ins(f"global_load_dword v253, {va}, off", "vmld", [("v", 253)], va.regs(), tags=["cw"]))
    def tlb_warm(self, p):
        o = self; skip = o.L("tlb")
        step = o.opt.get("tlbstep", 1 << 21)
        p.s("s_cmp_lt_u32", S(2), 128)
        p.branch("s_cbranch_scc1", skip)
        srd = S(96, 4) if not o.ST.on else S(92, 4)
        vt = V(60)
        p.v("v_mul_u32_u24", vt, step >> 8, o.lane)
        p.v("v_lshlrev_b32", vt, 8, vt)
        k = 0
        for ptr, size in ((o.pws, 0x3640000), (o.pk, SZ["k"]), (o.pv, SZ["v"]), (o.pwq, SZ["wq"]), (o.pwo, SZ["wo"]), (o.pwd, SZ["wd"]), (o.pout, SZ["out"])):
            make_srd(p, srd, ptr, size)
            for base in range(0, size, 64 * step):
                p.s("s_mov_b32", o.stmp, base)
                p.buf_load(A(200 + k), vt, srd, o.stmp, 0, tags=["tlb"]); k += 1
        p.label(skip)

    def ln_issue(self, p, RAW, va, vs):
        o = self; t0, t1, t2 = o.t0, o.t1, o.t2
        p.v("v_lshrrev_b32", t0, 4, o.lane)
        p.s("s_lshl_b32", o.stmp2, o.sw, 2)
        p.v("v_add_u32", t0, o.stmp2, t0)
        p.v("v_and_b32", t1, 3, o.lane)
        p.v("v_bfe_u32", t2, o.lane, 2, 2)
        p.v("v_mul_u32_u24", va, 1152, t0)
        p.v("v_lshl_add_u32", va, t1, 3, va)
        p.v("v_lshl_add_u32", va, t2, 6, va)
        vb = V(48); xf = o.opt.get("xflags", "")
        p.v("v_cmp_gt_u32", VCC, 2, t2)
        p.v("v_mov_b32", V(49), 0x7FFF0000)
        p.nop(0)
        p.v("v_cndmask_b32", vb, V(49), va, VCC)
        skip = o.L("lnskip")
        p.s("s_cmp_ge_u32", S(2), 128)
        p.branch("s_cbranch_scc1", skip)
        p.s("s_mul_i32", o.stmp, S(2), 16 * 1152)
        for i in range(4):
            p.buf_load(RAW.sub(4 * i, 2), va, o.sX, o.stmp, 256 * i, flags=xf, tags=["ln"])
            p.buf_load(RAW.sub(4 * i + 2, 2), va, o.sX, o.stmp, 256 * i + 32, flags=xf, tags=["ln"])
        p.buf_load(RAW.sub(16, 2), vb, o.sX, o.stmp, 1024, flags=xf, tags=["ln"])
        p.buf_load(RAW.sub(18, 2), vb, o.sX, o.stmp, 1056, flags=xf, tags=["ln"])
        if o.opt.get("xnpre"):
            p.s("s_lshl_b32", o.stmp, S(2), 10)
            p.v("v_mov_b32", V(61), 0)
            p.buf_load(A(198), V(61), o.sXN, o.stmp, 0, tags=["pre"])
            p.buf_load(A(199), V(61), o.sDbg, 0, 0, flags="sc1", tags=["pre"])
        p.label(skip)
        p.v("v_lshlrev_b32", vs, 17, t2)
        p.v("v_lshl_add_u32", vs, t0, 4, vs)
        p.v("v_lshl_add_u32", vs, t1, 8, vs)
        p.v("v_cndmask_b32", V(50), V(49), vs, VCC)
        p.v("v_cndmask_b32_e64", V(52), 0, 1.0, VCC)
        p.v("v_mov_b32", V(53), V(52))

    def ln_compute(self, p, RAW, vs):
        o = self
        F = V(56, 40); ACC = V(96, 4); M = V(100, 2); O_ = V(104, 20)
        smask = o.stmp
        p.s("s_mov_b32", smask, 0xFFFF0000)
        p.wait(vm=("tag", "ln"))
        if o.opt.get("lnstamps"): o.ST.stamp(p)
        for d in range(20):
            p.v("v_lshlrev_b32", F[2 * d], 16, RAW[d])
            p.v("v_and_b32", F[2 * d + 1], smask, RAW[d])
        def pk(op, d, a, b, c=None, mods=""):
            if c is None: p.v(op, d, a, b, mods=mods)
            else: p.v(op, d, a, b, c, mods=mods)
        pk("v_pk_add_f32", ACC.sub(0, 2), F.sub(0, 2), F.sub(2, 2))
        pk("v_pk_add_f32", ACC.sub(2, 2), F.sub(4, 2), F.sub(6, 2))
        for d in range(4, 20):
            a = ACC.sub(2 * (d % 2), 2)
            pk("v_pk_add_f32", a, a, F.sub(2 * d, 2))
        pk("v_pk_add_f32", ACC.sub(0, 2), ACC.sub(0, 2), ACC.sub(2, 2))
        p.nop(0)
        p.v("v_add_f32", ACC[0], ACC[0], ACC[1])
        def rowreduce(x):
            for sh in (8, 4, 2, 1):
                p.nop(1)
                p.v("v_add_f32_dpp", x, x, x, mods=f"row_ror:{sh} row_mask:0xf bank_mask:0xf")
        rowreduce(ACC[0])
        p.v("v_mul_f32", M[0], -1.0 / 576.0, ACC[0])
        p.v("v_mov_b32", M[1], M[0])
        p.nop(0)
        for d in range(20):
            pk("v_pk_add_f32", F.sub(2 * d, 2), F.sub(2 * d, 2), M)
        for d in range(16, 20):
            pk("v_pk_mul_f32", F.sub(2 * d, 2), F.sub(2 * d, 2), V(52, 2))
        pk("v_pk_mul_f32", ACC.sub(0, 2), F.sub(0, 2), F.sub(0, 2))
        pk("v_pk_mul_f32", ACC.sub(2, 2), F.sub(2, 2), F.sub(2, 2))
        for d in range(2, 20):
            a = ACC.sub(2 * (d % 2), 2)
            pk("v_pk_fma_f32", a, F.sub(2 * d, 2), F.sub(2 * d, 2), a)
        pk("v_pk_add_f32", ACC.sub(0, 2), ACC.sub(0, 2), ACC.sub(2, 2))
        p.nop(0)
        p.v("v_add_f32", ACC[0], ACC[0], ACC[1])
        rowreduce(ACC[0])
        p.v("v_mov_b32", ACC[1], 1e-5)
        p.v("v_fmac_f32", ACC[1], 1.0 / 576.0, ACC[0])
        p.v("v_sqrt_f32", ACC[2], ACC[1])
        p.nop(0)
        p.v("v_rcp_f32", M[0], ACC[2])
        p.nop(0)
        p.v("v_mov_b32", M[1], M[0])
        p.nop(0)
        for d in range(20):
            pk("v_pk_mul_f32", F.sub(2 * d, 2), F.sub(2 * d, 2), M)
        for d in range(20):
            p.v("v_cvt_pk_bf16_f32", O_[d], F[2 * d], F[2 * d + 1])
        p.s("s_lshl_b32", o.stmp, S(2), 10)
        for i in range(5):
            p.buf_store(O_.sub(4 * i, 4), vs if i < 4 else V(50), o.sXN, o.stmp, 0, flags=o.SC)
            if i < 4: p.s("s_add_u32", o.stmp, o.stmp, 4 * KS)

    def touch_weights(self, p):
        o = self; t0, t1, t2 = o.t0, o.t1, o.t2
        J = V(54)
        fl = o.opt.get("tflags", "")
        p.v("v_and_b32", t1, 3, o.lane)
        p.v("v_lshlrev_b32", t1, 7, t1)
        p.v("v_min_u32", t1, 284, t1)
        p.s("s_mul_i32", o.stmp, o.sP, 72)
        p.s("s_and_b32", o.stmp2, o.sw, 1)
        p.s("s_mul_i32", o.stmp2, o.stmp2, 36)
        p.s("s_add_u32", o.stmp, o.stmp, o.stmp2)
        p.s("s_mul_i32", o.stmp, o.stmp, 9216)
        p.s("s_mul_i32", o.stmp2, o.shead, 288)
        p.s("s_add_u32", o.stmp, o.stmp, o.stmp2)
        for i in range(3):
            p.v("v_lshrrev_b32", t0, 2, o.lane)
            p.v("v_add_u32", t0, 16 * i, t0)
            p.v("v_min_u32", t0, 35, t0)
            p.v("v_mul_u32_u24", t0, 9216, t0)
            p.v("v_add_u32", t2, t0, t1)
            p.buf_load(A(192 + i), t2, o.sGU, o.stmp, 0, flags=fl, tags=["touch"])
        p.v("v_lshrrev_b32", t0, 1, o.lane)
        p.v("v_min_u32", t0, 17, t0)
        p.v("v_lshlrev_b32", t0, 13, t0)
        p.v("v_and_b32", t1, 1, o.lane)
        p.v("v_lshl_add_u32", t2, t1, 7, t0)
        p.s("s_mul_i32", o.stmp, o.sP, 72)
        p.s("s_mul_i32", o.stmp2, o.sw, 18)
        p.s("s_add_u32", o.stmp, o.stmp, o.stmp2)
        p.s("s_lshl_b32", o.stmp, o.stmp, 13)
        p.s("s_lshl_b32", o.stmp2, o.shead, 8)
        p.s("s_add_u32", o.stmp, o.stmp, o.stmp2)
        p.buf_load(A(195), t2, o.sWq, o.stmp, 0, flags=fl, tags=["touch"])

    def setup_late(self, p):
        o = self
        make_srd(p, o.sH, o.pws, SZ_H, add=WS_H)
        make_srd(p, o.sO, o.pws, SZ_O, add=WS_O)
        p.s("s_lshr_b32", o.stmp, o.shead, 1)
        p.s("s_lshl_b32", o.stmp, o.stmp, 19)
        make_srd(p, o.sK, o.pk, 524288, add=o.stmp)
        make_srd(p, o.sV, o.pv, 524288, add=o.stmp)
        t0, t1, t2 = o.t0, o.t1, o.t2
        p.v("v_lshrrev_b32", t0, 4, o.lane)
        p.s("s_lshl_b32", o.stmp, o.sw, 2)
        p.v("v_add_u32", t0, o.stmp, t0)
        p.v("v_and_b32", t1, 7, t0)
        p.v("v_lshlrev_b32", t1, 1, t1)
        p.v("v_and_b32", t2, 15, o.lane)
        p.v("v_xor_b32", t1, t1, t2)
        p.v("v_lshlrev_b32", t1, 4, t1)
        p.v("v_lshl_add_u32", o.VWd, t0, 13, t1)
        p.s("s_lshl_b32", o.sqoff, o.shead, 8)
        p.s("s_lshl_b32", o.stmp, o.shead, 19)
        p.s("s_add_u32", o.sob, o.sob, o.stmp)
        p.s("s_and_b32", o.ssig, S(2), 7)
        if o.opt.get("sigrot", 0):
            p.s("s_add_u32", o.stmp, o.ssig, 1)
            p.s("s_and_b32", o.stmp, o.stmp, 3)
            p.s("s_cmp_lt_u32", o.ssig, 4)
            p.s("s_cselect_b32", o.ssig, o.stmp, o.ssig)
        p.s("s_lshr_b32", o.sP2, S(2), 5)
        p.s("s_bfe_u32", o.sN, S(2), 0x20003)

    def x_loads(self, dst, nks, tag, rewind=None):
        o = self; out = []
        for ks in range(nks):
            for pb in range(4):
                q = Seg()
                q.buf_load(dst(pb, ks), o.VX[ks], o.sXN, o.sxoff, 1024 * pb, flags=o.SC, tags=[tag])
                out.append(q)
        out[-1].s("s_add_u32", o.sxoff, o.sxoff, KS * nks)
        return out

    def touch_kv(self):
        o = self; out = []
        q = Seg()
        vt = V(248)
        q.s("s_and_b32", o.stmp, o.shead, 1)
        q.s("s_lshl_b32", o.stmp, o.stmp, 3)
        q.s("s_add_u32", o.stmp, o.stmp, o.sP)
        q.s("s_lshl_b32", o.stmp, o.stmp, 2)
        q.s("s_add_u32", o.stmp, o.stmp, o.sw)
        q.s("s_lshl_b32", o.stmp2, o.stmp, 13)
        q.v("v_lshlrev_b32", vt, 7, o.lane)
        out.append(q)
        q = Seg(); q.buf_load(V(249), vt, o.sK, o.stmp2, 0, flags=o.opt.get("tflags", ""), tags=["touch"]); out.append(q)
        q = Seg(); q.buf_load(V(250), vt, o.sV, o.stmp2, 0, flags=o.opt.get("tflags", ""), tags=["touch"]); out.append(q)
        return out

    def touch_wq_start(self, p):
        o = self; skip = o.L("wqs")
        p.s("s_cmp_lt_u32", S(2), 128)
        p.branch("s_cbranch_scc1", skip)
        vt = V(60)
        p.s("s_sub_u32", o.stmp, o.sP, 4)
        p.s("s_lshl_b32", o.stmp, o.stmp, 2)
        p.s("s_add_u32", o.stmp, o.stmp, o.sw)
        p.s("s_mul_i32", o.stmp, o.stmp, 36 * 8192)
        p.s("s_lshl_b32", o.stmp2, o.shead, 8)
        p.s("s_add_u32", o.stmp, o.stmp, o.stmp2)
        for i in range(2):
            p.v("v_lshrrev_b32", vt, 1, o.lane)
            p.v("v_min_u32", vt, 17, vt)
            p.v("v_add_u32", vt, 18 * i, vt)
            p.v("v_lshlrev_b32", vt, 13, vt)
            p.v("v_and_b32", V(61), 1, o.lane)
            p.v("v_lshl_add_u32", vt, V(61), 7, vt)
            p.buf_load(A(195 + i), vt, o.sWq, o.stmp, 0, flags=o.opt.get("wqsflags", ""), tags=["touch"])
        p.label(skip)

    def touch_wq(self, part, nparts):
        o = self; out = []
        vt = V(249)
        rows = -(-18 // nparts)
        q = Seg()
        q.v("v_lshrrev_b32", vt, 1, o.lane)
        q.v("v_min_u32", vt, rows - 1, vt)
        q.v("v_add_u32", vt, part * rows, vt)
        q.v("v_min_u32", vt, 17, vt)
        q.v("v_lshlrev_b32", vt, 13, vt)
        q.v("v_and_b32", V(250), 1, o.lane)
        q.v("v_lshl_add_u32", vt, V(250), 7, vt)
        if part == 0:
            q.s("s_mul_i32", o.stmp, o.sP, 72)
            q.s("s_mul_i32", o.stmp2, o.sw, 18)
            q.s("s_add_u32", o.stmp, o.stmp, o.stmp2)
            q.s("s_lshl_b32", o.stmp, o.stmp, 13)
            q.s("s_lshl_b32", o.stmp2, o.shead, 8)
            q.s("s_add_u32", o.swqt, o.stmp, o.stmp2)
        out.append(q)
        q = Seg(); q.buf_load(V(251 + part % 2), vt, o.sWq, o.swqt, 0, tags=["touch"]); out.append(q)
        return out

    def phase_g(self, p):
        o = self
        xl = lambda c: o.x_loads(lambda pb, ks: o.gx(c, pb, ks), 2, f"G{c}")
        o.put_now(p, xl(0)); o.put_now(p, xl(1))
        if o.opt.get("wtouch"): o.touch_weights(p)
        p.wait(vm=("tag", "G0")); p.barrier()
        o.ST.stamp(p)
        for q in o.g_reads(0, 0, 0): p.extend(q)
        p.wait(lgkm=0)
        gi = 0
        for c in range(9):
            if c + 2 < 9:
                dq, xq = o.g_dma(c + 2), xl(c + 2)
            elif c == 7:
                dq = o.q_dma(0)
                q = Seg(); q.s("s_sub_u32", o.sxoff, o.sxoff, 18 * KS)
                xq = [q]
            else:
                dq, xq = o.q_dma(1), o.x_loads(lambda pb, ks: o.qx(0, pb, ks), 3, "Q0")
            c0_, np_ = o.opt.get("wqtouch", (5, 1))
            tq = o.touch_wq(c - c0_, np_) if c0_ <= c < c0_ + np_ else []
            for fb in range(9):
                s_ = gi % 2
                mf = Seg()
                for m in range(2):
                    for pb in range(4):
                        for ks in range(2):
                            cin = 0 if (c == 0 and ks == 0) else o.gacc(fb, m, pb)
                            mf.mfma(o.gacc(fb, m, pb), o.gaf(s_, m, ks), o.gx(c, pb, ks), cin)
                fl = []
                last = (c == 8 and fb == 8)
                g0 = 0
                if fb == 8 and not last:
                    q = Seg(); q.wait(vm=("tag", f"G{c+1}")); q.barrier()
                    fl += [(0, i) for i in q]; g0 = 1
                if not last:
                    nx = (c, fb + 1) if fb < 8 else (c + 1, 0)
                    for k, q in enumerate(o.g_reads(nx[0], nx[1], 1 - s_)):
                        fl += [(g0 + k // 2, i) for i in q]
                if dq: o.place(fl, dq.pop(0), 7)
                if xq: o.place(fl, xq.pop(0), 10)
                if c == 8 and xq: o.place(fl, xq.pop(0), 13)
                if tq and fb >= 7:
                    q = tq.pop(0)
                    if len(q) > 1:
                        fl += [(5 + k // 2 + (1 if k >= 4 else 0), i) for k, i in enumerate(q)]
                    else: o.place(fl, q, 13)
                if not last:
                    q = Seg(); q.wait(lgkm=0); fl += [(15, i) for i in q]
                fl.sort(key=lambda x: x[0])
                p.extend(weave(mf, fl)); gi += 1
            assert not dq and not xq and not tq, (c, len(dq), len(xq))
            if o.opt.get("gstamps") and c < 8: o.ST.stamp(p)
        o.ST.stamp(p)
        o.put_now(p, o.x_loads(lambda pb, ks: o.qx(1, pb, ks), 3, "Q1"))
        vh = None
        p.s("s_mul_i32", o.stmp2, o.shead, 9)
        p.s("s_lshr_b32", o.stmp2, o.stmp2, 1)
        p.s("s_lshl_b32", o.stmp2, o.stmp2, 17)
        p.s("s_add_u32", o.shb, o.shb, o.stmp2)
        odd, join = o.L("godd"), o.L("gjoin")
        p.s("s_bitcmp1_b32", o.shead, 0)
        p.branch("s_cbranch_scc1", odd)
        ev, od = Seg(), Seg()
        o.g_epilogue(ev, 0, vh); ev.branch("s_branch", join)
        od.label(odd); o.g_epilogue(od, 1, vh); od.label(join)
        o.alt = (ev, od)
        return ev, od

    def hq(self, i): return V(152 + 4 * i, 4)
    def g_epilogue(self, p, par, vh):
        o = self
        T = V(248, 8)
        def hblock(fb, pb, dst):
            g, u = o.gacc(fb, 0, pb), o.gacc(fb, 1, pb)
            if fb >= 7:
                gg, uu = T.sub(0, 4), T.sub(4, 4)
                for r in range(4): p.acc_read(gg[r], g[r])
                for r in range(4): p.acc_read(uu[r], u[r])
                g, u = gg, uu
            for r in range(4): p.v("v_max_f32", g[r], 0, g[r])
            p.v("v_pk_mul_f32", g.sub(0, 2), g.sub(0, 2), u.sub(0, 2))
            p.v("v_pk_mul_f32", g.sub(2, 2), g.sub(2, 2), u.sub(2, 2))
            p.v("v_cvt_pk_bf16_f32", dst[0], g[0], g[1])
            p.v("v_cvt_pk_bf16_f32", dst[1], g[2], g[3])
        A_, B_, C_, D_ = 0, 4, 8, 12
        if par == 0:
            plan = [(4, B_, 0), (5, B_, 2), (0, A_, 0), (1, A_, 2), (2, C_, 0), (3, C_, 2), (6, D_, 0), (7, D_, 2), (8, None, 0)]
            delta = {A_: 0, C_: KS, B_: 2 * KS, D_: 3 * KS, "S": 4 * KS}
        else:
            plan = [(4, B_, 2), (3, B_, 0), (5, D_, 0), (6, D_, 2), (1, A_, 0), (2, A_, 2), (7, C_, 0), (8, C_, 2), (0, None, 0)]
            delta = {A_: KS, B_: 2 * KS, D_: 3 * KS, C_: 4 * KS, "S": 8}
        spread = o.opt.get("hplan", "spread") == "spread"
        for k, key in enumerate((A_, B_, C_, D_, "S")):
            p.s("s_add_u32", o.sHS[k], o.shb, delta[key])
        nb = 0
        for fb, slot, half in plan:
            for pb in range(4):
                dst = o.hq(slot + pb).sub(half, 2) if slot is not None else V(216 + 2 * pb, 2)
                hblock(fb, pb, dst); nb += 1
                if spread and nb in (9, 14, 19, 24, 29, 34):
                    p.extend(o.h_store_item(o.HORDER[(nb - 9) // 5]))
    HORDER = [("B", 0), ("B", 1), ("B", 2), ("B", 3), ("A", 0), ("A", 1),
              ("A", 2), ("A", 3), ("C", 0), ("C", 1),
              ("C", 2), ("C", 3), ("D", 0), ("D", 1),
              ("D", 2), ("D", 3), ("S", 0), ("S", 1), ("S", 2), ("S", 3)]
    def h_store_item(self, key):
        o = self; slot, pb = key
        q = Seg()
        if slot == "S":
            q.buf_store(V(216 + 2 * pb, 2), o.V16, o.sH, o.sHS[4], 1024 * pb, flags=o.SCS, tags=["hst"])
        else:
            k = "ABCD".index(slot)
            q.buf_store(o.hq(4 * k + pb), o.V16, o.sH, o.sHS[k], 1024 * pb, flags=o.SCS, tags=["hst"])
        return q
    def h_next(self):
        q = self.h_store_item(self.HORDER[self.hpos]); self.hpos += 1; return q
    def h_block(self, p, cls):
        o = self; skip = o.L("hblk")
        p.s("s_bitcmp1_b32", S(2), 3)
        br = p.branch("s_cbranch_scc1" if cls == 0 else "s_cbranch_scc0", skip)
        blk = Seg()
        for q in o.h_stores(): blk.extend(q)
        for i in blk: i.meta = i.meta; i.tags = set(i.tags) | {f"cls{cls}"}
        p.extend(blk)
        p.label(skip)
    def after_q_main(self, p):
        if self.opt.get("hplan") == "split2": self.h_block(p, 1)
    def h_stores(self):
        o = self; out = []
        for k, slot in enumerate((0, 4, 8, 12)):
            for pb in range(4):
                q = Seg(); q.buf_store(o.hq(slot + pb), o.V16, o.sH, o.sHS[k], 1024 * pb, flags=o.SCS, tags=["hst"]); out.append(q)
        for pb in range(4):
            q = Seg(); q.buf_store(V(216 + 2 * pb, 2), o.V16, o.sH, o.sHS[4], 1024 * pb, flags=o.SCS, tags=["hst"]); out.append(q)
        return out

    def alloc_g2(self):
        o = self
        o.VD2, o.VA2, o.VB2 = V(242, 9), V(208, 4), V(212, 4)
        o.ACC2, o.AF2 = V(32, 144), V(176, 32)
    def g2_addr(self, p):
        o = self
        dma288_voffs(p, o.VD2, o.lane, o.t0, o.t1, o.t2, 1152, o.stmp)
    def g2_addr2(self, p):
        o = self
        lane_tr_addr(p, o.VA2[0], o.lane, o.t0, o.t1, 288)
        for r in range(1, 4): p.v("v_add_u32", o.VA2[r], r * REG2, o.VA2[0])
    def bf2(self, c, pb, ks): return A(((2 + c % 4) * 64) % 256 + (pb * 4 + ks) * 4, 4)
    def rng2(self, c): return ((c % 4) * REG2, (c % 4) * REG2 + REG2)
    def g2_dma(self, c):
        o = self; out = []
        for j in range(9):
            q = Seg()
            q.s("s_add_u32", M0, o.sm9, (c % 4) * REG2 + 1024 * j)
            q.buf_dma(o.VD2[j], o.sW2, o.swoff, 0, flags=o.opt.get("w2flags", ""), tags=[f"c{c}"], lds=o.rng2(c))
            if j == 8: q.s("s_add_u32", o.swoff, o.swoff, 128 * 1152)
            out.append(q)
        return out
    def g2_b(self, c):
        o = self; out = []
        for ks in range(4):
            for pb in range(4):
                q = Seg(); q.buf_load(o.bf2(c, pb, ks), o.VB2[ks], o.sB2, o.sboff, 1024 * pb, flags=o.opt.get("bflags", o.SC), tags=[f"c{c}", f"b{c}"]); out.append(q)
        out[-1].s("s_add_u32", o.sboff, o.sboff, 4 * KS)
        return out
    def g2_reads(self, c, nb, s_):
        o = self; out = []
        for ks in range(4):
            for h in range(2):
                q = Seg()
                q.ds_read("ds_read_b64_tr_b16", o.AF2.sub(s_ * 16 + ks * 4 + 2 * h, 2), o.VA2[c % 4], (32 * ks + 16 * h) * 288 + 32 * nb,
                          lds=o.rng2(c), tags=["a"])
                out.append(q)
        return out
    def w2_srd(self, p):
        o = self
        p.s("s_and_b32", o.stmp, o.ssig, 3)
        p.s("s_mov_b32", o.stmp2, 1152 * 1152)
        p.s("s_cmp_lt_u32", o.ssig, 4)
        p.s("s_cselect_b32", o.stmp2, 1024 * 1152, o.stmp2)
        p.s("s_mul_i32", o.stmp, o.stmp, o.stmp2)
        p.s("s_cselect_b32", o.sW2[0], o.pwo[0], o.pwd[0])
        p.s("s_cselect_b32", o.sW2[1], o.pwo[1], o.pwd[1])
        p.s("s_add_u32", o.sW2[0], o.sW2[0], o.stmp)
        p.s("s_addc_u32", o.sW2[1], o.sW2[1], 0)
        p.s("s_mov_b32", o.sW2[2], o.stmp2)
        p.s("s_mov_b32", o.sW2[3], 0x20000)
        o.sw2t, o.VW2T = S(91), V(251)
        p.s("s_lshr_b32", o.stmp, S(2), 3)
        p.s("s_lshl_b32", o.stmp, o.stmp, 2)
        p.s("s_add_u32", o.stmp, o.stmp, o.sw)
        nl = o.opt.get("w2lines", 16)
        p.s("s_mul_i32", o.sw2t, o.stmp, nl * 128)
        p.v("v_min_u32", o.VW2T, nl - 1, o.lane)
        p.v("v_lshlrev_b32", o.VW2T, 7, o.VW2T)
    def w2_touch(self):
        o = self
        q = Seg()
        q.buf_load(V(252), o.VW2T, o.sW2, o.sw2t, 0, flags=o.opt.get("w2tflags", ""), tags=["touch"])
        q.s("s_add_u32", o.sw2t, o.sw2t, o.opt.get("w2lines", 16) * 128 * 128)
        return q

    def g2_setup(self, p, mode):
        o = self
        if mode == "s":
            make_srd(p, o.sB2, o.pws, SZ_O, add=WS_O)
            p.s("s_mul_i32", o.sboff, o.ssig, 32 * KS)
        else:
            make_srd(p, o.sB2, o.pws, SZ_H, add=WS_H)
            p.s("s_sub_u32", o.stmp, o.ssig, 4)
            p.s("s_mul_i32", o.sboff, o.stmp, 36 * KS)
        p.s("s_mov_b32", o.stoff, o.sboff)
        p.s("s_mul_i32", o.swoff, o.sw, 32 * 1152)
        p.s("s_mul_i32", o.stmp, o.sN, 288)
        p.s("s_add_u32", o.swoff, o.swoff, o.stmp)
        p.s("s_lshl_b32", o.stmp, o.sP2, 4)
        p.s("s_lshl_b32", o.stmp2, o.sw, 2)
        p.s("s_add_u32", o.stmp, o.stmp, o.stmp2)
        p.s("s_lshl_b32", o.stmp, o.stmp, 10)
        p.s("s_add_u32", o.sboff, o.sboff, o.stmp)
        for ks in range(4):
            p.v("v_add_u32", o.VB2[ks], ks * KS, o.V16)
        make_srd(p, o.sPart, o.pws, SZ_P, add=WS_P)
        p.s("s_lshl_b32", o.stmp, o.ssig, 5)
        p.s("s_lshl_b32", o.stmp2, o.sP2, 2)
        p.s("s_add_u32", o.stmp, o.stmp, o.stmp2)
        p.s("s_add_u32", o.stmp, o.stmp, o.sw)
        p.s("s_lshl_b32", o.stmp, o.stmp, 2)
        p.s("s_add_u32", o.stmp, o.stmp, o.sN)
        p.s("s_mul_i32", o.spart, o.stmp, 18432)

    def attn_epilogue(self, p):
        o = self
        RL = V(216, 4); VO = V(220, 4); T = V(152, 64); RP = V(22, 2)
        for qb in range(4): p.v("v_rcp_f32", RL[qb], o.L_[qb * 4])
        for s_ in range(4): p.v("v_add_u32", VO[s_], s_ * KS, o.V16)
        k = 0
        for qb in range(4):
            p.v("v_mov_b32", RP[0], RL[qb]); p.v("v_mov_b32", RP[1], RL[qb])
            for s_ in range(4):
                t = T.sub((k % 4) * 16, 16); k += 1
                a, b = o.Oacc(2 * s_, qb), o.Oacc(2 * s_ + 1, qb)
                for r in range(4): p.acc_read(t[r], a[r])
                for r in range(4): p.acc_read(t[4 + r], b[r])
                for r in range(4): p.v("v_pk_mul_f32", t.sub(2 * r, 2), t.sub(2 * r, 2), RP)
                for r in range(4): p.v("v_cvt_pk_bf16_f32", t[8 + r], t[2 * r], t[2 * r + 1])
                p.buf_store(t.sub(8, 4), VO[s_], o.sO, o.sob, 1024 * qb, flags=o.SCS, tags=["ost"])

    def h_signal(self, p):
        o = self; skip = o.L("hsig")
        if o.opt.get("hplan") == "loop": p.assert_drained("hst", window=(20, 2))
        else: p.assert_drained("hst")
        p.s("s_sub_u32", o.shflag, o.shflag, 1)
        p.s("s_cmp_lg_u32", o.shflag, 0)
        p.branch("s_cbranch_scc1", skip)
        o.signal(p, o.sP, C_H, (V(12), V(13)))
        p.label(skip)
    def q_fill(self, f, late, atomic):
        self.g2_addr(f)
        self.k_addr(late)
        self.w2_srd(atomic)
    def pre_chk(self, p):
        o = self
        p.s("s_lshl_b32", o.scnt, o.sP2, 5)
        p.s("s_add_u32", o.scnt, o.scnt, 4 * C_H)
        p.v("v_mov_b32", V(12), o.scnt)
        p.buf_load(V(13), V(12), o.sDbg, 0, 0, flags="sc1")
    def await_wave(self, p, vt, target):
        o = self; loop, done = o.L("wpoll"), o.L("wgot")
        o.raw(p, f"s_mov_b32 {o.scnt}, {SPIN_MAX}")
        p.label(loop)
        o.raw(p, f"v_readfirstlane_b32 {o.stmp}, {vt[1]}")
        o.raw(p, "s_nop 3")
        o.raw(p, f"s_cmp_ge_u32 {o.stmp}, {target}")
        o.raw(p, f"s_cbranch_scc1 {done}")
        o.raw(p, "s_sleep 2")
        o.raw(p, f"buffer_load_dword {vt[1]}, {vt[0]}, {o.sDbg}, 0 offen sc1")
        o.raw(p, "s_waitcnt vmcnt(0)")
        o.raw(p, f"s_sub_u32 {o.scnt}, {o.scnt}, 1")
        o.raw(p, f"s_cmp_lg_u32 {o.scnt}, 0")
        o.raw(p, f"s_cbranch_scc1 {loop}")
        p.label(done)

    def g2_touch_setup(self, p, mode):
        o = self
        o.VT2 = V(216)
        p.s("s_lshr_b32", o.stmp, S(2), 3)
        p.s("s_lshl_b32", o.stmp, o.stmp, 2)
        p.s("s_add_u32", o.stmp, o.stmp, o.sw)
        p.s("s_lshl_b32", o.stmp, o.stmp, 12)
        p.s("s_add_u32", o.stoff, o.stoff, o.stmp)
        p.s("s_add_u32", o.stoff, o.stoff, 2 * 4 * KS)
        p.v("v_min_u32", o.VT2, 31, o.lane)
        p.v("v_lshlrev_b32", o.VT2, 7, o.VT2)
    def g2_touch(self, c):
        o = self
        q = Seg()
        q.buf_load(V(217 + c % 4), o.VT2, o.sB2, o.stoff, 0, flags=o.opt.get("t2flags", ""), tags=["touch"])
        q.s("s_add_u32", o.stoff, o.stoff, 4 * KS)
        return q

    def phase_g2(self, mode):
        o = self
        p = Seg()
        nch = 8 if mode == "s" else 9
        vt = (V(12), V(13))
        touch = bool(o.opt.get("g2touch"))
        o.ST.stamp(p)
        o.g2_setup(p, mode)
        o.g2_addr2(p)
        if touch: o.g2_touch_setup(p, mode)
        ahead = o.opt.get("g2ahead", 10)
        items = {c: o.g2_dma(c) + o.g2_b(c) for c in range(nch)}
        queue = [q for c in range(2, nch) for q in items[c]]
        pre = o.opt.get("gpre", 0)
        if mode == "g":
            o.await_wave(p, vt, 32)
            if pre: o.put_now(p, items[0])
        elif pre:
            o.put_now(p, items[0][:9]); o.put_now(p, items[1][:9])
        presample = mode == "s" and o.opt.get("presample", 0) and not pre
        vs = (V(10), V(11))
        if presample:
            o.sample_o(p, vs)
            p.wait(vm=0)
        else:
            p.wait(vm=("tag", "ost"))
        p.barrier()
        if o.opt.get("finestamps"): o.ST.stamp(p)
        p.assert_drained("ost")
        p.s("s_lshr_b32", o.stmp, o.shead, 3)
        p.s("s_lshl_b32", o.stmp, o.stmp, 3)
        p.s("s_lshl_b32", o.stmp2, 1, o.stmp)
        o.signal(p, o.sP, C_O, vt, inc=o.stmp2)
        if mode == "g":
            if o.opt.get("finestamps"): o.ST.stamp(p); o.ST.stamp(p)
            if not pre: o.put_now(p, items[0][9:]); o.put_now(p, items[0][:9])
            o.put_now(p, items[1])
        elif o.opt.get("sorder", 0) == 1 and not pre:
            if o.opt.get("finestamps"): o.ST.stamp(p)
            o.await_o(p, vt)
            if o.opt.get("finestamps"): o.ST.stamp(p)
            o.put_now(p, items[0][9:]); o.put_now(p, items[0][:9]); o.put_now(p, items[1])
        else:
            if not pre: o.put_now(p, items[0][:9]); o.put_now(p, items[1][:9])
            if o.opt.get("finestamps"): o.ST.stamp(p)
            o.await_o(p, vs if presample else vt, presampled=bool(presample))
            if o.opt.get("finestamps"): o.ST.stamp(p)
            o.put_now(p, items[0][9:]); o.put_now(p, items[1][9:])
        if touch:
            o.put_now(p, [o.g2_touch(2), o.g2_touch(3)])
        o.ST.stamp(p)
        p.wait(vm=("tag", "c0")); p.barrier()
        o.ST.stamp(p)
        for q in o.g2_reads(0, 0, 0): p.extend(q)
        p.wait(lgkm=0)
        acc = lambda nb, pb: o.ACC2.sub((nb * 4 + pb) * 4, 4)
        PK = V(2, 16)
        def pack_store(pr, pb, k):
            q = Seg()
            d = PK.sub((k % 4) * 4, 4)
            a_, b_ = acc(2 * pr, pb), acc(2 * pr + 1, pb)
            q.v("v_cvt_pk_bf16_f32", d[0], a_[0], a_[1]); q.v("v_cvt_pk_bf16_f32", d[1], a_[2], a_[3])
            q.v("v_cvt_pk_bf16_f32", d[2], b_[0], b_[1]); q.v("v_cvt_pk_bf16_f32", d[3], b_[2], b_[3])
            q.buf_store(d, o.VST[pb], o.sPart, o.spart, pr * 1024, flags=o.SCS)
            return q
        o.VST = V(212, 4)
        gi = 0; kst = 0
        merge = o.opt.get("g2merge", 1)
        if merge:
            seq = [(c, nb) for c in range(nch - 2) for nb in range(9)] + [(c, nb) for nb in range(9) for c in (nch - 2, nch - 1)]
        else:
            seq = [(c, nb) for c in range(nch) for nb in range(9)]
        nfin = 18 if merge else 9
        fin0 = len(seq) - nfin
        plist = [(pr, pb) for pr in range(4) for pb in range(4)]
        sp = o.opt.get("pspace", 21)
        ppos = []; pos = 0
        for k in range(16):
            pos = max(pos + sp, (16 * nfin // 9) * 2 * (k // 4 + 1) + 4)
            if pos < 16 * nfin - 3: ppos.append(pos)
        quota = 0
        for idx, (c, nb) in enumerate(seq):
            if nb == 0 and (idx < fin0 or idx == fin0):
                quota = (30 if merge else 25 + (ahead if c == 0 else 0))
            s_ = gi % 2
            mf = Seg()
            for pb in range(4):
                for ks in range(4):
                    first = (c == 0 and ks == 0)
                    mf.mfma(acc(nb, pb), o.AF2.sub(s_ * 16 + ks * 4, 4), o.bf2(c, pb, ks), 0 if first else acc(nb, pb))
            fl = []
            last = idx == len(seq) - 1
            g0 = 0
            if not last:
                nx = seq[idx + 1]
                if nb == 8 and idx < fin0:
                    upto = nch - 1 if (merge and idx == fin0 - 1) else c + 1
                    q = Seg(); q.wait(vm=("tag", f"c{upto}")); q.barrier()
                    fl += [(0, i) for i in q]; g0 = 1
                elif nb == 8 and not merge:
                    q = Seg(); q.wait(vm=("tag", f"c{c+1}")); q.barrier()
                    fl += [(0, i) for i in q]; g0 = 1
                for k, q in enumerate(o.g2_reads(nx[0], nx[1], 1 - s_)):
                    fl += [(g0 + k // 2, i) for i in q]
            dense = merge or c == 0
            if merge and queue and nb in (0, 4):
                q = Seg(); q.wait(vm=40); fl.append((4, q[0]))
            for g in (((5, 8, 11, 14) if dense else (6, 9, 13)) if nb < 7 else (7, 11)):
                if queue and quota:
                    o.place(fl, queue.pop(0), g); quota -= 1
            if idx >= fin0:
                j = idx - fin0
                if j == 0:
                    assert not queue
                    for pb in range(4):
                        q = Seg(); q.v("v_add_u32", o.VST[pb], pb * 4096, o.V16); fl.append((6 + pb, q[0]))
                while ppos and ppos[0] < 16 * (j + 1):
                    at = ppos.pop(0) - 16 * j
                    pr, pb = plist.pop(0)
                    q = pack_store(pr, pb, kst); kst += 1
                    g = max(at - 2, 4)
                    for k, i in enumerate(q): fl.append((min(15, g + k // 2), i))
            if not last:
                q = Seg(); q.wait(lgkm=0); fl += [(15, i) for i in q]
            fl.sort(key=lambda x: x[0])
            p.extend(weave(mf, fl)); gi += 1
            if o.opt.get("chunkstamps") and nb == 8 and idx < fin0: o.ST.stamp(p)
        assert not queue
        p.nop(7)
        o.ST.stamp(p)
        for pr, pb in plist:
            p.extend(pack_store(pr, pb, kst)); kst += 1
        p.s("s_add_u32", o.spart, o.spart, 16384)
        for pp in range(2):
            d = PK.sub((kst % 4) * 4, 4); kst += 1
            a_, b_ = acc(8, 2 * pp), acc(8, 2 * pp + 1)
            p.v("v_cvt_pk_bf16_f32", d[0], a_[0], a_[1]); p.v("v_cvt_pk_bf16_f32", d[1], a_[2], a_[3])
            p.v("v_cvt_pk_bf16_f32", d[2], b_[0], b_[1]); p.v("v_cvt_pk_bf16_f32", d[3], b_[2], b_[3])
            p.buf_store(d, o.V16, o.sPart, o.spart, pp * 1024, flags=o.SCS)
        return p

    def phase_fin(self):
        o = self
        p = Seg()
        vt = (V(12), V(13))
        make_srd(p, o.sOut, o.pout, SZ["out"])
        lane = o.lane
        v8, vx, t0 = V(2), V(3), V(4)
        sPB, sPT = S(47), S(48)
        p.s("s_and_b32", sPB, o.ssig, 1)
        p.s("s_lshl_b32", sPB, sPB, 1)
        p.s("s_lshr_b32", o.stmp, o.sw, 1)
        p.s("s_add_u32", sPB, sPB, o.stmp)
        p.s("s_and_b32", sPT, o.sw, 1)
        sq = S(49)
        p.s("s_lshl_b32", sq, o.sP2, 2)
        p.s("s_lshr_b32", o.stmp, o.ssig, 1)
        p.s("s_add_u32", sq, sq, o.stmp)
        s0 = S(50)
        p.s("s_lshl_b32", o.stmp, sq, 2)
        p.s("s_add_u32", o.stmp, o.stmp, o.sN)
        p.s("s_mul_i32", s0, o.stmp, 18432)
        s1 = S(51)
        p.s("s_lshr_b32", o.stmp, sPB, 1)
        p.s("s_lshl_b32", o.stmp, o.stmp, 10)
        p.s("s_and_b32", o.stmp2, sPB, 1)
        p.s("s_lshl_b32", o.stmp2, o.stmp2, 3)
        p.s("s_add_u32", o.stmp, o.stmp, o.stmp2)
        p.s("s_add_u32", s1, s0, o.stmp)
        p.s("s_add_u32", s1, s1, 16384)
        p.s("s_lshl_b32", o.stmp, sPB, 12)
        p.s("s_add_u32", s0, s0, o.stmp)
        p.s("s_lshl_b32", o.stmp, sPT, 11)
        p.s("s_add_u32", s0, s0, o.stmp)
        p.v("v_and_b32", t0, 15, lane)
        p.v("v_mul_u32_u24", vx, 1152, t0)
        p.v("v_lshrrev_b32", t0, 4, lane)
        p.v("v_lshl_add_u32", vx, t0, 3, vx)
        sxo = S(52)
        p.s("s_lshl_b32", o.stmp, sq, 2)
        p.s("s_add_u32", o.stmp, o.stmp, sPB)
        p.s("s_mul_i32", sxo, o.stmp, 16 * 1152)
        p.s("s_mul_i32", o.stmp, o.sN, 288)
        p.s("s_add_u32", sxo, sxo, o.stmp)
        sxs = S(53)
        p.s("s_add_u32", sxs, sxo, 256)
        p.s("s_lshl_b32", o.stmp, sPT, 7)
        p.s("s_add_u32", sxo, sxo, o.stmp)
        X = V(160, 10)
        for b in range(4): p.buf_load(X.sub(2 * b, 2), vx, o.sX, sxo, 32 * b, tags=["x"])
        p.buf_load(X.sub(8, 2), vx, o.sX, sxs, 0, tags=["x"])
        p.wait(vm=0); p.barrier()
        p.s("s_add_u32", o.stmp2, o.sN, C_PART)
        sslot = S(54)
        p.s("s_mov_b32", sslot, o.stmp2)
        o.signal(p, o.sP2, sslot, vt)
        o.ST.stamp(p)
        o.await_(p, o.sP2, sslot, 8, vt)
        o.ST.stamp(p)
        PP = V(24, 64); PS = V(88, 16)
        SSTR = 32 * 4 * 18432
        for pr in range(2):
            for s_ in range(8):
                if pr == 0 and s_ == 0: p.s("s_mov_b32", o.stmp, s0)
                elif s_ == 0: p.s("s_add_u32", o.stmp, s0, 1024)
                else: p.s("s_add_u32", o.stmp, o.stmp, SSTR)
                p.buf_load(PP.sub((s_ * 2 + pr) * 4, 4), o.V16, o.sPart, o.stmp, 0, flags=o.SC, tags=[f"p{pr}"])
        for s_ in range(8):
            if s_ == 0: p.s("s_mov_b32", o.stmp, s1)
            else: p.s("s_add_u32", o.stmp, o.stmp, SSTR)
            p.buf_load(PS.sub(s_ * 2, 2), o.V16, o.sPart, o.stmp, 0, flags=o.SC, tags=["p2"])
        smask, slog = S(57), S(58)
        p.s("s_mov_b32", smask, 0xFFFF0000)
        p.s("s_mov_b32", slog, -1.4426950408889634)
        T = V(180, 16)
        def finish(xr, srcs, so, off):
            sa, ga, tmp = T.sub(0, 4), T.sub(4, 4), T.sub(8, 4)
            for grp, dst in ((range(0, 4), sa), (range(4, 8), ga)):
                for k, s_ in enumerate(grp):
                    r = srcs[s_]
                    d = dst if k == 0 else tmp
                    p.v("v_lshlrev_b32", d[0], 16, r[0]); p.v("v_and_b32", d[1], smask, r[0])
                    p.v("v_lshlrev_b32", d[2], 16, r[1]); p.v("v_and_b32", d[3], smask, r[1])
                    if k:
                        p.v("v_pk_add_f32", dst.sub(0, 2), dst.sub(0, 2), tmp.sub(0, 2))
                        p.v("v_pk_add_f32", dst.sub(2, 2), dst.sub(2, 2), tmp.sub(2, 2))
            ex = T.sub(12, 4)
            for e in range(4): p.v("v_mul_f32", ex[e], slog, ga[e])
            for e in range(4): p.v("v_exp_f32", ex[e], ex[e])
            p.nop(0)
            for e in range(4): p.v("v_add_f32", ex[e], 1.0, ex[e])
            for e in range(4): p.v("v_rcp_f32", ex[e], ex[e])
            p.nop(0)
            for e in range(4): p.v("v_mul_f32", ga[e], ga[e], ex[e])
            p.v("v_lshlrev_b32", tmp[0], 16, xr[0]); p.v("v_and_b32", tmp[1], smask, xr[0])
            p.v("v_lshlrev_b32", tmp[2], 16, xr[1]); p.v("v_and_b32", tmp[3], smask, xr[1])
            for e in range(4): p.v("v_fmac_f32", tmp[e], sa[e], ga[e])
            p.v("v_cvt_pk_bf16_f32", xr[0], tmp[0], tmp[1])
            p.v("v_cvt_pk_bf16_f32", xr[1], tmp[2], tmp[3])
            p.buf_store(xr, vx, o.sOut, so, off, flags=o.opt.get("outflags", "sc1"))
        for pr in range(2):
            p.wait(vm=("tag", f"p{pr}"))
            for hf in range(2):
                finish(X.sub(4 * pr + 2 * hf, 2), [PP.sub((s_ * 2 + pr) * 4 + 2 * hf, 2) for s_ in range(8)], sxo, 64 * pr + 32 * hf)
        done = o.L("fdone")
        p.s("s_cmp_eq_u32", sPT, 0)
        p.branch("s_cbranch_scc1", done)
        p.wait(vm=("tag", "p2"))
        finish(X.sub(8, 2), [PS.sub(s_ * 2, 2) for s_ in range(8)], sxs, 0)
        p.label(done)
        if o.ST.on:
            o.ST.stamp(p); o.raw(p, "s_waitcnt vmcnt(0)"); o.ST.stamp(p); o.ST.dump(p, o.pws, o.sw)
        p.endpgm()
        return p

def gen_mega(name="mega_kernel", stamps=False, opt=None):
    k = Mega(name, stamps, opt)
    a = Seg()
    k.setup(a)
    ev, od = k.phase_g(a)
    b = Seg()
    if (opt or {}).get("hplan", "spread") == "gepi":
        for q in k.h_stores(): b.extend(q)
    if (opt or {}).get("hplan") == "split2": k.h_block(b, 0)
    k.ST.stamp(b)
    k.alloc_g2()
    k.phase_q(b)
    d = k.phase_attn(mega=True)
    disp = Seg()
    disp.s("s_cmp_ge_u32", k.ssig, 4)
    disp.branch("s_cbranch_scc1", name + "_g2g")
    n0 = k.ST.n
    ps = k.phase_g2("s"); ps.branch("s_branch", name + "_fin")
    k.ST.n = n0
    pg = k.phase_g2("g"); pg.insert(0, Ins(name + "_g2g:", "label"))
    pf = k.phase_fin(); pf.insert(0, Ins(name + "_fin:", "label"))
    end = Seg(); end.label(name + "_end"); end.endpgm()
    loop = list(d["b1"]) + list(d["b2"])
    traces = []
    for gp in (ev, od):
        head = list(a) + list(gp) + list(b) + list(d["pro"]) + list(d["mp"])
        for g2 in (ps, pg):
            traces.append(head + loop + loop + list(d["b1"]) + list(d["chk"]) + list(disp) + list(g2) + list(pf))
    head = list(a) + list(ev) + list(b) + list(d["pro"]) + list(d["mp"])
    traces.append(head + loop + list(d["b1"]) + list(d["chk"]) + list(d["fb"]) + list(d["fl"]) * 2 + list(d["f2"]) + list(d["mp"]) + loop
                  + list(d["b1"]) + list(d["chk"]) + list(disp) + list(ps) + list(pf))
    if (opt or {}).get("hplan") == "split2":
        traces = [[i for i in t if f"cls{1 - c}" not in i.tags] for t in traces for c in (0, 1)]
    resolve_waits(traces)
    if not (opt or {}).get("nocheck"):
        for i, t in enumerate(traces): check(t, f"{name}:{i}")
    segs = [a, ev, od, b, d["pro"], d["mp"], d["b1"], d["b2"], d["chk"], disp, ps, pg, pf, d["fb"], d["fl"], d["f2"], end]
    return kernel_text(name, render(segs), vgpr=512, accum=256, sgpr=102)

if __name__ == "__main__":
    t = gen_mega(); print(len(t), t.count("\n"))
```

```python
from common import *
from k_gemm2 import lane_tr_addr, dma288_voffs
import k_main
from k_main import K1, GR, GREG, QR, QSZ, KRING, VRING, QSCALE, LTHR

REG2 = 36864
KS = 131072
C_XN, C_H, C_O, C_PART = 0, 1, 2, 3
SPIN_MAX = 1 << 18

class Mega(K1):
    def __init__(self, name, stamps=False, opt=None):
        super().__init__(name, stamps, opt)
        self.px, self.pwo, self.pwd, self.pout, self.pdbg = S(62, 2), S(64, 2), S(66, 2), S(68, 2), S(70, 2)
        self.sDbg = S(72, 4)
        self.sX = S(76, 4)
        self.sW2, self.sB2, self.sPart = S(16, 4), S(20, 4), S(32, 4)
        self.sOut = S(80, 4)
        self.ssig, self.sP2, self.sN = S(84), S(85), S(86)
        self.swoff, self.sboff, self.spart = S(87), S(88), S(89)
        self.scnt = S(90)
        self.stoff = S(47)
        self.shflag = S(60)
        self.swqt = S(61)
        self.hpos = 6
        self.vpoll2 = V(22)
        self.sHS = [S(92), S(93), S(94), S(95), S(59)]
        self.lab = 0
        self.SC = self.opt.get("sc", "sc1")
        self.SCS = self.opt.get("scs", self.SC)

    def L(self, s):
        self.lab += 1
        return f"{self.name}_{s}{self.lab}"

    def raw(self, p, text):
        p.add(Ins(text, "other"))
    def signal(self, p, sP, slot, vt, inc=1):
        o = self; skip = o.L("sig")
        p.s("s_cmp_lg_u32", o.sw, 0)
        p.branch("s_cbranch_scc1", skip)
        p.s("s_lshl_b32", o.scnt, sP, 3)
        p.s("s_add_u32", o.scnt, o.scnt, slot)
        p.s("s_lshl_b32", o.scnt, o.scnt, 2)
        o.raw(p, f"v_mov_b32 {vt[0]}, {o.scnt}")
        o.raw(p, f"v_mov_b32 {vt[1]}, {inc}")
        o.raw(p, "s_mov_b64 exec, 1")
        o.raw(p, f"buffer_atomic_add {vt[1]}, {vt[0]}, {o.sDbg}, 0 offen sc1")
        o.raw(p, "s_mov_b64 exec, -1")
        p.label(skip)
    def sample_o(self, p, vs):
        o = self
        p.s("s_lshl_b32", o.scnt, o.sP2, 5)
        p.s("s_add_u32", o.scnt, o.scnt, 4 * C_O)
        p.v("v_mov_b32", vs[0], o.scnt)
        p.buf_load(vs[1], vs[0], o.sDbg, 0, 0, flags="sc1", tags=["osample"])
    def await_o(self, p, vt, presampled=False):
        o = self
        p.s("s_lshl_b32", o.stmp2, o.ssig, 3)
        o.await_(p, o.sP2, C_O, 8, vt, field=o.stmp2, presampled=presampled)
    def await_(self, p, sP, slot, target, vt, field=None, presampled=False):
        o = self; loop, chk, done = o.L("poll"), o.L("pchk"), o.L("got")
        p.s("s_cmp_lg_u32", o.sw, 0)
        p.branch("s_cbranch_scc1", done)
        if not presampled:
            p.s("s_lshl_b32", o.scnt, sP, 3)
            p.s("s_add_u32", o.scnt, o.scnt, slot)
            p.s("s_lshl_b32", o.scnt, o.scnt, 2)
            o.raw(p, f"v_mov_b32 {vt[0]}, {o.scnt}")
        o.raw(p, f"s_mov_b32 {o.scnt}, {SPIN_MAX}")
        def test(v):
            o.raw(p, f"v_readfirstlane_b32 {o.stmp}, {v}")
            o.raw(p, "s_nop 3")
            if field is not None:
                o.raw(p, f"s_lshr_b32 {o.stmp}, {o.stmp}, {field}")
                o.raw(p, f"s_and_b32 {o.stmp}, {o.stmp}, 0xff")
            o.raw(p, f"s_cmp_ge_u32 {o.stmp}, {target}")
        if o.opt.get("poll2") and not presampled:
            vb = V(vt[1].i + 1) if o.opt.get("poll2") else None
            vb = o.vpoll2
            fin = o.L("pdone")
            o.raw(p, f"buffer_load_dword {vt[1]}, {vt[0]}, {o.sDbg}, 0 offen sc1")
            p.label(loop)
            o.raw(p, f"s_sleep {o.opt.get('poll2')}")
            o.raw(p, f"buffer_load_dword {vb}, {vt[0]}, {o.sDbg}, 0 offen sc1")
            o.raw(p, "s_waitcnt vmcnt(1)")
            test(vt[1])
            o.raw(p, f"s_cbranch_scc1 {fin}")
            o.raw(p, f"s_sleep {o.opt.get('poll2')}")
            o.raw(p, f"buffer_load_dword {vt[1]}, {vt[0]}, {o.sDbg}, 0 offen sc1")
            o.raw(p, "s_waitcnt vmcnt(1)")
            test(vb)
            o.raw(p, f"s_cbranch_scc1 {fin}")
            o.raw(p, f"s_sub_u32 {o.scnt}, {o.scnt}, 1")
            o.raw(p, f"s_cmp_lg_u32 {o.scnt}, 0")
            o.raw(p, f"s_cbranch_scc1 {loop}")
            p.label(fin)
        else:
            if presampled: o.raw(p, f"s_branch {chk}")
            p.label(loop)
            o.raw(p, f"buffer_load_dword {vt[1]}, {vt[0]}, {o.sDbg}, 0 offen sc1")
            o.raw(p, "s_waitcnt vmcnt(0)")
            p.label(chk)
            test(vt[1])
            o.raw(p, f"s_cbranch_scc1 {done}")
            o.raw(p, f"s_sleep {o.opt.get('psleep', 1)}")
            o.raw(p, f"s_sub_u32 {o.scnt}, {o.scnt}, 1")
            o.raw(p, f"s_cmp_lg_u32 {o.scnt}, 0")
            o.raw(p, f"s_cbranch_scc1 {loop}")
        p.label(done)
        p.barrier()

    def setup(self, p):
        o = self
        guard(p, 256, o.name + "_end")
        if o.ST.on:
            p.add(Ins("s_memrealtime s[100:101]", "other"))
        for r, k in ((o.px, "x"), (o.pws, "ws"), (o.pwg, "wg"), (o.pwu, "wu"), (o.pwq, "wq"), (o.pdbg, "dbg"), (o.pk, "k"), (o.pv, "v"),
                     (o.pwo, "wo"), (o.pwd, "wd"), (o.pout, "out")):
            p.s_load(r, S(0, 2), KA[k])
        wave_id(p, o.sw, o.lane)
        p.v("v_and_b32", o.lane, 63, V(0))
        if o.opt.get("codewarm", 1) == 2: o.code_warm(p, o.name, o.name + "_adone", 128)
        o.ST.stamp(p)
        if o.ST.on:
            p.add(Ins("v_writelane_b32 v0, s100, 63", "other"))
        p.s("s_and_b32", o.stmp, S(2), 7)
        p.s("s_lshl_b32", o.stmp, o.stmp, 2)
        p.s("s_bfe_u32", o.stmp2, S(2), 0x20003)
        p.s("s_add_u32", o.shead, o.stmp, o.stmp2)
        p.s("s_lshr_b32", o.sP, S(2), 5)
        p.s("s_mul_i32", o.sm9, o.sw, 9216)
        p.s("s_lshl_b32", o.sm1, o.sw, 10)
        p.wait(lgkm=0)
        make_srd(p, o.sX, o.px, SZ["x"])
        make_srd(p, o.sXN, o.pws, SZ_XN, add=WS_XN)
        make_srd(p, o.sDbg, o.pdbg, 256)
        RAW = V(24, 20)
        va, vs = V(44), V(45)
        o.ln_issue(p, RAW, va, vs)
        p.v("v_lshlrev_b32", o.V16, 4, o.lane)
        p.s("s_cmp_lt_u32", o.sw, 2)
        p.s("s_cselect_b32", o.sGU[0], o.pwg[0], o.pwu[0])
        p.s("s_cselect_b32", o.sGU[1], o.pwg[1], o.pwu[1])
        p.s("s_mov_b32", o.sGU[2], SZ["wg"])
        p.s("s_mov_b32", o.sGU[3], 0x20000)
        p.s("s_and_b32", o.stmp, o.sw, 1)
        p.s("s_mul_i32", o.sgoff, o.stmp, 32 * 9216)
        p.s("s_mul_i32", o.stmp, o.shead, 288)
        p.s("s_add_u32", o.sgoff, o.sgoff, o.stmp)
        dma288_voffs(p, o.VD, o.lane, o.t0, o.t1, o.t2, 9216, o.stmp)
        early = o.opt.get("g0early", 0)
        if early: o.put_now(p, o.g_dma(0))
        make_srd(p, o.sWq, o.pwq, SZ["wq"])
        lane_tr_addr(p, o.VA[0], o.lane, o.t0, o.t1, 288)
        p.v("v_add_u32", o.VA[1], GR[1], o.VA[0])
        p.v("v_add_u32", o.VA[2], GR[2], o.VA[0])
        for ks in range(3):
            p.v("v_add_u32", o.VX[ks], ks * KS, o.V16)
        p.s("s_lshl_b32", o.stmp, o.sP, 4)
        p.s("s_lshl_b32", o.stmp2, o.sw, 2)
        p.s("s_add_u32", o.stmp, o.stmp, o.stmp2)
        p.s("s_lshl_b32", o.sxoff, o.stmp, 10)
        p.s("s_mov_b32", o.shb, o.sxoff)
        p.s("s_mov_b32", o.sob, o.sxoff)
        o.setup_late(p)
        lnskip2 = o.L("lnskip")
        p.s("s_cmp_ge_u32", S(2), 128)
        p.branch("s_cbranch_scc1", lnskip2)
        ln = Seg()
        o.ln_compute(ln, RAW, vs)
        p.extend(ln)
        if o.opt.get("lnstamps"): o.ST.stamp(p)
        o.raw(p, "s_waitcnt vmcnt(0)")
        if o.opt.get("lnstamps"): o.ST.stamp(p)
        p.barrier()
        p.s("s_lshr_b32", o.stmp2, S(2), 4)
        o.signal(p, o.stmp2, C_XN, (V(46), V(47)))
        p.label(lnskip2)
        o.ST.stamp(p)
        if o.opt.get("codewarm", 1) == 1: o.code_warm(p, o.name, o.name + o.opt.get("cwend", "_aloop"), 128)
        if o.opt.get("tlbwarm"): o.tlb_warm(p)
        if not early: o.put_now(p, o.g_dma(0))
        o.put_now(p, o.g_dma(1))
        if o.opt.get("wqstart"): o.touch_wq_start(p)
        o.await_(p, o.sP, C_XN, 16, (V(46), V(47)))
        o.ST.stamp(p)

    def code_addr(self, p, va, lo, hi, nwave_bits, sidx, forward=False):
        o = self; here = o.L("pc")
        sp = S(96, 2) if not o.ST.on else S(92, 2)
        o.raw(p, f"s_getpc_b64 {sp}")
        p.label(here)
        if forward:
            o.raw(p, f"s_add_u32 {sp[0]}, {sp[0]}, {lo}-{here}")
            o.raw(p, f"s_addc_u32 {sp[1]}, {sp[1]}, 0")
        else:
            o.raw(p, f"s_sub_u32 {sp[0]}, {sp[0]}, {here}-{lo}")
            o.raw(p, f"s_subb_u32 {sp[1]}, {sp[1]}, 0")
        o.raw(p, f"s_mul_i32 {o.stmp}, {sidx}, ((({hi}-{lo})+127)/128+{(1 << nwave_bits) - 1})/{1 << nwave_bits}")
        o.raw(p, f"v_min_u32 {va[0]}, ((({hi}-{lo})+127)/128+{(1 << nwave_bits) - 1})/{1 << nwave_bits}-1, {o.lane}")
        o.raw(p, f"v_add_u32 {va[0]}, {o.stmp}, {va[0]}")
        o.raw(p, f"v_lshlrev_b32 {va[0]}, 7, {va[0]}")
        o.raw(p, f"v_min_u32 {va[0]}, {hi}-{lo}-4, {va[0]}")
        o.raw(p, f"v_mov_b32 {va[1]}, {sp[1]}")
        o.raw(p, f"v_add_co_u32 {va[0]}, vcc, {sp[0]}, {va[0]}")
        o.raw(p, "s_nop 1")
        o.raw(p, f"v_addc_co_u32 {va[1]}, vcc, 0, {va[1]}, vcc")
    def code_warm(self, p, lo, hi, first):
        o = self; skip = o.L("cw")
        p.s("s_cmp_lt_u32", S(2), first)
        p.branch("s_cbranch_scc1", skip)
        p.s("s_sub_u32", o.stmp2, S(2), first)
        p.s("s_lshr_b32", o.stmp2, o.stmp2, 3)
        p.s("s_lshl_b32", o.stmp2, o.stmp2, 2)
        p.s("s_add_u32", o.stmp2, o.stmp2, o.sw)
        va = V(62, 2)
        o.code_addr(p, va, lo, hi, 6, o.stmp2)
        p.add(Ins(f"global_load_dword a197, {va}, off", "vmld", [("a", 197)], va.regs(), tags=["cw"]))
        p.label(skip)

    def code_warm2(self, p):
        o = self
        p.s("s_lshr_b32", o.stmp2, S(2), 3)
        p.s("s_lshl_b32", o.stmp2, o.stmp2, 2)
        p.s("s_add_u32", o.stmp2, o.stmp2, o.sw)
        va = V(254, 2)
        o.code_addr(p, va, o.name + "_adone", o.name + "_afall", 7, o.stmp2, forward=True)
        p.add(Ins(f"global_load_dword v253, {va}, off", "vmld", [("v", 253)], va.regs(), tags=["cw"]))
    def tlb_warm(self, p):
        o = self; skip = o.L("tlb")
        step = o.opt.get("tlbstep", 1 << 21)
        p.s("s_cmp_lt_u32", S(2), 128)
        p.branch("s_cbranch_scc1", skip)
        srd = S(96, 4) if not o.ST.on else S(92, 4)
        vt = V(60)
        p.v("v_mul_u32_u24", vt, step >> 8, o.lane)
        p.v("v_lshlrev_b32", vt, 8, vt)
        k = 0
        for ptr, size in ((o.pws, 0x3640000), (o.pk, SZ["k"]), (o.pv, SZ["v"]), (o.pwq, SZ["wq"]), (o.pwo, SZ["wo"]), (o.pwd, SZ["wd"]), (o.pout, SZ["out"])):
            make_srd(p, srd, ptr, size)
            for base in range(0, size, 64 * step):
                p.s("s_mov_b32", o.stmp, base)
                p.buf_load(A(200 + k), vt, srd, o.stmp, 0, tags=["tlb"]); k += 1
        p.label(skip)

    def ln_issue(self, p, RAW, va, vs):
        o = self; t0, t1, t2 = o.t0, o.t1, o.t2
        p.v("v_lshrrev_b32", t0, 4, o.lane)
        p.s("s_lshl_b32", o.stmp2, o.sw, 2)
        p.v("v_add_u32", t0, o.stmp2, t0)
        p.v("v_and_b32", t1, 3, o.lane)
        p.v("v_bfe_u32", t2, o.lane, 2, 2)
        p.v("v_mul_u32_u24", va, 1152, t0)
        p.v("v_lshl_add_u32", va, t1, 3, va)
        p.v("v_lshl_add_u32", va, t2, 6, va)
        vb = V(48); xf = o.opt.get("xflags", "")
        p.v("v_cmp_gt_u32", VCC, 2, t2)
        p.v("v_mov_b32", V(49), 0x7FFF0000)
        p.nop(0)
        p.v("v_cndmask_b32", vb, V(49), va, VCC)
        skip = o.L("lnskip")
        p.s("s_cmp_ge_u32", S(2), 128)
        p.branch("s_cbranch_scc1", skip)
        p.s("s_mul_i32", o.stmp, S(2), 16 * 1152)
        for i in range(4):
            p.buf_load(RAW.sub(4 * i, 2), va, o.sX, o.stmp, 256 * i, flags=xf, tags=["ln"])
            p.buf_load(RAW.sub(4 * i + 2, 2), va, o.sX, o.stmp, 256 * i + 32, flags=xf, tags=["ln"])
        p.buf_load(RAW.sub(16, 2), vb, o.sX, o.stmp, 1024, flags=xf, tags=["ln"])
        p.buf_load(RAW.sub(18, 2), vb, o.sX, o.stmp, 1056, flags=xf, tags=["ln"])
        if o.opt.get("xnpre"):
            p.s("s_lshl_b32", o.stmp, S(2), 10)
            p.v("v_mov_b32", V(61), 0)
            p.buf_load(A(198), V(61), o.sXN, o.stmp, 0, tags=["pre"])
            p.buf_load(A(199), V(61), o.sDbg, 0, 0, flags="sc1", tags=["pre"])
        p.label(skip)
        p.v("v_lshlrev_b32", vs, 17, t2)
        p.v("v_lshl_add_u32", vs, t0, 4, vs)
        p.v("v_lshl_add_u32", vs, t1, 8, vs)
        p.v("v_cndmask_b32", V(50), V(49), vs, VCC)
        p.v("v_cndmask_b32_e64", V(52), 0, 1.0, VCC)
        p.v("v_mov_b32", V(53), V(52))

    def ln_compute(self, p, RAW, vs):
        o = self
        F = V(56, 40); ACC = V(96, 4); M = V(100, 2); O_ = V(104, 20)
        smask = o.stmp
        p.s("s_mov_b32", smask, 0xFFFF0000)
        p.wait(vm=("tag", "ln"))
        if o.opt.get("lnstamps"): o.ST.stamp(p)
        for d in range(20):
            p.v("v_lshlrev_b32", F[2 * d], 16, RAW[d])
            p.v("v_and_b32", F[2 * d + 1], smask, RAW[d])
        def pk(op, d, a, b, c=None, mods=""):
            if c is None: p.v(op, d, a, b, mods=mods)
            else: p.v(op, d, a, b, c, mods=mods)
        pk("v_pk_add_f32", ACC.sub(0, 2), F.sub(0, 2), F.sub(2, 2))
        pk("v_pk_add_f32", ACC.sub(2, 2), F.sub(4, 2), F.sub(6, 2))
        for d in range(4, 20):
            a = ACC.sub(2 * (d % 2), 2)
            pk("v_pk_add_f32", a, a, F.sub(2 * d, 2))
        pk("v_pk_add_f32", ACC.sub(0, 2), ACC.sub(0, 2), ACC.sub(2, 2))
        p.nop(0)
        p.v("v_add_f32", ACC[0], ACC[0], ACC[1])
        def rowreduce(x):
            for sh in (8, 4, 2, 1):
                p.nop(1)
                p.v("v_add_f32_dpp", x, x, x, mods=f"row_ror:{sh} row_mask:0xf bank_mask:0xf")
        rowreduce(ACC[0])
        p.v("v_mul_f32", M[0], -1.0 / 576.0, ACC[0])
        p.v("v_mov_b32", M[1], M[0])
        p.nop(0)
        for d in range(20):
            pk("v_pk_add_f32", F.sub(2 * d, 2), F.sub(2 * d, 2), M)
        for d in range(16, 20):
            pk("v_pk_mul_f32", F.sub(2 * d, 2), F.sub(2 * d, 2), V(52, 2))
        pk("v_pk_mul_f32", ACC.sub(0, 2), F.sub(0, 2), F.sub(0, 2))
        pk("v_pk_mul_f32", ACC.sub(2, 2), F.sub(2, 2), F.sub(2, 2))
        for d in range(2, 20):
            a = ACC.sub(2 * (d % 2), 2)
            pk("v_pk_fma_f32", a, F.sub(2 * d, 2), F.sub(2 * d, 2), a)
        pk("v_pk_add_f32", ACC.sub(0, 2), ACC.sub(0, 2), ACC.sub(2, 2))
        p.nop(0)
        p.v("v_add_f32", ACC[0], ACC[0], ACC[1])
        rowreduce(ACC[0])
        p.v("v_mov_b32", ACC[1], 1e-5)
        p.v("v_fmac_f32", ACC[1], 1.0 / 576.0, ACC[0])
        p.v("v_sqrt_f32", ACC[2], ACC[1])
        p.nop(0)
        p.v("v_rcp_f32", M[0], ACC[2])
        p.nop(0)
        p.v("v_mov_b32", M[1], M[0])
        p.nop(0)
        for d in range(20):
            pk("v_pk_mul_f32", F.sub(2 * d, 2), F.sub(2 * d, 2), M)
        for d in range(20):
            p.v("v_cvt_pk_bf16_f32", O_[d], F[2 * d], F[2 * d + 1])
        p.s("s_lshl_b32", o.stmp, S(2), 10)
        for i in range(5):
            p.buf_store(O_.sub(4 * i, 4), vs if i < 4 else V(50), o.sXN, o.stmp, 0, flags=o.SC)
            if i < 4: p.s("s_add_u32", o.stmp, o.stmp, 4 * KS)

    def touch_weights(self, p):
        o = self; t0, t1, t2 = o.t0, o.t1, o.t2
        J = V(54)
        fl = o.opt.get("tflags", "")
        p.v("v_and_b32", t1, 3, o.lane)
        p.v("v_lshlrev_b32", t1, 7, t1)
        p.v("v_min_u32", t1, 284, t1)
        p.s("s_mul_i32", o.stmp, o.sP, 72)
        p.s("s_and_b32", o.stmp2, o.sw, 1)
        p.s("s_mul_i32", o.stmp2, o.stmp2, 36)
        p.s("s_add_u32", o.stmp, o.stmp, o.stmp2)
        p.s("s_mul_i32", o.stmp, o.stmp, 9216)
        p.s("s_mul_i32", o.stmp2, o.shead, 288)
        p.s("s_add_u32", o.stmp, o.stmp, o.stmp2)
        for i in range(3):
            p.v("v_lshrrev_b32", t0, 2, o.lane)
            p.v("v_add_u32", t0, 16 * i, t0)
            p.v("v_min_u32", t0, 35, t0)
            p.v("v_mul_u32_u24", t0, 9216, t0)
            p.v("v_add_u32", t2, t0, t1)
            p.buf_load(A(192 + i), t2, o.sGU, o.stmp, 0, flags=fl, tags=["touch"])
        p.v("v_lshrrev_b32", t0, 1, o.lane)
        p.v("v_min_u32", t0, 17, t0)
        p.v("v_lshlrev_b32", t0, 13, t0)
        p.v("v_and_b32", t1, 1, o.lane)
        p.v("v_lshl_add_u32", t2, t1, 7, t0)
        p.s("s_mul_i32", o.stmp, o.sP, 72)
        p.s("s_mul_i32", o.stmp2, o.sw, 18)
        p.s("s_add_u32", o.stmp, o.stmp, o.stmp2)
        p.s("s_lshl_b32", o.stmp, o.stmp, 13)
        p.s("s_lshl_b32", o.stmp2, o.shead, 8)
        p.s("s_add_u32", o.stmp, o.stmp, o.stmp2)
        p.buf_load(A(195), t2, o.sWq, o.stmp, 0, flags=fl, tags=["touch"])

    def setup_late(self, p):
        o = self
        make_srd(p, o.sH, o.pws, SZ_H, add=WS_H)
        make_srd(p, o.sO, o.pws, SZ_O, add=WS_O)
        p.s("s_lshr_b32", o.stmp, o.shead, 1)
        p.s("s_lshl_b32", o.stmp, o.stmp, 19)
        make_srd(p, o.sK, o.pk, 524288, add=o.stmp)
        make_srd(p, o.sV, o.pv, 524288, add=o.stmp)
        t0, t1, t2 = o.t0, o.t1, o.t2
        p.v("v_lshrrev_b32", t0, 4, o.lane)
        p.s("s_lshl_b32", o.stmp, o.sw, 2)
        p.v("v_add_u32", t0, o.stmp, t0)
        p.v("v_and_b32", t1, 7, t0)
        p.v("v_lshlrev_b32", t1, 1, t1)
        p.v("v_and_b32", t2, 15, o.lane)
        p.v("v_xor_b32", t1, t1, t2)
        p.v("v_lshlrev_b32", t1, 4, t1)
        p.v("v_lshl_add_u32", o.VWd, t0, 13, t1)
        p.s("s_lshl_b32", o.sqoff, o.shead, 8)
        p.s("s_lshl_b32", o.stmp, o.shead, 19)
        p.s("s_add_u32", o.sob, o.sob, o.stmp)
        p.s("s_and_b32", o.ssig, S(2), 7)
        if o.opt.get("sigrot", 0):
            p.s("s_add_u32", o.stmp, o.ssig, 1)
            p.s("s_and_b32", o.stmp, o.stmp, 3)
            p.s("s_cmp_lt_u32", o.ssig, 4)
            p.s("s_cselect_b32", o.ssig, o.stmp, o.ssig)
        p.s("s_lshr_b32", o.sP2, S(2), 5)
        p.s("s_bfe_u32", o.sN, S(2), 0x20003)

    def x_loads(self, dst, nks, tag, rewind=None):
        o = self; out = []
        for ks in range(nks):
            for pb in range(4):
                q = Seg()
                q.buf_load(dst(pb, ks), o.VX[ks], o.sXN, o.sxoff, 1024 * pb, flags=o.SC, tags=[tag])
                out.append(q)
        out[-1].s("s_add_u32", o.sxoff, o.sxoff, KS * nks)
        return out

    def touch_kv(self):
        o = self; out = []
        q = Seg()
        vt = V(248)
        q.s("s_and_b32", o.stmp, o.shead, 1)
        q.s("s_lshl_b32", o.stmp, o.stmp, 3)
        q.s("s_add_u32", o.stmp, o.stmp, o.sP)
        q.s("s_lshl_b32", o.stmp, o.stmp, 2)
        q.s("s_add_u32", o.stmp, o.stmp, o.sw)
        q.s("s_lshl_b32", o.stmp2, o.stmp, 13)
        q.v("v_lshlrev_b32", vt, 7, o.lane)
        out.append(q)
        q = Seg(); q.buf_load(V(249), vt, o.sK, o.stmp2, 0, flags=o.opt.get("tflags", ""), tags=["touch"]); out.append(q)
        q = Seg(); q.buf_load(V(250), vt, o.sV, o.stmp2, 0, flags=o.opt.get("tflags", ""), tags=["touch"]); out.append(q)
        return out

    def touch_wq_start(self, p):
        o = self; skip = o.L("wqs")
        p.s("s_cmp_lt_u32", S(2), 128)
        p.branch("s_cbranch_scc1", skip)
        vt = V(60)
        p.s("s_sub_u32", o.stmp, o.sP, 4)
        p.s("s_lshl_b32", o.stmp, o.stmp, 2)
        p.s("s_add_u32", o.stmp, o.stmp, o.sw)
        p.s("s_mul_i32", o.stmp, o.stmp, 36 * 8192)
        p.s("s_lshl_b32", o.stmp2, o.shead, 8)
        p.s("s_add_u32", o.stmp, o.stmp, o.stmp2)
        for i in range(2):
            p.v("v_lshrrev_b32", vt, 1, o.lane)
            p.v("v_min_u32", vt, 17, vt)
            p.v("v_add_u32", vt, 18 * i, vt)
            p.v("v_lshlrev_b32", vt, 13, vt)
            p.v("v_and_b32", V(61), 1, o.lane)
            p.v("v_lshl_add_u32", vt, V(61), 7, vt)
            p.buf_load(A(195 + i), vt, o.sWq, o.stmp, 0, flags=o.opt.get("wqsflags", ""), tags=["touch"])
        p.label(skip)

    def touch_wq(self, part, nparts):
        o = self; out = []
        vt = V(249)
        rows = -(-18 // nparts)
        q = Seg()
        q.v("v_lshrrev_b32", vt, 1, o.lane)
        q.v("v_min_u32", vt, rows - 1, vt)
        q.v("v_add_u32", vt, part * rows, vt)
        q.v("v_min_u32", vt, 17, vt)
        q.v("v_lshlrev_b32", vt, 13, vt)
        q.v("v_and_b32", V(250), 1, o.lane)
        q.v("v_lshl_add_u32", vt, V(250), 7, vt)
        if part == 0:
            q.s("s_mul_i32", o.stmp, o.sP, 72)
            q.s("s_mul_i32", o.stmp2, o.sw, 18)
            q.s("s_add_u32", o.stmp, o.stmp, o.stmp2)
            q.s("s_lshl_b32", o.stmp, o.stmp, 13)
            q.s("s_lshl_b32", o.stmp2, o.shead, 8)
            q.s("s_add_u32", o.swqt, o.stmp, o.stmp2)
        out.append(q)
        q = Seg(); q.buf_load(V(251 + part % 2), vt, o.sWq, o.swqt, 0, tags=["touch"]); out.append(q)
        return out

    def phase_g(self, p):
        o = self
        xl = lambda c: o.x_loads(lambda pb, ks: o.gx(c, pb, ks), 2, f"G{c}")
        o.put_now(p, xl(0)); o.put_now(p, xl(1))
        if o.opt.get("wtouch"): o.touch_weights(p)
        p.wait(vm=("tag", "G0")); p.barrier()
        o.ST.stamp(p)
        for q in o.g_reads(0, 0, 0): p.extend(q)
        p.wait(lgkm=0)
        gi = 0
        for c in range(9):
            if c + 2 < 9:
                dq, xq = o.g_dma(c + 2), xl(c + 2)
            elif c == 7:
                dq = o.q_dma(0)
                q = Seg(); q.s("s_sub_u32", o.sxoff, o.sxoff, 18 * KS)
                xq = [q]
            else:
                dq, xq = o.q_dma(1), o.x_loads(lambda pb, ks: o.qx(0, pb, ks), 3, "Q0")
            c0_, np_ = o.opt.get("wqtouch", (4, 1))
            tq = o.touch_wq(c - c0_, np_) if c0_ <= c < c0_ + np_ else []
            for fb in range(9):
                s_ = gi % 2
                mf = Seg()
                for m in range(2):
                    for pb in range(4):
                        for ks in range(2):
                            cin = 0 if (c == 0 and ks == 0) else o.gacc(fb, m, pb)
                            mf.mfma(o.gacc(fb, m, pb), o.gaf(s_, m, ks), o.gx(c, pb, ks), cin)
                fl = []
                last = (c == 8 and fb == 8)
                g0 = 0
                if fb == 8 and not last:
                    q = Seg(); q.wait(vm=("tag", f"G{c+1}")); q.barrier()
                    fl += [(0, i) for i in q]; g0 = 1
                if not last:
                    nx = (c, fb + 1) if fb < 8 else (c + 1, 0)
                    for k, q in enumerate(o.g_reads(nx[0], nx[1], 1 - s_)):
                        fl += [(g0 + k // 2, i) for i in q]
                if dq: o.place(fl, dq.pop(0), 7)
                if xq: o.place(fl, xq.pop(0), 10)
                if c == 8 and xq: o.place(fl, xq.pop(0), 13)
                if tq and fb >= 7:
                    q = tq.pop(0)
                    if len(q) > 1:
                        fl += [(5 + k // 2 + (1 if k >= 4 else 0), i) for k, i in enumerate(q)]
                    else: o.place(fl, q, 13)
                if not last:
                    q = Seg(); q.wait(lgkm=0); fl += [(15, i) for i in q]
                fl.sort(key=lambda x: x[0])
                p.extend(weave(mf, fl)); gi += 1
            assert not dq and not xq and not tq, (c, len(dq), len(xq))
            if o.opt.get("gstamps") and c < 8: o.ST.stamp(p)
        o.ST.stamp(p)
        o.put_now(p, o.x_loads(lambda pb, ks: o.qx(1, pb, ks), 3, "Q1"))
        vh = None
        p.s("s_mul_i32", o.stmp2, o.shead, 9)
        p.s("s_lshr_b32", o.stmp2, o.stmp2, 1)
        p.s("s_lshl_b32", o.stmp2, o.stmp2, 17)
        p.s("s_add_u32", o.shb, o.shb, o.stmp2)
        odd, join = o.L("godd"), o.L("gjoin")
        p.s("s_bitcmp1_b32", o.shead, 0)
        p.branch("s_cbranch_scc1", odd)
        ev, od = Seg(), Seg()
        o.g_epilogue(ev, 0, vh); ev.branch("s_branch", join)
        od.label(odd); o.g_epilogue(od, 1, vh); od.label(join)
        o.alt = (ev, od)
        return ev, od

    def hq(self, i): return V(152 + 4 * i, 4)
    def g_epilogue(self, p, par, vh):
        o = self
        T = V(248, 8)
        def hblock(fb, pb, dst):
            g, u = o.gacc(fb, 0, pb), o.gacc(fb, 1, pb)
            if fb >= 7:
                gg, uu = T.sub(0, 4), T.sub(4, 4)
                for r in range(4): p.acc_read(gg[r], g[r])
                for r in range(4): p.acc_read(uu[r], u[r])
                g, u = gg, uu
            for r in range(4): p.v("v_max_f32", g[r], 0, g[r])
            p.v("v_pk_mul_f32", g.sub(0, 2), g.sub(0, 2), u.sub(0, 2))
            p.v("v_pk_mul_f32", g.sub(2, 2), g.sub(2, 2), u.sub(2, 2))
            p.v("v_cvt_pk_bf16_f32", dst[0], g[0], g[1])
            p.v("v_cvt_pk_bf16_f32", dst[1], g[2], g[3])
        A_, B_, C_, D_ = 0, 4, 8, 12
        if par == 0:
            plan = [(4, B_, 0), (5, B_, 2), (0, A_, 0), (1, A_, 2), (2, C_, 0), (3, C_, 2), (6, D_, 0), (7, D_, 2), (8, None, 0)]
            delta = {A_: 0, C_: KS, B_: 2 * KS, D_: 3 * KS, "S": 4 * KS}
        else:
            plan = [(4, B_, 2), (3, B_, 0), (5, D_, 0), (6, D_, 2), (1, A_, 0), (2, A_, 2), (7, C_, 0), (8, C_, 2), (0, None, 0)]
            delta = {A_: KS, B_: 2 * KS, D_: 3 * KS, C_: 4 * KS, "S": 8}
        spread = o.opt.get("hplan", "spread") == "spread"
        for k, key in enumerate((A_, B_, C_, D_, "S")):
            p.s("s_add_u32", o.sHS[k], o.shb, delta[key])
        nb = 0
        for fb, slot, half in plan:
            for pb in range(4):
                dst = o.hq(slot + pb).sub(half, 2) if slot is not None else V(216 + 2 * pb, 2)
                hblock(fb, pb, dst); nb += 1
                if spread and nb in (9, 14, 19, 24, 29, 34):
                    p.extend(o.h_store_item(o.HORDER[(nb - 9) // 5]))
    HORDER = [("B", 0), ("B", 1), ("B", 2), ("B", 3), ("A", 0), ("A", 1),
              ("A", 2), ("A", 3), ("C", 0), ("C", 1),
              ("C", 2), ("C", 3), ("D", 0), ("D", 1),
              ("D", 2), ("D", 3), ("S", 0), ("S", 1), ("S", 2), ("S", 3)]
    def h_store_item(self, key):
        o = self; slot, pb = key
        q = Seg()
        if slot == "S":
            q.buf_store(V(216 + 2 * pb, 2), o.V16, o.sH, o.sHS[4], 1024 * pb, flags=o.SCS, tags=["hst"])
        else:
            k = "ABCD".index(slot)
            q.buf_store(o.hq(4 * k + pb), o.V16, o.sH, o.sHS[k], 1024 * pb, flags=o.SCS, tags=["hst"])
        return q
    def h_next(self):
        q = self.h_store_item(self.HORDER[self.hpos]); self.hpos += 1; return q
    def h_block(self, p, cls):
        o = self; skip = o.L("hblk")
        p.s("s_bitcmp1_b32", S(2), 3)
        br = p.branch("s_cbranch_scc1" if cls == 0 else "s_cbranch_scc0", skip)
        blk = Seg()
        for q in o.h_stores(): blk.extend(q)
        for i in blk: i.meta = i.meta; i.tags = set(i.tags) | {f"cls{cls}"}
        p.extend(blk)
        p.label(skip)
    def after_q_main(self, p):
        if self.opt.get("hplan") == "split2": self.h_block(p, 1)
    def h_stores(self):
        o = self; out = []
        for k, slot in enumerate((0, 4, 8, 12)):
            for pb in range(4):
                q = Seg(); q.buf_store(o.hq(slot + pb), o.V16, o.sH, o.sHS[k], 1024 * pb, flags=o.SCS, tags=["hst"]); out.append(q)
        for pb in range(4):
            q = Seg(); q.buf_store(V(216 + 2 * pb, 2), o.V16, o.sH, o.sHS[4], 1024 * pb, flags=o.SCS, tags=["hst"]); out.append(q)
        return out

    def alloc_g2(self):
        o = self
        o.VD2, o.VA2, o.VB2 = V(242, 9), V(208, 4), V(212, 4)
        o.ACC2, o.AF2 = V(32, 144), V(176, 32)
    def g2_addr(self, p):
        o = self
        dma288_voffs(p, o.VD2, o.lane, o.t0, o.t1, o.t2, 1152, o.stmp)
    def g2_addr2(self, p):
        o = self
        lane_tr_addr(p, o.VA2[0], o.lane, o.t0, o.t1, 288)
        for r in range(1, 4): p.v("v_add_u32", o.VA2[r], r * REG2, o.VA2[0])
    def bf2(self, c, pb, ks): return A(((2 + c % 4) * 64) % 256 + (pb * 4 + ks) * 4, 4)
    def rng2(self, c): return ((c % 4) * REG2, (c % 4) * REG2 + REG2)
    def g2_dma(self, c):
        o = self; out = []
        for j in range(9):
            q = Seg()
            q.s("s_add_u32", M0, o.sm9, (c % 4) * REG2 + 1024 * j)
            q.buf_dma(o.VD2[j], o.sW2, o.swoff, 0, flags=o.opt.get("w2flags", ""), tags=[f"c{c}"], lds=o.rng2(c))
            if j == 8: q.s("s_add_u32", o.swoff, o.swoff, 128 * 1152)
            out.append(q)
        return out
    def g2_b(self, c):
        o = self; out = []
        for ks in range(4):
            for pb in range(4):
                q = Seg(); q.buf_load(o.bf2(c, pb, ks), o.VB2[ks], o.sB2, o.sboff, 1024 * pb, flags=o.opt.get("bflags", o.SC), tags=[f"c{c}", f"b{c}"]); out.append(q)
        out[-1].s("s_add_u32", o.sboff, o.sboff, 4 * KS)
        return out
    def g2_reads(self, c, nb, s_):
        o = self; out = []
        for ks in range(4):
            for h in range(2):
                q = Seg()
                q.ds_read("ds_read_b64_tr_b16", o.AF2.sub(s_ * 16 + ks * 4 + 2 * h, 2), o.VA2[c % 4], (32 * ks + 16 * h) * 288 + 32 * nb,
                          lds=o.rng2(c), tags=["a"])
                out.append(q)
        return out
    def w2_srd(self, p):
        o = self
        p.s("s_and_b32", o.stmp, o.ssig, 3)
        p.s("s_mov_b32", o.stmp2, 1152 * 1152)
        p.s("s_cmp_lt_u32", o.ssig, 4)
        p.s("s_cselect_b32", o.stmp2, 1024 * 1152, o.stmp2)
        p.s("s_mul_i32", o.stmp, o.stmp, o.stmp2)
        p.s("s_cselect_b32", o.sW2[0], o.pwo[0], o.pwd[0])
        p.s("s_cselect_b32", o.sW2[1], o.pwo[1], o.pwd[1])
        p.s("s_add_u32", o.sW2[0], o.sW2[0], o.stmp)
        p.s("s_addc_u32", o.sW2[1], o.sW2[1], 0)
        p.s("s_mov_b32", o.sW2[2], o.stmp2)
        p.s("s_mov_b32", o.sW2[3], 0x20000)
        o.sw2t, o.VW2T = S(91), V(251)
        p.s("s_lshr_b32", o.stmp, S(2), 3)
        p.s("s_lshl_b32", o.stmp, o.stmp, 2)
        p.s("s_add_u32", o.stmp, o.stmp, o.sw)
        nl = o.opt.get("w2lines", 12)
        p.s("s_mul_i32", o.sw2t, o.stmp, nl * 128)
        p.v("v_min_u32", o.VW2T, nl - 1, o.lane)
        p.v("v_lshlrev_b32", o.VW2T, 7, o.VW2T)
    def w2_touch(self):
        o = self
        q = Seg()
        q.buf_load(V(252), o.VW2T, o.sW2, o.sw2t, 0, flags=o.opt.get("w2tflags", ""), tags=["touch"])
        q.s("s_add_u32", o.sw2t, o.sw2t, o.opt.get("w2lines", 12) * 128 * 128)
        return q

    def g2_setup(self, p, mode):
        o = self
        if mode == "s":
            make_srd(p, o.sB2, o.pws, SZ_O, add=WS_O)
            p.s("s_mul_i32", o.sboff, o.ssig, 32 * KS)
        else:
            make_srd(p, o.sB2, o.pws, SZ_H, add=WS_H)
            p.s("s_sub_u32", o.stmp, o.ssig, 4)
            p.s("s_mul_i32", o.sboff, o.stmp, 36 * KS)
        p.s("s_mov_b32", o.stoff, o.sboff)
        p.s("s_mul_i32", o.swoff, o.sw, 32 * 1152)
        p.s("s_mul_i32", o.stmp, o.sN, 288)
        p.s("s_add_u32", o.swoff, o.swoff, o.stmp)
        p.s("s_lshl_b32", o.stmp, o.sP2, 4)
        p.s("s_lshl_b32", o.stmp2, o.sw, 2)
        p.s("s_add_u32", o.stmp, o.stmp, o.stmp2)
        p.s("s_lshl_b32", o.stmp, o.stmp, 10)
        p.s("s_add_u32", o.sboff, o.sboff, o.stmp)
        for ks in range(4):
            p.v("v_add_u32", o.VB2[ks], ks * KS, o.V16)
        make_srd(p, o.sPart, o.pws, SZ_P, add=WS_P)
        p.s("s_lshl_b32", o.stmp, o.ssig, 5)
        p.s("s_lshl_b32", o.stmp2, o.sP2, 2)
        p.s("s_add_u32", o.stmp, o.stmp, o.stmp2)
        p.s("s_add_u32", o.stmp, o.stmp, o.sw)
        p.s("s_lshl_b32", o.stmp, o.stmp, 2)
        p.s("s_add_u32", o.stmp, o.stmp, o.sN)
        p.s("s_mul_i32", o.spart, o.stmp, 18432)

    def attn_epilogue(self, p):
        o = self
        RL = V(216, 4); VO = V(220, 4); T = V(152, 64); RP = V(22, 2)
        for qb in range(4): p.v("v_rcp_f32", RL[qb], o.L_[qb * 4])
        for s_ in range(4): p.v("v_add_u32", VO[s_], s_ * KS, o.V16)
        k = 0
        for qb in range(4):
            p.v("v_mov_b32", RP[0], RL[qb]); p.v("v_mov_b32", RP[1], RL[qb])
            for s_ in range(4):
                t = T.sub((k % 4) * 16, 16); k += 1
                a, b = o.Oacc(2 * s_, qb), o.Oacc(2 * s_ + 1, qb)
                for r in range(4): p.acc_read(t[r], a[r])
                for r in range(4): p.acc_read(t[4 + r], b[r])
                for r in range(4): p.v("v_pk_mul_f32", t.sub(2 * r, 2), t.sub(2 * r, 2), RP)
                for r in range(4): p.v("v_cvt_pk_bf16_f32", t[8 + r], t[2 * r], t[2 * r + 1])
                p.buf_store(t.sub(8, 4), VO[s_], o.sO, o.sob, 1024 * qb, flags=o.SCS, tags=["ost"])

    def h_signal(self, p):
        o = self; skip = o.L("hsig")
        if o.opt.get("hplan") == "loop": p.assert_drained("hst", window=(20, 2))
        else: p.assert_drained("hst")
        p.s("s_sub_u32", o.shflag, o.shflag, 1)
        p.s("s_cmp_lg_u32", o.shflag, 0)
        p.branch("s_cbranch_scc1", skip)
        o.signal(p, o.sP, C_H, (V(12), V(13)))
        p.label(skip)
    def q_fill(self, f, late, atomic):
        self.g2_addr(f)
        self.k_addr(late)
        self.w2_srd(atomic)
    def pre_chk(self, p):
        o = self
        p.s("s_lshl_b32", o.scnt, o.sP2, 5)
        p.s("s_add_u32", o.scnt, o.scnt, 4 * C_H)
        p.v("v_mov_b32", V(12), o.scnt)
        p.buf_load(V(13), V(12), o.sDbg, 0, 0, flags="sc1")
    def await_wave(self, p, vt, target):
        o = self; loop, done = o.L("wpoll"), o.L("wgot")
        o.raw(p, f"s_mov_b32 {o.scnt}, {SPIN_MAX}")
        p.label(loop)
        o.raw(p, f"v_readfirstlane_b32 {o.stmp}, {vt[1]}")
        o.raw(p, "s_nop 3")
        o.raw(p, f"s_cmp_ge_u32 {o.stmp}, {target}")
        o.raw(p, f"s_cbranch_scc1 {done}")
        o.raw(p, "s_sleep 2")
        o.raw(p, f"buffer_load_dword {vt[1]}, {vt[0]}, {o.sDbg}, 0 offen sc1")
        o.raw(p, "s_waitcnt vmcnt(0)")
        o.raw(p, f"s_sub_u32 {o.scnt}, {o.scnt}, 1")
        o.raw(p, f"s_cmp_lg_u32 {o.scnt}, 0")
        o.raw(p, f"s_cbranch_scc1 {loop}")
        p.label(done)

    def g2_touch_setup(self, p, mode):
        o = self
        o.VT2 = V(216)
        p.s("s_lshr_b32", o.stmp, S(2), 3)
        p.s("s_lshl_b32", o.stmp, o.stmp, 2)
        p.s("s_add_u32", o.stmp, o.stmp, o.sw)
        p.s("s_lshl_b32", o.stmp, o.stmp, 12)
        p.s("s_add_u32", o.stoff, o.stoff, o.stmp)
        p.s("s_add_u32", o.stoff, o.stoff, 2 * 4 * KS)
        p.v("v_min_u32", o.VT2, 31, o.lane)
        p.v("v_lshlrev_b32", o.VT2, 7, o.VT2)
    def g2_touch(self, c):
        o = self
        q = Seg()
        q.buf_load(V(217 + c % 4), o.VT2, o.sB2, o.stoff, 0, flags=o.opt.get("t2flags", ""), tags=["touch"])
        q.s("s_add_u32", o.stoff, o.stoff, 4 * KS)
        return q

    def phase_g2(self, mode):
        o = self
        p = Seg()
        nch = 8 if mode == "s" else 9
        vt = (V(12), V(13))
        touch = bool(o.opt.get("g2touch"))
        o.ST.stamp(p)
        o.g2_setup(p, mode)
        o.g2_addr2(p)
        if touch: o.g2_touch_setup(p, mode)
        ahead = o.opt.get("g2ahead", 10)
        items = {c: o.g2_dma(c) + o.g2_b(c) for c in range(nch)}
        queue = [q for c in range(2, nch) for q in items[c]]
        pre = o.opt.get("gpre", 0)
        if mode == "g":
            o.await_wave(p, vt, 32)
            if pre: o.put_now(p, items[0])
        elif pre:
            o.put_now(p, items[0][:9]); o.put_now(p, items[1][:9])
        presample = mode == "s" and o.opt.get("presample", 0) and not pre
        vs = (V(10), V(11))
        if presample:
            o.sample_o(p, vs)
            p.wait(vm=0)
        else:
            p.wait(vm=("tag", "ost"))
        p.barrier()
        if o.opt.get("finestamps"): o.ST.stamp(p)
        p.assert_drained("ost")
        p.s("s_lshr_b32", o.stmp, o.shead, 3)
        p.s("s_lshl_b32", o.stmp, o.stmp, 3)
        p.s("s_lshl_b32", o.stmp2, 1, o.stmp)
        o.signal(p, o.sP, C_O, vt, inc=o.stmp2)
        if mode == "g":
            if o.opt.get("finestamps"): o.ST.stamp(p); o.ST.stamp(p)
            if not pre: o.put_now(p, items[0][9:]); o.put_now(p, items[0][:9])
            o.put_now(p, items[1])
        elif o.opt.get("sorder", 0) == 1 and not pre:
            if o.opt.get("finestamps"): o.ST.stamp(p)
            o.await_o(p, vt)
            if o.opt.get("finestamps"): o.ST.stamp(p)
            o.put_now(p, items[0][9:]); o.put_now(p, items[0][:9]); o.put_now(p, items[1])
        else:
            if not pre: o.put_now(p, items[0][:9]); o.put_now(p, items[1][:9])
            if o.opt.get("finestamps"): o.ST.stamp(p)
            o.await_o(p, vs if presample else vt, presampled=bool(presample))
            if o.opt.get("finestamps"): o.ST.stamp(p)
            o.put_now(p, items[0][9:]); o.put_now(p, items[1][9:])
        if touch:
            o.put_now(p, [o.g2_touch(2), o.g2_touch(3)])
        o.ST.stamp(p)
        p.wait(vm=("tag", "c0")); p.barrier()
        o.ST.stamp(p)
        for q in o.g2_reads(0, 0, 0): p.extend(q)
        p.wait(lgkm=0)
        acc = lambda nb, pb: o.ACC2.sub((nb * 4 + pb) * 4, 4)
        PK = V(2, 16)
        def pack_store(pr, pb, k):
            q = Seg()
            d = PK.sub((k % 4) * 4, 4)
            a_, b_ = acc(2 * pr, pb), acc(2 * pr + 1, pb)
            q.v("v_cvt_pk_bf16_f32", d[0], a_[0], a_[1]); q.v("v_cvt_pk_bf16_f32", d[1], a_[2], a_[3])
            q.v("v_cvt_pk_bf16_f32", d[2], b_[0], b_[1]); q.v("v_cvt_pk_bf16_f32", d[3], b_[2], b_[3])
            q.buf_store(d, o.VST[pb], o.sPart, o.spart, pr * 1024, flags=o.SCS)
            return q
        o.VST = V(212, 4)
        gi = 0; kst = 0
        merge = o.opt.get("g2merge", 1)
        if merge:
            seq = [(c, nb) for c in range(nch - 2) for nb in range(9)] + [(c, nb) for nb in range(9) for c in (nch - 2, nch - 1)]
        else:
            seq = [(c, nb) for c in range(nch) for nb in range(9)]
        nfin = 18 if merge else 9
        fin0 = len(seq) - nfin
        plist = [(pr, pb) for pr in range(4) for pb in range(4)]
        sp = o.opt.get("pspace", 21)
        ppos = []; pos = 0
        for k in range(16):
            pos = max(pos + sp, (16 * nfin // 9) * 2 * (k // 4 + 1) + 4)
            if pos < 16 * nfin - 3: ppos.append(pos)
        quota = 0
        for idx, (c, nb) in enumerate(seq):
            if nb == 0 and (idx < fin0 or idx == fin0):
                quota = (30 if merge else 25 + (ahead if c == 0 else 0))
            s_ = gi % 2
            mf = Seg()
            for pb in range(4):
                for ks in range(4):
                    first = (c == 0 and ks == 0)
                    mf.mfma(acc(nb, pb), o.AF2.sub(s_ * 16 + ks * 4, 4), o.bf2(c, pb, ks), 0 if first else acc(nb, pb))
            fl = []
            last = idx == len(seq) - 1
            g0 = 0
            if not last:
                nx = seq[idx + 1]
                if nb == 8 and idx < fin0:
                    upto = nch - 1 if (merge and idx == fin0 - 1) else c + 1
                    q = Seg(); q.wait(vm=("tag", f"c{upto}")); q.barrier()
                    fl += [(0, i) for i in q]; g0 = 1
                elif nb == 8 and not merge:
                    q = Seg(); q.wait(vm=("tag", f"c{c+1}")); q.barrier()
                    fl += [(0, i) for i in q]; g0 = 1
                for k, q in enumerate(o.g2_reads(nx[0], nx[1], 1 - s_)):
                    fl += [(g0 + k // 2, i) for i in q]
            dense = merge or c == 0
            if merge and queue and nb in (0, 4):
                q = Seg(); q.wait(vm=40); fl.append((4, q[0]))
            for g in (((5, 8, 11, 14) if dense else (6, 9, 13)) if nb < 7 else (7, 11)):
                if queue and quota:
                    o.place(fl, queue.pop(0), g); quota -= 1
            if idx >= fin0:
                j = idx - fin0
                if j == 0:
                    assert not queue
                    for pb in range(4):
                        q = Seg(); q.v("v_add_u32", o.VST[pb], pb * 4096, o.V16); fl.append((6 + pb, q[0]))
                while ppos and ppos[0] < 16 * (j + 1):
                    at = ppos.pop(0) - 16 * j
                    pr, pb = plist.pop(0)
                    q = pack_store(pr, pb, kst); kst += 1
                    g = max(at - 2, 4)
                    for k, i in enumerate(q): fl.append((min(15, g + k // 2), i))
            if not last:
                q = Seg(); q.wait(lgkm=0); fl += [(15, i) for i in q]
            fl.sort(key=lambda x: x[0])
            p.extend(weave(mf, fl)); gi += 1
            if o.opt.get("chunkstamps") and nb == 8 and idx < fin0: o.ST.stamp(p)
        assert not queue
        p.nop(7)
        o.ST.stamp(p)
        for pr, pb in plist:
            p.extend(pack_store(pr, pb, kst)); kst += 1
        p.s("s_add_u32", o.spart, o.spart, 16384)
        for pp in range(2):
            d = PK.sub((kst % 4) * 4, 4); kst += 1
            a_, b_ = acc(8, 2 * pp), acc(8, 2 * pp + 1)
            p.v("v_cvt_pk_bf16_f32", d[0], a_[0], a_[1]); p.v("v_cvt_pk_bf16_f32", d[1], a_[2], a_[3])
            p.v("v_cvt_pk_bf16_f32", d[2], b_[0], b_[1]); p.v("v_cvt_pk_bf16_f32", d[3], b_[2], b_[3])
            p.buf_store(d, o.V16, o.sPart, o.spart, pp * 1024, flags=o.SCS)
        return p

    def phase_fin(self):
        o = self
        p = Seg()
        vt = (V(12), V(13))
        make_srd(p, o.sOut, o.pout, SZ["out"])
        lane = o.lane
        v8, vx, t0 = V(2), V(3), V(4)
        sPB, sPT = S(47), S(48)
        p.s("s_and_b32", sPB, o.ssig, 1)
        p.s("s_lshl_b32", sPB, sPB, 1)
        p.s("s_lshr_b32", o.stmp, o.sw, 1)
        p.s("s_add_u32", sPB, sPB, o.stmp)
        p.s("s_and_b32", sPT, o.sw, 1)
        sq = S(49)
        p.s("s_lshl_b32", sq, o.sP2, 2)
        p.s("s_lshr_b32", o.stmp, o.ssig, 1)
        p.s("s_add_u32", sq, sq, o.stmp)
        s0 = S(50)
        p.s("s_lshl_b32", o.stmp, sq, 2)
        p.s("s_add_u32", o.stmp, o.stmp, o.sN)
        p.s("s_mul_i32", s0, o.stmp, 18432)
        s1 = S(51)
        p.s("s_lshr_b32", o.stmp, sPB, 1)
        p.s("s_lshl_b32", o.stmp, o.stmp, 10)
        p.s("s_and_b32", o.stmp2, sPB, 1)
        p.s("s_lshl_b32", o.stmp2, o.stmp2, 3)
        p.s("s_add_u32", o.stmp, o.stmp, o.stmp2)
        p.s("s_add_u32", s1, s0, o.stmp)
        p.s("s_add_u32", s1, s1, 16384)
        p.s("s_lshl_b32", o.stmp, sPB, 12)
        p.s("s_add_u32", s0, s0, o.stmp)
        p.s("s_lshl_b32", o.stmp, sPT, 11)
        p.s("s_add_u32", s0, s0, o.stmp)
        p.v("v_and_b32", t0, 15, lane)
        p.v("v_mul_u32_u24", vx, 1152, t0)
        p.v("v_lshrrev_b32", t0, 4, lane)
        p.v("v_lshl_add_u32", vx, t0, 3, vx)
        sxo = S(52)
        p.s("s_lshl_b32", o.stmp, sq, 2)
        p.s("s_add_u32", o.stmp, o.stmp, sPB)
        p.s("s_mul_i32", sxo, o.stmp, 16 * 1152)
        p.s("s_mul_i32", o.stmp, o.sN, 288)
        p.s("s_add_u32", sxo, sxo, o.stmp)
        sxs = S(53)
        p.s("s_add_u32", sxs, sxo, 256)
        p.s("s_lshl_b32", o.stmp, sPT, 7)
        p.s("s_add_u32", sxo, sxo, o.stmp)
        X = V(160, 10)
        for b in range(4): p.buf_load(X.sub(2 * b, 2), vx, o.sX, sxo, 32 * b, tags=["x"])
        p.buf_load(X.sub(8, 2), vx, o.sX, sxs, 0, tags=["x"])
        p.wait(vm=0); p.barrier()
        p.s("s_add_u32", o.stmp2, o.sN, C_PART)
        sslot = S(54)
        p.s("s_mov_b32", sslot, o.stmp2)
        PP = V(24, 64); PS = V(88, 16)
        SSTR = 32 * 4 * 18432
        prog = o.opt.get("progfin", 0)
        if not prog:
            if o.opt.get("nosingle0", 1):
                p.s("s_cmp_eq_u32", sPT, 0)
                p.s("s_cselect_b32", s1, 0x7FF00000, s1)
            o.signal(p, o.sP2, sslot, vt)
            o.ST.stamp(p)
            o.await_(p, o.sP2, sslot, 8, vt)
            o.ST.stamp(p)
            for pr in range(2):
                for s_ in range(8):
                    if pr == 0 and s_ == 0: p.s("s_mov_b32", o.stmp, s0)
                    elif s_ == 0: p.s("s_add_u32", o.stmp, s0, 1024)
                    else: p.s("s_add_u32", o.stmp, o.stmp, SSTR)
                    p.buf_load(PP.sub((s_ * 2 + pr) * 4, 4), o.V16, o.sPart, o.stmp, 0, flags=o.SC, tags=[f"p{pr}"])
            for s_ in range(8):
                if s_ == 0: p.s("s_mov_b32", o.stmp, s1)
                else: p.s("s_add_u32", o.stmp, o.stmp, SSTR)
                p.buf_load(PS.sub(s_ * 2, 2), o.V16, o.sPart, o.stmp, 0, flags=o.SC, tags=["p2"])
        else:
            p.s("s_lshl_b32", o.stmp, o.ssig, 2)
            p.s("s_lshl_b32", o.stmp2, 1, o.stmp)
            sinc = S(59)
            p.s("s_mov_b32", sinc, o.stmp2)
            o.signal(p, o.sP2, sslot, vt, inc=sinc)
            o.ST.stamp(p)
            p.s("s_cmp_eq_u32", sPT, 0)
            p.s("s_cselect_b32", s1, 0x7FF00000, s1)
            sloaded, sready, sround, sslotl = S(60), S(61), S(62), S(63)
            vaddr, vval, vl = V(12), V(13), V(14)
            p.s("s_lshl_b32", o.scnt, o.sP2, 3)
            p.s("s_add_u32", o.scnt, o.scnt, sslot)
            p.s("s_lshl_b32", o.scnt, o.scnt, 2)
            p.v("v_mov_b32", vaddr, o.scnt)
            p.s("s_mov_b32", sloaded, 0)
            p.s("s_mov_b32", sround, SPIN_MAX)
            p.s("s_mov_b32", sslotl, o.FLAG + 16)
            loop, nopoll, done2 = o.L("frnd"), o.L("fnp"), o.L("fall")
            p.label(loop)
            o.raw(p, f"v_mov_b32 {vl}, {sslotl}")
            o.raw(p, f"s_cmp_lg_u32 {o.sw}, 0")
            o.raw(p, f"s_cbranch_scc1 {nopoll}")
            o.raw(p, f"buffer_load_dword {vval}, {vaddr}, {o.sDbg}, 0 offen sc1")
            o.raw(p, "s_waitcnt vmcnt(0)")
            o.raw(p, f"ds_write_b32 {vl}, {vval}")
            o.raw(p, "s_waitcnt lgkmcnt(0)")
            p.label(nopoll)
            o.raw(p, "s_barrier")
            o.raw(p, f"ds_read_b32 {vval}, {vl}")
            o.raw(p, "s_waitcnt lgkmcnt(0)")
            o.raw(p, f"v_readfirstlane_b32 {sready}, {vval}")
            o.raw(p, "s_nop 3")
            o.raw(p, f"s_andn2_b32 {o.stmp2}, {sready}, {sloaded}")
            for s_ in range(8):
                skip = o.L("fsk")
                o.raw(p, f"s_bitcmp1_b32 {o.stmp2}, {4 * s_}")
                o.raw(p, f"s_cbranch_scc0 {skip}")
                p.s("s_add_u32", o.stmp, s0, s_ * SSTR)
                p.buf_load(PP.sub((s_ * 2) * 4, 4), o.V16, o.sPart, o.stmp, 0, flags=o.SC, tags=["p0"])
                p.buf_load(PP.sub((s_ * 2 + 1) * 4, 4), o.V16, o.sPart, o.stmp, 1024, flags=o.SC, tags=["p1"])
                p.s("s_add_u32", o.stmp, s1, s_ * SSTR)
                p.buf_load(PS.sub(s_ * 2, 2), o.V16, o.sPart, o.stmp, 0, flags=o.SC, tags=["p2"])
                p.label(skip)
            o.raw(p, f"s_or_b32 {sloaded}, {sloaded}, {sready}")
            o.raw(p, f"s_xor_b32 {sslotl}, {sslotl}, 4")
            o.raw(p, f"s_cmp_eq_u32 {sloaded}, 0x11111111")
            o.raw(p, f"s_cbranch_scc1 {done2}")
            o.raw(p, f"s_sub_u32 {sround}, {sround}, 1")
            o.raw(p, f"s_cmp_lg_u32 {sround}, 0")
            o.raw(p, f"s_cbranch_scc1 {loop}")
            p.label(done2)
            o.ST.stamp(p)
        smask, slog = S(57), S(58)
        p.s("s_mov_b32", smask, 0xFFFF0000)
        p.s("s_mov_b32", slog, -1.4426950408889634)
        T = V(180, 16)
        def finish(xr, srcs, so, off):
            sa, ga, tmp = T.sub(0, 4), T.sub(4, 4), T.sub(8, 4)
            for grp, dst in ((range(0, 4), sa), (range(4, 8), ga)):
                for k, s_ in enumerate(grp):
                    r = srcs[s_]
                    d = dst if k == 0 else tmp
                    p.v("v_lshlrev_b32", d[0], 16, r[0]); p.v("v_and_b32", d[1], smask, r[0])
                    p.v("v_lshlrev_b32", d[2], 16, r[1]); p.v("v_and_b32", d[3], smask, r[1])
                    if k:
                        p.v("v_pk_add_f32", dst.sub(0, 2), dst.sub(0, 2), tmp.sub(0, 2))
                        p.v("v_pk_add_f32", dst.sub(2, 2), dst.sub(2, 2), tmp.sub(2, 2))
            ex = T.sub(12, 4)
            for e in range(4): p.v("v_mul_f32", ex[e], slog, ga[e])
            for e in range(4): p.v("v_exp_f32", ex[e], ex[e])
            p.nop(0)
            for e in range(4): p.v("v_add_f32", ex[e], 1.0, ex[e])
            for e in range(4): p.v("v_rcp_f32", ex[e], ex[e])
            p.nop(0)
            for e in range(4): p.v("v_mul_f32", ga[e], ga[e], ex[e])
            p.v("v_lshlrev_b32", tmp[0], 16, xr[0]); p.v("v_and_b32", tmp[1], smask, xr[0])
            p.v("v_lshlrev_b32", tmp[2], 16, xr[1]); p.v("v_and_b32", tmp[3], smask, xr[1])
            for e in range(4): p.v("v_fmac_f32", tmp[e], sa[e], ga[e])
            p.v("v_cvt_pk_bf16_f32", xr[0], tmp[0], tmp[1])
            p.v("v_cvt_pk_bf16_f32", xr[1], tmp[2], tmp[3])
            p.buf_store(xr, vx, o.sOut, so, off, flags=o.opt.get("outflags", "sc1"))
        if prog: p.wait(vm=0)
        for pr in range(2):
            if not prog: p.wait(vm=("tag", f"p{pr}"))
            for hf in range(2):
                finish(X.sub(4 * pr + 2 * hf, 2), [PP.sub((s_ * 2 + pr) * 4 + 2 * hf, 2) for s_ in range(8)], sxo, 64 * pr + 32 * hf)
        done = o.L("fdone")
        p.s("s_cmp_eq_u32", sPT, 0)
        p.branch("s_cbranch_scc1", done)
        if not prog: p.wait(vm=("tag", "p2"))
        finish(X.sub(8, 2), [PS.sub(s_ * 2, 2) for s_ in range(8)], sxs, 0)
        p.label(done)
        if o.ST.on:
            o.ST.stamp(p); o.raw(p, "s_waitcnt vmcnt(0)"); o.ST.stamp(p); o.ST.dump(p, o.pws, o.sw)
        p.endpgm()
        return p

def gen_mega(name="mega_kernel", stamps=False, opt=None):
    k = Mega(name, stamps, opt)
    a = Seg()
    k.setup(a)
    ev, od = k.phase_g(a)
    b = Seg()
    if (opt or {}).get("hplan", "spread") == "gepi":
        for q in k.h_stores(): b.extend(q)
    if (opt or {}).get("hplan") == "split2": k.h_block(b, 0)
    k.ST.stamp(b)
    k.alloc_g2()
    k.phase_q(b)
    d = k.phase_attn(mega=True)
    disp = Seg()
    disp.s("s_cmp_ge_u32", k.ssig, 4)
    disp.branch("s_cbranch_scc1", name + "_g2g")
    n0 = k.ST.n
    ps = k.phase_g2("s"); ps.branch("s_branch", name + "_fin")
    k.ST.n = n0
    pg = k.phase_g2("g"); pg.insert(0, Ins(name + "_g2g:", "label"))
    pf = k.phase_fin(); pf.insert(0, Ins(name + "_fin:", "label"))
    end = Seg(); end.label(name + "_end"); end.endpgm()
    loop = list(d["b1"]) + list(d["b2"])
    traces = []
    for gp in (ev, od):
        head = list(a) + list(gp) + list(b) + list(d["pro"]) + list(d["mp"])
        for g2 in (ps, pg):
            traces.append(head + loop + loop + list(d["b1"]) + list(d["chk"]) + list(disp) + list(g2) + list(pf))
    head = list(a) + list(ev) + list(b) + list(d["pro"]) + list(d["mp"])
    traces.append(head + loop + list(d["b1"]) + list(d["chk"]) + list(d["fb"]) + list(d["fl"]) * 2 + list(d["f2"]) + list(d["mp"]) + loop
                  + list(d["b1"]) + list(d["chk"]) + list(disp) + list(ps) + list(pf))
    if (opt or {}).get("hplan") == "split2":
        traces = [[i for i in t if f"cls{1 - c}" not in i.tags] for t in traces for c in (0, 1)]
    resolve_waits(traces)
    if not (opt or {}).get("nocheck"):
        for i, t in enumerate(traces): check(t, f"{name}:{i}")
    segs = [a, ev, od, b, d["pro"], d["mp"], d["b1"], d["b2"], d["chk"], disp, ps, pg, pf, d["fb"], d["fl"], d["f2"], end]
    return kernel_text(name, render(segs), vgpr=512, accum=256, sgpr=102)

if __name__ == "__main__":
    t = gen_mega(); print(len(t), t.count("\n"))
```

```python
from common import *
from k_gemm2 import lane_tr_addr, dma288_voffs

GREG = 36864
GR = [0, GREG, 2 * GREG]
QSZ = 24576
QR = [110592, 135168, 40960, 110592, 135168, 40960]
KRING, VRING = 0, 65536
QSCALE = 1.4426950408889634 / 128 ** 0.5
LTHR = float(2.0 ** 32)

class K1:
    def __init__(self, name, stamps=False, opt=None):
        self.name, self.opt = name, (opt or {})
        self.ST = Stamps(stamps)
        self.pk, self.pv, self.pwq, self.pwg, self.pwu, self.pws = S(4, 2), S(6, 2), S(8, 2), S(10, 2), S(12, 2), S(14, 2)
        self.sGU, self.sWq, self.sK, self.sV = S(16, 4), S(20, 4), S(24, 4), S(28, 4)
        self.sXN, self.sH, self.sO = S(32, 4), S(36, 4), S(40, 4)
        self.sw, self.shead, self.sP = S(44), S(45), S(46)
        self.sgoff, self.sxoff, self.sqoff, self.skvoff = S(47), S(48), S(49), S(50)
        self.sm9, self.sm1 = S(51), S(52)
        self.shb, self.sob = S(53), S(54)
        self.stmp, self.stmp2, self.sloop, self.sredo = S(55), S(56), S(57), S(58)
        self.sexec = S(60, 2)
        self.lane = V(1)
        self.VD = V(2, 9)
        self.VA = V(11, 3)
        self.VX = V(14, 4)
        self.V16 = V(18)
        self.t0, self.t1, self.t2 = V(19), V(20), V(21)
        self.VH = V(22)
        self.VWd = V(23)

    def setup(self, p):
        o = self
        guard(p, 256, o.name + "_end")
        o.ST.stamp(p)
        for r, k in ((o.pk, "k"), (o.pv, "v"), (o.pwq, "wq"), (o.pwg, "wg"), (o.pwu, "wu"), (o.pws, "ws")):
            p.s_load(r, S(0, 2), KA[k])
        wave_id(p, o.sw, o.lane)
        p.v("v_and_b32", o.lane, 63, V(0))
        p.s("s_and_b32", o.stmp, S(2), 7)
        p.s("s_lshl_b32", o.stmp, o.stmp, 2)
        p.s("s_bfe_u32", o.stmp2, S(2), 0x20003)
        p.s("s_add_u32", o.shead, o.stmp, o.stmp2)
        p.s("s_lshr_b32", o.sP, S(2), 5)
        p.s("s_mul_i32", o.sm9, o.sw, 9216)
        p.s("s_lshl_b32", o.sm1, o.sw, 10)
        dma288_voffs(p, o.VD, o.lane, o.t0, o.t1, o.t2, 9216, o.stmp)
        lane_tr_addr(p, o.VA[0], o.lane, o.t0, o.t1, 288)
        p.v("v_add_u32", o.VA[1], GR[1], o.VA[0])
        p.v("v_add_u32", o.VA[2], GR[2], o.VA[0])
        p.v("v_lshlrev_b32", o.V16, 4, o.lane)
        for pb in range(4):
            p.v("v_add_u32", o.VX[pb], pb * 18 * 1024, o.V16)
        p.wait(lgkm=0)
        p.s("s_cmp_lt_u32", o.sw, 2)
        p.s("s_cselect_b32", o.sGU[0], o.pwg[0], o.pwu[0])
        p.s("s_cselect_b32", o.sGU[1], o.pwg[1], o.pwu[1])
        p.s("s_mov_b32", o.sGU[2], SZ["wg"])
        p.s("s_mov_b32", o.sGU[3], 0x20000)
        make_srd(p, o.sXN, o.pws, SZ_XN, add=WS_XN)
        p.s("s_and_b32", o.stmp, o.sw, 1)
        p.s("s_mul_i32", o.sgoff, o.stmp, 32 * 9216)
        p.s("s_mul_i32", o.stmp, o.shead, 288)
        p.s("s_add_u32", o.sgoff, o.sgoff, o.stmp)
        p.s("s_lshl_b32", o.stmp, o.sP, 4)
        p.s("s_lshl_b32", o.stmp2, o.sw, 2)
        p.s("s_add_u32", o.stmp, o.stmp, o.stmp2)
        p.s("s_mul_i32", o.sxoff, o.stmp, 18 * 1024)
        p.s("s_mul_i32", o.shb, o.stmp, 144 * 1024)
        p.s("s_mul_i32", o.sob, o.stmp, 128 * 1024)

    def setup_late(self, p):
        o = self
        make_srd(p, o.sWq, o.pwq, SZ["wq"])
        make_srd(p, o.sH, o.pws, SZ_H, add=WS_H)
        make_srd(p, o.sO, o.pws, SZ_O, add=WS_O)
        p.s("s_lshr_b32", o.stmp, o.shead, 1)
        p.s("s_lshl_b32", o.stmp, o.stmp, 19)
        make_srd(p, o.sK, o.pk, 524288, add=o.stmp)
        make_srd(p, o.sV, o.pv, 524288, add=o.stmp)
        t0, t1, t2 = o.t0, o.t1, o.t2
        p.v("v_lshrrev_b32", t0, 4, o.lane)
        p.s("s_lshl_b32", o.stmp, o.sw, 2)
        p.v("v_add_u32", t0, o.stmp, t0)
        p.v("v_and_b32", t1, 7, t0)
        p.v("v_lshlrev_b32", t1, 1, t1)
        p.v("v_and_b32", t2, 15, o.lane)
        p.v("v_xor_b32", t1, t1, t2)
        p.v("v_lshlrev_b32", t1, 4, t1)
        p.v("v_lshl_add_u32", o.VWd, t0, 13, t1)
        p.s("s_lshl_b32", o.sqoff, o.shead, 8)
        p.s("s_lshl_b32", o.stmp, o.shead, 12)
        p.s("s_add_u32", o.sob, o.sob, o.stmp)

    def g_dma(self, c):
        o = self; out = []
        rg = (GR[c % 3], GR[c % 3] + GREG)
        for j in range(9):
            q = Seg()
            q.s("s_add_u32", M0, o.sm9, GR[c % 3] + 1024 * j)
            q.buf_dma(o.VD[j], o.sGU, o.sgoff, 0, flags=o.opt.get("wflags", ""), tags=[f"G{c}"], lds=rg)
            if j == 8: q.s("s_add_u32", o.sgoff, o.sgoff, 64 * 9216)
            out.append(q)
        return out
    def x_loads(self, dst, nks, tag, rewind=None):
        o = self; out = []
        for ks in range(nks):
            for pb in range(4):
                q = Seg()
                q.buf_load(dst(pb, ks), o.VX[pb], o.sXN, o.sxoff, 1024 * ks, tags=[tag])
                out.append(q)
        out[-1].s("s_add_u32", o.sxoff, o.sxoff, 1024 * nks)
        return out
    def q_dma(self, c):
        o = self; out = []
        rg = (QR[c], QR[c] + QSZ)
        for i in range(6):
            q = Seg()
            q.s("s_add_u32", M0, o.sm1, QR[c] + 4096 * i)
            q.buf_dma(o.VWd, o.sWq, o.sqoff, 0, flags=o.opt.get("wflags", ""), tags=[f"Q{c}"], lds=rg)
            q.s("s_add_u32", o.sqoff, o.sqoff, 16 * 8192)
            out.append(q)
        return out
    def kv_dma(self, j):
        o = self; out = []
        slot = j % 4
        for i in range(4):
            q = Seg()
            q.s("s_add_u32", M0, o.sm1, KRING + slot * 16384 + 4096 * i)
            q.buf_dma(o.VKd, o.sK, o.skvoff, 0, tags=[f"A{slot}", "kvdma"], lds=(KRING + slot * 16384, KRING + slot * 16384 + 16384))
            out.append(q)
            q = Seg()
            q.s("s_add_u32", M0, o.sm1, VRING + slot * 16384 + 4096 * i)
            q.buf_dma(o.VVd, o.sV, o.skvoff, 0, tags=[f"A{slot}", "kvdma"], lds=(VRING + slot * 16384, VRING + slot * 16384 + 16384))
            q.s("s_add_u32", o.skvoff, o.skvoff, 4096)
            out.append(q)
        return out

    @staticmethod
    def put_now(p, items):
        for q in items:
            if q[0].text.startswith("s_add_u32 m0"):
                p.add(q[0]); p.nop(0); p.extend(q[1:])
            else:
                p.extend(q)
    @staticmethod
    def place(fl, q, g):
        if q[0].text.startswith("s_add_u32 m0"):
            fl.append((g - 1, q[0])); fl += [(g, i) for i in q[1:]]
        else:
            fl += [(g, i) for i in q]

    def gacc(self, fb, m, pb):
        idx = ((fb * 2 + m) * 4 + pb) * 4
        return V(24 + idx, 4) if fb < 7 else A(idx - 224, 4)
    def gx(self, c, pb, ks): return A(64 + (c % 3) * 32 + (pb * 2 + ks) * 4, 4)
    def gaf(self, s_, m, ks): return A(160 + s_ * 16 + (m * 2 + ks) * 4, 4)
    def g_reads(self, c, fb, s_):
        out = []
        for m in range(2):
            for ks in range(2):
                for h in range(2):
                    q = Seg()
                    q.ds_read("ds_read_b64_tr_b16", self.gaf(s_, m, ks).sub(2 * h, 2), self.VA[c % 3],
                              m * 18432 + (32 * ks + 16 * h) * 288 + 32 * fb, lds=(GR[c % 3], GR[c % 3] + GREG), tags=["a"])
                    out.append(q)
        return out
    def qx(self, c, pb, ks): return A((c % 3) * 48 + (pb * 3 + ks) * 4, 4) if False else A(64 + (c % 3) * 48 + (pb * 3 + ks) * 4, 4)

    def phase_g(self, p):
        o = self
        xl = lambda c: o.x_loads(lambda pb, ks: o.gx(c, pb, ks), 2, f"G{c}")
        o.put_now(p, o.g_dma(0)); o.put_now(p, xl(0))
        o.setup_late(p)
        o.put_now(p, o.g_dma(1)); o.put_now(p, xl(1))
        o.ST.stamp(p)
        p.wait(vm=("tag", "G0")); p.barrier()
        o.ST.stamp(p)
        for q in o.g_reads(0, 0, 0): p.extend(q)
        p.wait(lgkm=0)
        gi = 0
        for c in range(9):
            if c + 2 < 9:
                dq, xq = o.g_dma(c + 2), xl(c + 2)
            elif c == 7:
                dq = o.q_dma(0)
                q = Seg(); q.s("s_sub_u32", o.sxoff, o.sxoff, 18 * 1024)
                xq = [q]
            else:
                dq, xq = o.q_dma(1), []
            for fb in range(9):
                s_ = gi % 2
                mf = Seg()
                for m in range(2):
                    for pb in range(4):
                        for ks in range(2):
                            cin = 0 if (c == 0 and ks == 0) else o.gacc(fb, m, pb)
                            mf.mfma(o.gacc(fb, m, pb), o.gaf(s_, m, ks), o.gx(c, pb, ks), cin)
                fl = []
                last = (c == 8 and fb == 8)
                g0 = 0
                if fb == 8 and not last:
                    q = Seg(); q.wait(vm=("tag", f"G{c+1}")); q.barrier()
                    fl += [(0, i) for i in q]; g0 = 1
                if not last:
                    nx = (c, fb + 1) if fb < 8 else (c + 1, 0)
                    for k, q in enumerate(o.g_reads(nx[0], nx[1], 1 - s_)):
                        fl += [(g0 + k // 2, i) for i in q]
                if dq: o.place(fl, dq.pop(0), 7)
                if xq: o.place(fl, xq.pop(0), 11)
                if not last:
                    q = Seg(); q.wait(lgkm=0); fl += [(15, i) for i in q]
                p.extend(weave(mf, fl)); gi += 1
            assert not dq and not xq
        o.ST.stamp(p)
        o.put_now(p, o.x_loads(lambda pb, ks: o.qx(0, pb, ks), 3, "Q0"))
        o.put_now(p, o.x_loads(lambda pb, ks: o.qx(1, pb, ks), 3, "Q1"))
        T = V(248, 8)
        for pb in range(4):
            pass
        vh = [o.t0, o.t1, o.t2, o.VH]
        for pb in range(4):
            p.v("v_add_u32", vh[pb], pb * 144 * 1024, o.V16)
        p.s("s_mul_i32", o.stmp2, o.shead, 9)
        for fb in range(9):
            p.s("s_add_u32", o.sloop, o.stmp2, fb)
            p.s("s_lshr_b32", o.stmp, o.sloop, 1)
            p.s("s_lshl_b32", o.stmp, o.stmp, 10)
            p.s("s_and_b32", o.sloop, o.sloop, 1)
            p.s("s_lshl_b32", o.sloop, o.sloop, 3)
            p.s("s_add_u32", o.stmp, o.stmp, o.sloop)
            p.s("s_add_u32", o.stmp, o.stmp, o.shb)
            for pb in range(4):
                g, u = o.gacc(fb, 0, pb), o.gacc(fb, 1, pb)
                if fb >= 7:
                    gg, uu = T.sub(0, 4), T.sub(4, 4)
                    for r in range(4): p.acc_read(gg[r], g[r])
                    for r in range(4): p.acc_read(uu[r], u[r])
                    g, u = gg, uu
                for r in range(4): p.v("v_max_f32", g[r], 0, g[r])
                for r in range(4): p.v("v_mul_f32", g[r], g[r], u[r])
                p.v("v_cvt_pk_bf16_f32", u[0], g[0], g[1])
                p.v("v_cvt_pk_bf16_f32", u[1], g[2], g[3])
                p.buf_store(u.sub(0, 2), vh[pb], o.sH, o.stmp, 0, tags=["hst"])
            if fb == 4: p.wait(vm=16)
        o.ST.stamp(p)

    def qacc(self, db, pb): return V(24 + (db * 4 + pb) * 4, 4)
    def qaf(self, s_, ks): return A(208 + s_ * 12 + ks * 4, 4)
    def sw_addr(self, p, regs, base):
        o = self
        p.v("v_lshrrev_b32", o.t0, 2, o.lane)
        p.v("v_and_b32", o.t1, 7, o.t0)
        p.v("v_lshlrev_b32", o.t0, 8, o.t0)
        p.v("v_and_b32", o.t2, 3, o.lane)
        p.v("v_lshl_add_u32", o.t0, o.t2, 3, o.t0)
        p.v("v_add_u32", o.t0, base, o.t0)
        for db in range(8):
            p.v("v_xor_b32", o.t2, db, o.t1)
            p.v("v_lshl_add_u32", regs[db], o.t2, 5, o.t0)
    def q_reads(self, c, db, s_):
        o = self; out = []
        regs, base = (o.VWlo, 40960) if QR[c] == 40960 else (o.VWhi, 110592)
        for ks in range(3):
            for h in range(2):
                q = Seg()
                q.ds_read("ds_read_b64_tr_b16", o.qaf(s_, ks).sub(2 * h, 2), regs[db], QR[c] - base + (32 * ks + 16 * h) * 256,
                          lds=(QR[c], QR[c] + QSZ), tags=["a"])
                out.append(q)
        return out
    def phase_q(self, p):
        o = self
        o.VWlo, o.VWhi = V(224, 8), V(232, 8)
        o.VKd, o.VVd = V(240), V(241)
        o.sw_addr(p, o.VWhi, 110592)
        f = Seg()
        for db in range(8): f.v("v_subrev_u32", o.VWlo[db], 110592 - 40960, o.VWhi[db])
        t0, t1, t2 = o.t0, o.t1, o.t2
        f.v("v_lshrrev_b32", t0, 4, o.lane)
        f.s("s_lshl_b32", o.stmp, o.sw, 2)
        f.v("v_add_u32", t0, o.stmp, t0)
        f.v("v_and_b32", t2, 15, o.lane)
        f.v("v_xor_b32", t1, t0, t2)
        f.v("v_lshlrev_b32", t1, 4, t1)
        f.v("v_lshl_add_u32", o.VKd, t0, 8, t1)
        f.v("v_and_b32", t1, 7, t0)
        f.v("v_lshlrev_b32", t1, 1, t1)
        f.v("v_xor_b32", t1, t1, t2)
        f.v("v_lshlrev_b32", t1, 4, t1)
        f.v("v_lshl_add_u32", o.VVd, t0, 8, t1)
        f.s("s_mov_b32", o.skvoff, 0)
        late = Seg()
        atomic = Seg()
        if hasattr(o, "q_fill"): o.q_fill(f, late, atomic)
        fq, lq = list(f), list(late)
        xl = lambda c: o.x_loads(lambda pb, ks: o.qx(c, pb, ks), 3, f"Q{c}")
        p.wait(vm=("tag", "Q0")); p.barrier()
        for q in o.q_reads(0, 0, 0): p.extend(q)
        p.wait(lgkm=0)
        gi = 0
        for c in range(6):
            if c + 2 < 6: dq, xq = o.q_dma(c + 2), xl(c + 2)
            else: dq, xq = o.kv_dma(c - 4), []
            if c == 0: hq_ = o.h_stores() if o.opt.get("hplan") in ("late5", "late4", "front") else []
            for db in range(8):
                s_ = gi % 2
                mf = Seg()
                for pb in range(4):
                    for ks in range(3):
                        cin = 0 if (c == 0 and ks == 0) else o.qacc(db, pb)
                        mf.mfma(o.qacc(db, pb), o.qaf(s_, ks), o.qx(c, pb, ks), cin)
                fl = []
                last = (c == 5 and db == 7)
                g0 = 0
                if db == 7 and not last:
                    q = Seg(); q.wait(vm=("tag", f"Q{c+1}")); q.barrier()
                    fl += [(0, i) for i in q]; g0 = 1
                if not last:
                    nx = (c, db + 1) if db < 7 else (c + 1, 0)
                    for k, q in enumerate(o.q_reads(nx[0], nx[1], 1 - s_)):
                        fl += [(g0 + k // 2, i) for i in q]
                spread = hasattr(o, "h_next") and o.opt.get("hplan", "spread") == "spread"
                if spread and c >= 4:
                    for g in (5, 9):
                        if dq: o.place(fl, dq.pop(0), g)
                    if db in (4, 6): o.place(fl, o.h_next(), 4)
                else:
                    if dq: o.place(fl, dq.pop(0), 5)
                    if spread and db == 6: o.place(fl, o.h_next(), 4)
                for g in (7, 9):
                    if xq: o.place(fl, xq.pop(0), g)
                hplan = o.opt.get("hplan", "spread")
                if hq_ and hplan == "late5" and c < 5 and db >= 6:
                    for g in (5, 8): o.place(fl, hq_.pop(0), g)
                if hq_ and hplan == "late4" and c < 4 and db >= 6:
                    for g in ((4, 7, 10) if db == 6 else (4, 8)): o.place(fl, hq_.pop(0), g)
                if hq_ and hplan == "front" and c == 0 and db < 5:
                    for g in (4, 6, 8, 10): o.place(fl, hq_.pop(0), g)
                if c == 5 and db == 0 and atomic: fl += [(3, i) for i in atomic]
                used = {g for g, _ in fl}
                for g in (3, 6, 8, 10):
                    if g in used or (g == 3 and g0): continue
                    src = fq if fq else (lq if c >= 4 else [])
                    for _ in range(2):
                        if src: fl.append((g, src.pop(0)))
                if not last:
                    q = Seg(); q.wait(lgkm=0); fl += [(11, i) for i in q]
                fl.sort(key=lambda x: x[0])
                p.extend(weave(mf, fl)); gi += 1
            assert not dq and not xq, (c, len(dq), len(xq))
            if o.opt.get("gstamps") and c < 5: o.ST.stamp(p)
        assert not hq_ and not fq and not lq, (len(fq), len(lq))
        o.ST.stamp(p)
        if hasattr(o, "after_q_main"): o.after_q_main(p)
        SC2 = V(20, 2)
        p.v("v_mov_b32", SC2[0], QSCALE); p.v("v_mov_b32", SC2[1], QSCALE)
        p.nop(5)
        for pb in range(4):
            for s2 in range(2):
                grp = [(o.qacc(2 * s_, pb), o.qacc(2 * s_ + 1, pb)) for s_ in (2 * s2, 2 * s2 + 1)]
                for a, b in grp:
                    for x in (a, b):
                        p.v("v_pk_mul_f32", x.sub(0, 2), x.sub(0, 2), SC2); p.v("v_pk_mul_f32", x.sub(2, 2), x.sub(2, 2), SC2)
                for a, b in grp:
                    p.v("v_cvt_pk_bf16_f32", a[0], a[0], a[1]); p.v("v_cvt_pk_bf16_f32", a[1], a[2], a[3])
                    p.v("v_cvt_pk_bf16_f32", a[2], b[0], b[1]); p.v("v_cvt_pk_bf16_f32", a[3], b[2], b[3])
                p.nop(0)
                for a, b in grp:
                    p.v("v_permlane32_swap_b32", a[0], a[2]); p.v("v_permlane32_swap_b32", a[1], a[3])
                for a, b in grp:
                    p.v("v_permlane16_swap_b32", a[0], a[2]); p.v("v_permlane16_swap_b32", a[1], a[3])
                if hasattr(o, "h_next") and o.opt.get("hplan", "spread") == "spread" and s2 == 0:
                    p.extend(o.h_next())
        o.ST.stamp(p)

    def alloc_attn(self):
        o = self
        o.SS = V(40, 16); o.NEG = V(72, 16); o.L_ = V(104, 16)
        o.PP = V(136, 8); o.ONES = V(144, 4); o.VK = V(14, 4); o.VV = V(2, 8)
        o.vflag, o.vz = V(10), V(11)
    def ts8(self, qb): return (self.SS if qb < 2 else self.L_).sub((qb % 2) * 8, 8)
    def Oacc(self, db, qb): return A((qb * 8 + db) * 4, 4)
    def KF(self, t, kb, ds): return A(128 + (t % 2) * 32 + (kb * 4 + ds) * 4, 4)
    def VF(self, t, db): return A(192 + (t % 2) * 32 + db * 4, 4)
    def qf(self, qb, ds): return self.qacc(2 * ds, qb)
    def k_reads(self, t):
        o = self; out = []
        slot = (t // 2) % 4
        for kb in range(2):
            for ds in range(4):
                q = Seg()
                q.ds_read("ds_read_b128", o.KF(t, kb, ds), o.VK[ds], KRING + slot * 16384 + ((t % 2) * 32 + 16 * kb) * 256,
                          lds=(KRING + slot * 16384, KRING + slot * 16384 + 16384), tags=["k"])
                out.append(q)
        return out
    def v_reads(self, t):
        o = self; out = []
        slot = (t // 2) % 4
        for db in range(8):
            for h in range(2):
                q = Seg()
                q.ds_read("ds_read_b64_tr_b16", o.VF(t, db).sub(2 * h, 2), o.VV[db], slot * 16384 + ((t % 2) * 32 + 16 * h) * 256,
                          lds=(VRING + slot * 16384, VRING + slot * 16384 + 16384), tags=["v"])
                out.append(q)
        return out
    def k_addr(self, p):
        o = self
        t0, t1, t2 = o.t0, o.t1, o.t2
        VK = V(14, 4)
        p.v("v_and_b32", t0, 15, o.lane)
        p.v("v_lshrrev_b32", t1, 4, o.lane)
        for ds in range(4):
            p.v("v_add_u32", t2, 4 * ds, t1)
            p.v("v_xor_b32", t2, t2, t0)
            p.v("v_lshlrev_b32", t2, 4, t2)
            p.v("v_lshl_add_u32", VK[ds], t0, 8, t2)
    def attn_addr(self, p):
        o = self
        for db in range(8): p.v("v_add_u32", o.VV[db], VRING - 40960, o.VWlo[db])
        for r in range(4): p.v("v_mov_b32", o.ONES[r], 0x3F803F80)

    def slot(self, u, qk=True, sm=True, pv=True, first_pv=False, kr=(), vr=(), dma=None, tail=(), extra=None, dma2=None):
        o = self; opt = o.opt
        rs = opt.get("rowsum", "mfma")
        mfq, mfp = Seg(), Seg(); fl = []
        un, up = u + 1, u - 1
        if qk:
            t, qb = un // 4, un % 4
            Sn = o.SS.sub((un % 2) * 8, 8)
            order = [(kb, ds) for kb in range(2) for ds in range(4)]
            if opt.get("qk_alt"): order = [(kb, ds) for ds in range(4) for kb in range(2)]
            for kb, ds in order:
                d = Sn.sub(kb * 4, 4)
                mfq.mfma(d, o.KF(t, kb, ds), o.qf(qb, ds), o.NEG.sub(qb * 4, 4) if ds == 0 else d)
        if pv:
            t, qb = up // 4, up % 4
            Pp = o.PP.sub((up % 2) * 4, 4)
            for db in range(8):
                mfp.mfma(o.Oacc(db, qb), o.VF(t, db), Pp, 0 if first_pv else o.Oacc(db, qb))
            if rs == "mfma":
                mfp.mfma(o.L_.sub(qb * 4, 4), o.ONES, Pp, 0 if first_pv else o.L_.sub(qb * 4, 4))
            if rs == "m4":
                lq = o.L_.sub(qb * 4, 4)
                q4 = Seg()
                q4.mfma4(lq, o.ONES.sub(0, 2), Pp.sub(0, 2), 0 if first_pv else lq)
                q4.mfma4(lq, o.ONES.sub(0, 2), Pp.sub(2, 2), lq)
                mfp.insert(4, q4[0]); mfp.append(q4[1])
        mf = Seg()
        if opt.get("mix") and qk and pv:
            mf.extend(mfq[0:4]); mf.extend(mfp[0:4]); mf.extend(mfq[4:8]); mf.extend(mfp[4:])
        else:
            mf.extend(mfq); mf.extend(mfp)
        n = len(mf)
        lds = list(kr) + list(vr)
        if opt.get("nolds"): lds_ = []
        else: lds_ = lds
        Sc, Pc = o.SS.sub((u % 2) * 8, 8), o.PP.sub((u % 2) * 4, 4)
        def E(i):
            q = Seg()
            if opt.get("noexp"): q.v("v_mov_b32", Sc[i], Sc[i])
            else: q.v("v_exp_f32", Sc[i], Sc[i])
            return list(q)
        def C(i):
            q = Seg(); q.v("v_cvt_pk_bf16_f32", Pc[i], Sc[2 * i], Sc[2 * i + 1]); return list(q)
        def AD(i, first=False):
            q = Seg(); lq = o.L_[(u % 4) * 4 + (i % 2)]
            q.v("v_add_f32", lq, lq, Sc[i]); return list(q)
        if n >= 16 and len(lds) <= 6:
            lds = lds_
            if rs == "valu":
                plan = ["L", "e", "L", "e", "L", "e", "e", "ca", "e", "e", "Da", "e", "e", "cc", "aa", "aa"]
                ei = ci = ai = 0
                plan = ["L", "e", "L", "e", "L", "e", "e", "cc", "e", "e", "D", "e", "e", "cc", "", ""]
                adds = {3: [0], 5: [], 7: [], 8: [], 10: [1, 2], 14: [3, 4, 5], 15: [6, 7]}
                for g in range(16):
                    for k in plan[g]:
                        if k == "L":
                            for _ in range(2):
                                if lds: fl += [(g, i) for i in lds.pop(0)]
                        elif k == "e" and sm: fl += [(g, i) for i in E(ei)]; ei += 1
                        elif k == "c" and sm: fl += [(g, i) for i in C(ci)]; ci += 1
                        elif k == "D" and dma is not None: o.place(fl, dma, g)
                if sm:
                    ap = opt.get("addpos", [2, 4, 7, 9, 14, 14, 15, 15])
                    for i in range(8): fl += [(max(ap[i], {0:1,1:3,2:5,3:6,4:8,5:9,6:11,7:12}[i] + 1), x) for x in AD(i)]
            else:
                plan = {0: "L", 1: "e", 2: "L", 3: "e", 4: "L", 5: "e", 6: "e", 7: "c", 8: "e", 9: "e", 10: "D", 11: "e", 12: "e", 13: "c"}
                if opt.get("aplan", 2) == 1 and dma2 is None and not extra:
                    plan = {0: "L", 1: "e", 2: "L", 3: "e", 4: "L", 5: "e", 6: "e", 7: "c", 8: "e", 9: "e", 10: "e", 11: "e", 12: "c", 14: "D"}
                if opt.get("aplan", 2) == 2 and dma2 is None and not extra:
                    plan = {0: "e", 1: "L", 2: "e", 3: "L", 4: "e", 5: "L", 6: "e", 7: "c", 8: "e", 9: "e", 10: "e", 11: "e", 12: "c", 14: "D"}
                if opt.get("aplan", 2) == 3 and dma2 is None and not extra:
                    plan = {0: "e", 1: "e", 2: "L", 3: "e", 4: "e", 5: "c", 6: "L", 7: "e", 8: "e", 9: "L", 10: "e", 11: "e", 12: "c", 14: "D"}
                if opt.get("aplan", 2) == 4 and dma2 is None and not extra:
                    plan = {0: "e", 1: "L", 2: "e", 3: "L", 4: "e", 5: "L", 6: "e", 7: "c", 8: "e", 9: "e", 10: "e", 11: "e", 12: "c", 15: "D"}
                if opt.get("aplan", 2) == 5 and dma2 is None and not extra:
                    plan = {0: "e", 1: "L", 2: "e", 3: "L", 4: "e", 5: "L", 6: "e", 7: "c", 9: "D", 10: "e", 11: "e", 12: "e", 13: "e", 14: "c"}
                if rs == "m4" and n == 18:
                    plan = {0: "L", 1: "e", 2: "L", 3: "e", 4: "L", 5: "e", 6: "e", 7: "c", 8: "e", 9: "e", 10: "D", 11: "e", 13: "e", 14: "c"}
                ei = ci = 0
                for g in range(n):
                    k = plan.get(g)
                    if k == "L":
                        for _ in range(2):
                            if lds: fl += [(g, i) for i in lds.pop(0)]
                    elif k == "e" and sm:
                        fl += [(g, i) for i in E(ei)]; ei += 1
                    elif k == "c" and sm:
                        fl += [(g, i) for i in C(ci) + C(ci + 1)]; ci += 2
                    elif k == "D" and dma is not None:
                        o.place(fl, dma, g)
            g_x = (15, 16) if n == 18 else (14, 15)
            if dma2 is not None: o.place(fl, dma2, g_x[1])
            for gi_, ex in zip(g_x, extra or []): fl += [(gi_, i) for i in ex]
            fl.sort(key=lambda x: x[0])
            fl += [(n - 1, i) for i in tail]
            return weave(mf, fl)
        out = Seg()
        for q in lds: out.extend(q)
        if dma is not None: o.put_now(out, [dma])
        if sm:
            for i in range(8): out.extend(E(i))
            out.nop(0)
            for i in range(4): out.extend(C(i))
            if rs == "valu":
                for i in range(8): out.extend(AD(i))
            out.nop(1)
        out.extend(mf)
        for ex in (extra or []): out.extend(ex)
        out.extend(tail)
        return out

    def prepass_max(self, p, t, first):
        o = self
        for qb in range(4):
            for kb in range(2):
                d = o.ts8(qb).sub(kb * 4, 4)
                for ds in range(4):
                    p.mfma(d, o.KF(t, kb, ds), o.qf(qb, ds), 0 if ds == 0 else d)
        for qb in range(4):
            s8 = o.ts8(qb)
            m = o.NEG[qb * 4]
            if qb == 3: p.nop(0)
            p.v("v_max3_f32", s8[0], s8[0], s8[1], s8[2])
            p.v("v_max3_f32", s8[3], s8[3], s8[4], s8[5])
            p.v("v_max3_f32", s8[0], s8[0], s8[6], s8[7])
            if first: p.v("v_max_f32", m, s8[0], s8[3])
            else: p.v("v_max3_f32", m, m, s8[0], s8[3])
    def finish_max(self, p):
        o = self
        M = [o.NEG[qb * 4] for qb in range(4)]; T = [o.NEG[qb * 4 + 1] for qb in range(4)]
        for op in ("v_permlane32_swap_b32", "v_permlane16_swap_b32"):
            for qb in range(4): p.v("v_mov_b32", T[qb], M[qb])
            for qb in range(4): p.v(op, M[qb], T[qb])
            for qb in range(4): p.v("v_max_f32", M[qb], M[qb], T[qb])
        for qb in range(4): p.v("v_sub_f32", M[qb], 0, M[qb])
        for qb in range(4):
            for r in range(1, 4): p.v("v_mov_b32", o.NEG[qb * 4 + r], M[qb])

    def loop_slot(self, u, first_pv=False, inloop=False, extra=None, early=False):
        o = self
        j = (u + 5) // 8
        pos = (u + 5) % 8
        tk, ik = (u + 1) // 4 + 1, (u + 1) % 4
        tv, iv = (u - 1) // 4 + 1, (u - 1) % 4
        kr = o.k_reads(tk)[2 * ik: 2 * ik + 2]
        vr = o.v_reads(tv)[4 * iv: 4 * iv + 4]
        dma = o.kv_dma(j + 2)[pos]; dma2 = None
        if early:
            d_ = o.kv_dma(j + 2)
            dma, dma2 = (d_[2 * pos], d_[2 * pos + 1]) if pos < 4 else (None, None)
            if inloop and pos == 3 and j % 4 == 2 and hasattr(o, "w2_touch") and not o.opt.get("now2touch"):
                dma2.extend(o.w2_touch())
        if not early and inloop and pos == 7 and j % 4 == 2 and hasattr(o, "w2_touch") and not o.opt.get("now2touch"):
            dma.extend(o.w2_touch())
        w = Seg()
        if u % 4 in (2, 0): w.wait(lgkm=0)
        if pos == 7:
            w.wait(vm=("tag", f"A{(j + 1) % 4}")); w.barrier()
        s_ = o.slot(u, first_pv=first_pv, kr=kr, vr=vr, dma=dma, tail=list(w), extra=extra, dma2=dma2)
        if inloop == 2 and pos == 7 and j % 4 == 2 and hasattr(o, 'h_signal'): o.h_signal(s_)
        return s_

    FLAG = 159744
    def phase_attn(self, mega=False):
        o = self; nm = o.name
        o.alloc_attn()
        pro = Seg(); p = pro
        o.attn_addr(p)
        p.s("s_mov_b32", o.sredo, 0)
        if mega: p.s("s_mov_b32", o.shflag, 2 if o.opt.get("hplan") == "loop" else 1)
        vflag, vz = o.vflag, o.vz
        p.v("v_mov_b32", vflag, o.FLAG)
        p.v("v_mov_b32", vz, 0)
        p.ds_write("ds_write_b32", vflag, vz, lds=(o.FLAG, o.FLAG + 4))
        p.wait(lgkm=0)
        if o.opt.get("prostamps"): o.ST.stamp(p)
        p.wait(vm=("tag", "A0")); p.barrier()
        if o.opt.get("prostamps"): o.ST.stamp(p)
        if mega and o.opt.get("codewarm2", 1): o.code_warm2(p)
        for q in o.k_reads(0): p.extend(q)
        p.wait(lgkm=0)
        sp_ = mega and o.opt.get("hplan", "spread") == "spread"
        if sp_: p.extend(o.h_next())
        o.prepass_max(p, 0, True)
        if sp_: p.extend(o.h_next())
        o.finish_max(p)
        if o.opt.get("prostamps"): o.ST.stamp(p)
        mp = Seg(); p = mp
        p.label(nm + "_amain")
        if o.opt.get("rowsum") in ("valu", "none"):
            for r in range(16): p.v("v_mov_b32", o.L_[r], 0.0 if o.opt.get("rowsum") == "valu" else 1.0)
        d2 = o.kv_dma(2)
        vr0, kr1, vr1 = o.v_reads(0), o.k_reads(1), o.v_reads(1)
        hs = o.h_stores() if (mega and o.opt.get("hplan", "spread") == "attn") else []
        early_ = bool(hs)
        def X(u):
            pos = (u + 5) % 8
            if not (3 <= u <= 34) or pos < 4 or not hs: return None
            return [hs.pop(0) for _ in range(2 if pos == 4 else 1)]
        p.extend(o.slot(-1, qk=True, sm=False, pv=False, kr=kr1[0:2], vr=vr0[0:8], dma=d2[0]))
        o.put_now(p, [d2[1]])
        p.nop(3)
        w = Seg(); w.wait(lgkm=0)
        p.extend(o.slot(0, qk=True, sm=True, pv=False, kr=kr1[2:4], vr=vr0[8:16], dma=d2[2], tail=list(w)))
        o.put_now(p, [d2[3], d2[4]])
        p.extend(o.slot(1, first_pv=True, kr=kr1[4:6], vr=vr1[0:4], dma=d2[5]))
        w = Seg(); w.wait(lgkm=0); w.wait(vm=("tag", "A1")); w.barrier()
        o.put_now(p, [d2[6]])
        p.extend(o.slot(2, first_pv=True, kr=kr1[6:8], vr=vr1[4:8], dma=d2[7], tail=list(w)))
        p.extend(o.loop_slot(3, first_pv=True, early=early_))
        p.extend(o.loop_slot(4, first_pv=True, early=early_))
        base, nit = 5, 8
        if mega and early_:
            for u in range(5, 37): p.extend(o.loop_slot(u, inloop=1, extra=X(u), early=(early_ and u <= 34)))
            base, nit = 37, 7
        assert not hs
        p.s("s_mov_b32", o.sloop, 0)
        if o.opt.get("prostamps"): o.ST.stamp(p)
        b1, b2 = Seg(), Seg()
        b1.label(nm + "_aloop")
        hl = o.h_stores() if (mega and o.opt.get("hplan") == "loop") else []
        for k in range(32):
            ex = [hl.pop(0)] if (hl and (k * 20) // 32 != ((k + 1) * 20) // 32) else None
            (b1 if k <= 27 else b2).extend(o.loop_slot(base + k, inloop=2, extra=ex))
            if k == 27:
                b1.s("s_cmp_eq_u32", o.sloop, nit - 1)
                b1.branch("s_cbranch_scc1", nm + "_adone")
        if mega and o.opt.get("hplan") == "loop":
            assert not hl
            for r in o.sHS: b2.s("s_mov_b32", r, 0x7FF00000)
        b2.s("s_add_u32", o.sloop, o.sloop, 1)
        b2.branch("s_branch", nm + "_aloop")
        chk = Seg(); p = chk
        p.label(nm + "_adone")
        o.ST.stamp(p)
        if mega: o.pre_chk(p)
        p.wait(lgkm=0)
        p.nop(7)
        if o.opt.get("rowsum") in ("valu", "m4"):
            for qb in range(4):
                m, t = o.L_[qb * 4], o.L_[qb * 4 + 1]
                if o.opt.get("rowsum") == "valu": p.v("v_add_f32", m, m, t)
                p.v("v_mov_b32", t, m); p.nop(1)
                p.v("v_permlane32_swap_b32", m, t); p.nop(1)
                p.v("v_add_f32", m, m, t)
                p.v("v_mov_b32", t, m); p.nop(1)
                p.v("v_permlane16_swap_b32", m, t); p.nop(1)
                p.v("v_add_f32", m, m, t)
        if mega: o.attn_epilogue(p)
        p.s("s_mov_b32", o.stmp, LTHR)
        p.v("v_mov_b32", vz, 0)
        for qb in range(4):
            p.v("v_cmp_nlt_f32", VCC, o.L_[qb * 4], o.stmp)
            p.nop(1)
            p.v("v_cndmask_b32", vz, vz, 1, VCC) if False else p.v("v_cndmask_b32_e64", vz, vz, 1, VCC)
        p.ds_write("ds_or_b32", vflag, vz, lds=(o.FLAG + 8, o.FLAG + 12))
        p.wait(vm=("tag", "kvdma") if mega else 0, lgkm=0); p.barrier()
        p.ds_read("ds_read_b32", vz, vflag)
        p.wait(lgkm=0)
        p.v("v_readfirstlane_b32", o.stmp, vz)
        p.nop(3)
        p.s("s_xor_b32", o.stmp2, o.sredo, 1)
        p.s("s_and_b32", o.stmp, o.stmp, o.stmp2)
        p.s("s_cmp_lg_u32", o.stmp, 0)
        p.branch("s_cbranch_scc1", nm + "_afall")
        epi = Seg(); p = epi
        if mega: p = Seg()
        RL = V(24, 4); T = V(32, 64)
        for qb in range(4): p.v("v_rcp_f32", RL[qb], o.L_[qb * 4])
        VO = V(28, 4)
        for qb in range(4): p.v("v_add_u32", VO[qb], qb * 128 * 1024, o.V16)
        k = 0
        for qb in range(4):
            for s_ in range(4):
                t = T.sub((k % 4) * 16, 16); k += 1
                a, b = o.Oacc(2 * s_, qb), o.Oacc(2 * s_ + 1, qb)
                for r in range(4): p.acc_read(t[r], a[r])
                for r in range(4): p.acc_read(t[4 + r], b[r])
                for r in range(8): p.v("v_mul_f32", t[r], t[r], RL[qb])
                for r in range(4): p.v("v_cvt_pk_bf16_f32", t[8 + r], t[2 * r], t[2 * r + 1])
                p.buf_store(t.sub(8, 4), VO[qb], o.sO, o.sob, 1024 * s_)
        if o.ST.on and not mega:
            o.ST.stamp(p); p.wait(vm=0); o.ST.stamp(p); o.ST.dump(p, o.pws, o.sw)
        p.endpgm()
        fb = Seg(); p = fb
        p.label(nm + "_afall")
        p.wait(vm=0)
        p.s("s_mov_b32", o.sredo, 1)
        for qb in range(4): p.v("v_mov_b32", o.NEG[qb * 4], 0xFF800000)
        p.s("s_mov_b32", o.skvoff, 0)
        p.s("s_mov_b32", o.sloop, 0)
        fl_ = Seg(); p = fl_
        p.label(nm + "_afloop")
        for i in range(4):
            p.s("s_add_u32", M0, o.sm1, KRING + 4096 * i); p.nop(0)
            p.buf_dma(o.VKd, o.sK, o.skvoff, 0, lds=(KRING, KRING + 16384))
            p.s("s_add_u32", o.skvoff, o.skvoff, 4096)
        p.wait(vm=0); p.barrier()
        for tt in range(2):
            for q in o.k_reads(tt): p.extend(q)
            p.wait(lgkm=0)
            o.prepass_max(p, tt, False)
        p.barrier()
        p.s("s_add_u32", o.sloop, o.sloop, 1)
        p.s("s_cmp_lt_u32", o.sloop, 32)
        p.branch("s_cbranch_scc1", nm + "_afloop")
        f2 = Seg(); p = f2
        o.finish_max(p)
        p.s("s_mov_b32", o.skvoff, 0)
        o.put_now(p, o.kv_dma(0)); o.put_now(p, o.kv_dma(1))
        p.wait(vm=("tag", "A0")); p.barrier()
        for q in o.k_reads(0): p.extend(q)
        p.wait(lgkm=0)
        p.branch("s_branch", nm + "_amain")
        return dict(pro=pro, mp=mp, b1=b1, b2=b2, chk=chk, epi=epi, fb=fb, fl=fl_, f2=f2)

def gen_main(name="main_kernel", stamps=False, opt=None):
    k = K1(name, stamps, opt)
    a = Seg()
    k.setup(a); k.phase_g(a); k.phase_q(a)
    d = k.phase_attn()
    end = Seg(); end.label(name + "_end"); end.endpgm()
    head = list(a) + list(d["pro"]) + list(d["mp"])
    loop = list(d["b1"]) + list(d["b2"])
    t1 = head + loop + loop + list(d["b1"]) + list(d["chk"]) + list(d["epi"])
    t2 = head + loop + list(d["b1"]) + list(d["chk"]) + list(d["fb"]) + list(d["fl"]) * 2 + list(d["f2"]) + list(d["mp"]) + loop + list(d["b1"]) + list(d["chk"]) + list(d["epi"])
    resolve_waits(t1 + t2)
    if not (opt or {}).get("nocheck"):
        check(t1, name + ":normal"); check(t2, name + ":fallback")
    return kernel_text(name, render([a, d["pro"], d["mp"], d["b1"], d["b2"], d["chk"], d["epi"], d["fb"], d["fl"], d["f2"], end]),
                       vgpr=512, accum=256, sgpr=100)

if __name__ == "__main__":
    t = gen_main(); print(len(t), t.count("\n"))
```

```python
from common import *
from k_gemm2 import lane_tr_addr, dma288_voffs
import k_main
from k_main import K1, GR, GREG, QR, QSZ, KRING, VRING, QSCALE, LTHR

REG2 = 36864
KS = 131072
C_XN, C_H, C_O, C_PART = 0, 1, 2, 3
SPIN_MAX = 1 << 18

class Mega(K1):
    def __init__(self, name, stamps=False, opt=None):
        super().__init__(name, stamps, opt)
        self.px, self.pwo, self.pwd, self.pout, self.pdbg = S(62, 2), S(64, 2), S(66, 2), S(68, 2), S(70, 2)
        self.sDbg = S(72, 4)
        self.sX = S(76, 4)
        self.sW2, self.sB2, self.sPart = S(16, 4), S(20, 4), S(32, 4)
        self.sOut = S(80, 4)
        self.ssig, self.sP2, self.sN = S(84), S(85), S(86)
        self.swoff, self.sboff, self.spart = S(87), S(88), S(89)
        self.scnt = S(90)
        self.stoff = S(47)
        self.shflag = S(60)
        self.swqt = S(61)
        self.hpos = 6
        self.vpoll2 = V(22)
        self.sHS = [S(92), S(93), S(94), S(95), S(59)]
        self.lab = 0
        self.SC = self.opt.get("sc", "sc1")
        self.SCS = self.opt.get("scs", self.SC)

    def L(self, s):
        self.lab += 1
        return f"{self.name}_{s}{self.lab}"

    def raw(self, p, text):
        p.add(Ins(text, "other"))
    def signal(self, p, sP, slot, vt, inc=1):
        o = self; skip = o.L("sig")
        p.s("s_cmp_lg_u32", o.sw, 0)
        p.branch("s_cbranch_scc1", skip)
        p.s("s_lshl_b32", o.scnt, sP, 3)
        p.s("s_add_u32", o.scnt, o.scnt, slot)
        p.s("s_lshl_b32", o.scnt, o.scnt, 2)
        o.raw(p, f"v_mov_b32 {vt[0]}, {o.scnt}")
        o.raw(p, f"v_mov_b32 {vt[1]}, {inc}")
        o.raw(p, "s_mov_b64 exec, 1")
        o.raw(p, f"buffer_atomic_add {vt[1]}, {vt[0]}, {o.sDbg}, 0 offen sc1")
        o.raw(p, "s_mov_b64 exec, -1")
        p.label(skip)
    def sample_o(self, p, vs):
        o = self
        p.s("s_lshl_b32", o.scnt, o.sP2, 5)
        p.s("s_add_u32", o.scnt, o.scnt, 4 * C_O)
        p.v("v_mov_b32", vs[0], o.scnt)
        p.buf_load(vs[1], vs[0], o.sDbg, 0, 0, flags="sc1", tags=["osample"])
    def await_o(self, p, vt, presampled=False):
        o = self
        p.s("s_lshl_b32", o.stmp2, o.ssig, 3)
        o.await_(p, o.sP2, C_O, 8, vt, field=o.stmp2, presampled=presampled)
    def await_(self, p, sP, slot, target, vt, field=None, presampled=False):
        o = self; loop, chk, done = o.L("poll"), o.L("pchk"), o.L("got")
        p.s("s_cmp_lg_u32", o.sw, 0)
        p.branch("s_cbranch_scc1", done)
        if not presampled:
            p.s("s_lshl_b32", o.scnt, sP, 3)
            p.s("s_add_u32", o.scnt, o.scnt, slot)
            p.s("s_lshl_b32", o.scnt, o.scnt, 2)
            o.raw(p, f"v_mov_b32 {vt[0]}, {o.scnt}")
        o.raw(p, f"s_mov_b32 {o.scnt}, {SPIN_MAX}")
        def test(v):
            o.raw(p, f"v_readfirstlane_b32 {o.stmp}, {v}")
            o.raw(p, "s_nop 3")
            if field is not None:
                o.raw(p, f"s_lshr_b32 {o.stmp}, {o.stmp}, {field}")
                o.raw(p, f"s_and_b32 {o.stmp}, {o.stmp}, 0xff")
            o.raw(p, f"s_cmp_ge_u32 {o.stmp}, {target}")
        if o.opt.get("poll2") and not presampled:
            vb = V(vt[1].i + 1) if o.opt.get("poll2") else None
            vb = o.vpoll2
            fin = o.L("pdone")
            o.raw(p, f"buffer_load_dword {vt[1]}, {vt[0]}, {o.sDbg}, 0 offen sc1")
            p.label(loop)
            o.raw(p, f"s_sleep {o.opt.get('poll2')}")
            o.raw(p, f"buffer_load_dword {vb}, {vt[0]}, {o.sDbg}, 0 offen sc1")
            o.raw(p, "s_waitcnt vmcnt(1)")
            test(vt[1])
            o.raw(p, f"s_cbranch_scc1 {fin}")
            o.raw(p, f"s_sleep {o.opt.get('poll2')}")
            o.raw(p, f"buffer_load_dword {vt[1]}, {vt[0]}, {o.sDbg}, 0 offen sc1")
            o.raw(p, "s_waitcnt vmcnt(1)")
            test(vb)
            o.raw(p, f"s_cbranch_scc1 {fin}")
            o.raw(p, f"s_sub_u32 {o.scnt}, {o.scnt}, 1")
            o.raw(p, f"s_cmp_lg_u32 {o.scnt}, 0")
            o.raw(p, f"s_cbranch_scc1 {loop}")
            p.label(fin)
        else:
            if presampled: o.raw(p, f"s_branch {chk}")
            p.label(loop)
            o.raw(p, f"buffer_load_dword {vt[1]}, {vt[0]}, {o.sDbg}, 0 offen sc1")
            o.raw(p, "s_waitcnt vmcnt(0)")
            p.label(chk)
            test(vt[1])
            o.raw(p, f"s_cbranch_scc1 {done}")
            o.raw(p, f"s_sleep {o.opt.get('psleep', 1)}")
            o.raw(p, f"s_sub_u32 {o.scnt}, {o.scnt}, 1")
            o.raw(p, f"s_cmp_lg_u32 {o.scnt}, 0")
            o.raw(p, f"s_cbranch_scc1 {loop}")
        p.label(done)
        p.barrier()

    def setup(self, p):
        o = self
        guard(p, 256, o.name + "_end")
        if o.ST.on:
            p.add(Ins("s_memrealtime s[100:101]", "other"))
        for r, k in ((o.px, "x"), (o.pws, "ws"), (o.pwg, "wg"), (o.pwu, "wu"), (o.pwq, "wq"), (o.pdbg, "dbg"), (o.pk, "k"), (o.pv, "v"),
                     (o.pwo, "wo"), (o.pwd, "wd"), (o.pout, "out")):
            p.s_load(r, S(0, 2), KA[k])
        wave_id(p, o.sw, o.lane)
        p.v("v_and_b32", o.lane, 63, V(0))
        if o.opt.get("codewarm", 1) == 2: o.code_warm(p, o.name, o.name + "_adone", 128)
        o.ST.stamp(p)
        if o.ST.on:
            p.add(Ins("v_writelane_b32 v0, s100, 63", "other"))
        p.s("s_and_b32", o.stmp, S(2), 7)
        p.s("s_lshl_b32", o.stmp, o.stmp, 2)
        p.s("s_bfe_u32", o.stmp2, S(2), 0x20003)
        p.s("s_add_u32", o.shead, o.stmp, o.stmp2)
        p.s("s_lshr_b32", o.sP, S(2), 5)
        p.s("s_mul_i32", o.sm9, o.sw, 9216)
        p.s("s_lshl_b32", o.sm1, o.sw, 10)
        p.wait(lgkm=0)
        make_srd(p, o.sX, o.px, SZ["x"])
        make_srd(p, o.sXN, o.pws, SZ_XN, add=WS_XN)
        make_srd(p, o.sDbg, o.pdbg, 256)
        RAW = V(24, 20)
        va, vs = V(44), V(45)
        o.ln_issue(p, RAW, va, vs)
        p.v("v_lshlrev_b32", o.V16, 4, o.lane)
        early = o.opt.get("g0early", 0)
        def rest(p):
            p.s("s_cmp_lt_u32", o.sw, 2)
            p.s("s_cselect_b32", o.sGU[0], o.pwg[0], o.pwu[0])
            p.s("s_cselect_b32", o.sGU[1], o.pwg[1], o.pwu[1])
            p.s("s_mov_b32", o.sGU[2], SZ["wg"])
            p.s("s_mov_b32", o.sGU[3], 0x20000)
            p.s("s_and_b32", o.stmp, o.sw, 1)
            p.s("s_mul_i32", o.sgoff, o.stmp, 32 * 9216)
            p.s("s_mul_i32", o.stmp, o.shead, 288)
            p.s("s_add_u32", o.sgoff, o.sgoff, o.stmp)
            dma288_voffs(p, o.VD, o.lane, o.t0, o.t1, o.t2, 9216, o.stmp)
            if early: o.put_now(p, o.g_dma(0))
            make_srd(p, o.sWq, o.pwq, SZ["wq"])
            lane_tr_addr(p, o.VA[0], o.lane, o.t0, o.t1, 288)
            p.v("v_add_u32", o.VA[1], GR[1], o.VA[0])
            p.v("v_add_u32", o.VA[2], GR[2], o.VA[0])
            for ks in range(3):
                p.v("v_add_u32", o.VX[ks], ks * KS, o.V16)
            p.s("s_lshl_b32", o.stmp, o.sP, 4)
            p.s("s_lshl_b32", o.stmp2, o.sw, 2)
            p.s("s_add_u32", o.stmp, o.stmp, o.stmp2)
            p.s("s_lshl_b32", o.sxoff, o.stmp, 10)
            p.s("s_mov_b32", o.shb, o.sxoff)
            p.s("s_mov_b32", o.sob, o.sxoff)
            o.setup_late(p)
        def ln_part(p):
            lnskip2 = o.L("lnskip")
            p.s("s_cmp_ge_u32", S(2), 128)
            p.branch("s_cbranch_scc1", lnskip2)
            ln = Seg()
            o.ln_compute(ln, RAW, vs)
            p.extend(ln)
            if o.opt.get("lnstamps"): o.ST.stamp(p)
            o.raw(p, "s_waitcnt vmcnt(0)")
            if o.opt.get("lnstamps"): o.ST.stamp(p)
            p.barrier()
            p.s("s_lshr_b32", o.stmp2, S(2), 4)
            o.signal(p, o.stmp2, C_XN, (V(46), V(47)))
            p.label(lnskip2)
        if o.opt.get("lnfirst"):
            ln_part(p); rest(p)
        else:
            rest(p); ln_part(p)
        o.ST.stamp(p)
        if o.opt.get("codewarm", 1) == 1: o.code_warm(p, o.name, o.name + o.opt.get("cwend", "_aloop"), 128)
        if o.opt.get("tlbwarm"): o.tlb_warm(p)
        if not early: o.put_now(p, o.g_dma(0))
        o.put_now(p, o.g_dma(1))
        if o.opt.get("wqstart"): o.touch_wq_start(p)
        o.await_(p, o.sP, C_XN, 16, (V(46), V(47)))
        o.ST.stamp(p)

    def code_addr(self, p, va, lo, hi, nwave_bits, sidx, forward=False):
        o = self; here = o.L("pc")
        sp = S(96, 2) if not o.ST.on else S(92, 2)
        o.raw(p, f"s_getpc_b64 {sp}")
        p.label(here)
        if forward:
            o.raw(p, f"s_add_u32 {sp[0]}, {sp[0]}, {lo}-{here}")
            o.raw(p, f"s_addc_u32 {sp[1]}, {sp[1]}, 0")
        else:
            o.raw(p, f"s_sub_u32 {sp[0]}, {sp[0]}, {here}-{lo}")
            o.raw(p, f"s_subb_u32 {sp[1]}, {sp[1]}, 0")
        o.raw(p, f"s_mul_i32 {o.stmp}, {sidx}, ((({hi}-{lo})+127)/128+{(1 << nwave_bits) - 1})/{1 << nwave_bits}")
        o.raw(p, f"v_min_u32 {va[0]}, ((({hi}-{lo})+127)/128+{(1 << nwave_bits) - 1})/{1 << nwave_bits}-1, {o.lane}")
        o.raw(p, f"v_add_u32 {va[0]}, {o.stmp}, {va[0]}")
        o.raw(p, f"v_lshlrev_b32 {va[0]}, 7, {va[0]}")
        o.raw(p, f"v_min_u32 {va[0]}, {hi}-{lo}-4, {va[0]}")
        o.raw(p, f"v_mov_b32 {va[1]}, {sp[1]}")
        o.raw(p, f"v_add_co_u32 {va[0]}, vcc, {sp[0]}, {va[0]}")
        o.raw(p, "s_nop 1")
        o.raw(p, f"v_addc_co_u32 {va[1]}, vcc, 0, {va[1]}, vcc")
    def code_warm(self, p, lo, hi, first):
        o = self; skip = o.L("cw")
        p.s("s_cmp_lt_u32", S(2), first)
        p.branch("s_cbranch_scc1", skip)
        p.s("s_sub_u32", o.stmp2, S(2), first)
        p.s("s_lshr_b32", o.stmp2, o.stmp2, 3)
        p.s("s_lshl_b32", o.stmp2, o.stmp2, 2)
        p.s("s_add_u32", o.stmp2, o.stmp2, o.sw)
        va = V(62, 2)
        o.code_addr(p, va, lo, hi, 6, o.stmp2)
        p.add(Ins(f"global_load_dword a197, {va}, off", "vmld", [("a", 197)], va.regs(), tags=["cw"]))
        p.label(skip)

    def code_warm2(self, p):
        o = self
        p.s("s_lshr_b32", o.stmp2, S(2), 3)
        p.s("s_lshl_b32", o.stmp2, o.stmp2, 2)
        p.s("s_add_u32", o.stmp2, o.stmp2, o.sw)
        va = V(254, 2)
        o.code_addr(p, va, o.name + "_adone", o.name + "_afall", 7, o.stmp2, forward=True)
        p.add(Ins(f"global_load_dword v253, {va}, off", "vmld", [("v", 253)], va.regs(), tags=["cw"]))
    def tlb_warm(self, p):
        o = self; skip = o.L("tlb")
        step = o.opt.get("tlbstep", 1 << 21)
        p.s("s_cmp_lt_u32", S(2), 128)
        p.branch("s_cbranch_scc1", skip)
        srd = S(96, 4) if not o.ST.on else S(92, 4)
        vt = V(60)
        p.v("v_mul_u32_u24", vt, step >> 8, o.lane)
        p.v("v_lshlrev_b32", vt, 8, vt)
        k = 0
        for ptr, size in ((o.pws, 0x3640000), (o.pk, SZ["k"]), (o.pv, SZ["v"]), (o.pwq, SZ["wq"]), (o.pwo, SZ["wo"]), (o.pwd, SZ["wd"]), (o.pout, SZ["out"])):
            make_srd(p, srd, ptr, size)
            for base in range(0, size, 64 * step):
                p.s("s_mov_b32", o.stmp, base)
                p.buf_load(A(200 + k), vt, srd, o.stmp, 0, tags=["tlb"]); k += 1
        p.label(skip)

    def ln_issue(self, p, RAW, va, vs):
        o = self; t0, t1, t2 = o.t0, o.t1, o.t2
        p.v("v_lshrrev_b32", t0, 4, o.lane)
        p.s("s_lshl_b32", o.stmp2, o.sw, 2)
        p.v("v_add_u32", t0, o.stmp2, t0)
        p.v("v_and_b32", t1, 3, o.lane)
        p.v("v_bfe_u32", t2, o.lane, 2, 2)
        p.v("v_mul_u32_u24", va, 1152, t0)
        p.v("v_lshl_add_u32", va, t1, 3, va)
        p.v("v_lshl_add_u32", va, t2, 6, va)
        vb = V(48); xf = o.opt.get("xflags", "")
        p.v("v_cmp_gt_u32", VCC, 2, t2)
        p.v("v_mov_b32", V(49), 0x7FFF0000)
        p.nop(0)
        p.v("v_cndmask_b32", vb, V(49), va, VCC)
        skip = o.L("lnskip")
        p.s("s_cmp_ge_u32", S(2), 128)
        p.branch("s_cbranch_scc1", skip)
        p.s("s_mul_i32", o.stmp, S(2), 16 * 1152)
        for i in range(4):
            p.buf_load(RAW.sub(4 * i, 2), va, o.sX, o.stmp, 256 * i, flags=xf, tags=["ln"])
            p.buf_load(RAW.sub(4 * i + 2, 2), va, o.sX, o.stmp, 256 * i + 32, flags=xf, tags=["ln"])
        p.buf_load(RAW.sub(16, 2), vb, o.sX, o.stmp, 1024, flags=xf, tags=["ln"])
        p.buf_load(RAW.sub(18, 2), vb, o.sX, o.stmp, 1056, flags=xf, tags=["ln"])
        if o.opt.get("xnpre"):
            p.s("s_lshl_b32", o.stmp, S(2), 10)
            p.v("v_mov_b32", V(61), 0)
            p.buf_load(A(198), V(61), o.sXN, o.stmp, 0, tags=["pre"])
            p.buf_load(A(199), V(61), o.sDbg, 0, 0, flags="sc1", tags=["pre"])
        p.label(skip)
        p.v("v_lshlrev_b32", vs, 17, t2)
        p.v("v_lshl_add_u32", vs, t0, 4, vs)
        p.v("v_lshl_add_u32", vs, t1, 8, vs)
        p.v("v_cndmask_b32", V(50), V(49), vs, VCC)
        p.v("v_cndmask_b32_e64", V(52), 0, 1.0, VCC)
        p.v("v_mov_b32", V(53), V(52))

    def ln_compute(self, p, RAW, vs):
        o = self
        F = V(56, 40); ACC = V(96, 4); M = V(100, 2); O_ = V(104, 20)
        smask = o.stmp
        p.s("s_mov_b32", smask, 0xFFFF0000)
        p.wait(vm=("tag", "ln"))
        if o.opt.get("lnstamps"): o.ST.stamp(p)
        for d in range(20):
            p.v("v_lshlrev_b32", F[2 * d], 16, RAW[d])
            p.v("v_and_b32", F[2 * d + 1], smask, RAW[d])
        def pk(op, d, a, b, c=None, mods=""):
            if c is None: p.v(op, d, a, b, mods=mods)
            else: p.v(op, d, a, b, c, mods=mods)
        pk("v_pk_add_f32", ACC.sub(0, 2), F.sub(0, 2), F.sub(2, 2))
        pk("v_pk_add_f32", ACC.sub(2, 2), F.sub(4, 2), F.sub(6, 2))
        for d in range(4, 20):
            a = ACC.sub(2 * (d % 2), 2)
            pk("v_pk_add_f32", a, a, F.sub(2 * d, 2))
        pk("v_pk_add_f32", ACC.sub(0, 2), ACC.sub(0, 2), ACC.sub(2, 2))
        p.nop(0)
        p.v("v_add_f32", ACC[0], ACC[0], ACC[1])
        def rowreduce(x):
            for sh in (8, 4, 2, 1):
                p.nop(1)
                p.v("v_add_f32_dpp", x, x, x, mods=f"row_ror:{sh} row_mask:0xf bank_mask:0xf")
        rowreduce(ACC[0])
        p.v("v_mul_f32", M[0], -1.0 / 576.0, ACC[0])
        p.v("v_mov_b32", M[1], M[0])
        p.nop(0)
        for d in range(20):
            pk("v_pk_add_f32", F.sub(2 * d, 2), F.sub(2 * d, 2), M)
        for d in range(16, 20):
            pk("v_pk_mul_f32", F.sub(2 * d, 2), F.sub(2 * d, 2), V(52, 2))
        pk("v_pk_mul_f32", ACC.sub(0, 2), F.sub(0, 2), F.sub(0, 2))
        pk("v_pk_mul_f32", ACC.sub(2, 2), F.sub(2, 2), F.sub(2, 2))
        for d in range(2, 20):
            a = ACC.sub(2 * (d % 2), 2)
            pk("v_pk_fma_f32", a, F.sub(2 * d, 2), F.sub(2 * d, 2), a)
        pk("v_pk_add_f32", ACC.sub(0, 2), ACC.sub(0, 2), ACC.sub(2, 2))
        p.nop(0)
        p.v("v_add_f32", ACC[0], ACC[0], ACC[1])
        rowreduce(ACC[0])
        p.v("v_mov_b32", ACC[1], 1e-5)
        p.v("v_fmac_f32", ACC[1], 1.0 / 576.0, ACC[0])
        p.v("v_sqrt_f32", ACC[2], ACC[1])
        p.nop(0)
        p.v("v_rcp_f32", M[0], ACC[2])
        p.nop(0)
        p.v("v_mov_b32", M[1], M[0])
        p.nop(0)
        for d in range(20):
            pk("v_pk_mul_f32", F.sub(2 * d, 2), F.sub(2 * d, 2), M)
        for d in range(20):
            p.v("v_cvt_pk_bf16_f32", O_[d], F[2 * d], F[2 * d + 1])
        p.s("s_lshl_b32", o.stmp, S(2), 10)
        for i in range(5):
            p.buf_store(O_.sub(4 * i, 4), vs if i < 4 else V(50), o.sXN, o.stmp, 0, flags=o.SC)
            if i < 4: p.s("s_add_u32", o.stmp, o.stmp, 4 * KS)

    def touch_weights(self, p):
        o = self; t0, t1, t2 = o.t0, o.t1, o.t2
        J = V(54)
        fl = o.opt.get("tflags", "")
        p.v("v_and_b32", t1, 3, o.lane)
        p.v("v_lshlrev_b32", t1, 7, t1)
        p.v("v_min_u32", t1, 284, t1)
        p.s("s_mul_i32", o.stmp, o.sP, 72)
        p.s("s_and_b32", o.stmp2, o.sw, 1)
        p.s("s_mul_i32", o.stmp2, o.stmp2, 36)
        p.s("s_add_u32", o.stmp, o.stmp, o.stmp2)
        p.s("s_mul_i32", o.stmp, o.stmp, 9216)
        p.s("s_mul_i32", o.stmp2, o.shead, 288)
        p.s("s_add_u32", o.stmp, o.stmp, o.stmp2)
        for i in range(3):
            p.v("v_lshrrev_b32", t0, 2, o.lane)
            p.v("v_add_u32", t0, 16 * i, t0)
            p.v("v_min_u32", t0, 35, t0)
            p.v("v_mul_u32_u24", t0, 9216, t0)
            p.v("v_add_u32", t2, t0, t1)
            p.buf_load(A(192 + i), t2, o.sGU, o.stmp, 0, flags=fl, tags=["touch"])
        p.v("v_lshrrev_b32", t0, 1, o.lane)
        p.v("v_min_u32", t0, 17, t0)
        p.v("v_lshlrev_b32", t0, 13, t0)
        p.v("v_and_b32", t1, 1, o.lane)
        p.v("v_lshl_add_u32", t2, t1, 7, t0)
        p.s("s_mul_i32", o.stmp, o.sP, 72)
        p.s("s_mul_i32", o.stmp2, o.sw, 18)
        p.s("s_add_u32", o.stmp, o.stmp, o.stmp2)
        p.s("s_lshl_b32", o.stmp, o.stmp, 13)
        p.s("s_lshl_b32", o.stmp2, o.shead, 8)
        p.s("s_add_u32", o.stmp, o.stmp, o.stmp2)
        p.buf_load(A(195), t2, o.sWq, o.stmp, 0, flags=fl, tags=["touch"])

    def setup_late(self, p):
        o = self
        make_srd(p, o.sH, o.pws, SZ_H, add=WS_H)
        make_srd(p, o.sO, o.pws, SZ_O, add=WS_O)
        p.s("s_lshr_b32", o.stmp, o.shead, 1)
        p.s("s_lshl_b32", o.stmp, o.stmp, 19)
        make_srd(p, o.sK, o.pk, 524288, add=o.stmp)
        make_srd(p, o.sV, o.pv, 524288, add=o.stmp)
        t0, t1, t2 = o.t0, o.t1, o.t2
        p.v("v_lshrrev_b32", t0, 4, o.lane)
        p.s("s_lshl_b32", o.stmp, o.sw, 2)
        p.v("v_add_u32", t0, o.stmp, t0)
        p.v("v_and_b32", t1, 7, t0)
        p.v("v_lshlrev_b32", t1, 1, t1)
        p.v("v_and_b32", t2, 15, o.lane)
        p.v("v_xor_b32", t1, t1, t2)
        p.v("v_lshlrev_b32", t1, 4, t1)
        p.v("v_lshl_add_u32", o.VWd, t0, 13, t1)
        p.s("s_lshl_b32", o.sqoff, o.shead, 8)
        p.s("s_lshl_b32", o.stmp, o.shead, 19)
        p.s("s_add_u32", o.sob, o.sob, o.stmp)
        p.s("s_and_b32", o.ssig, S(2), 7)
        if o.opt.get("sigrot", 0):
            p.s("s_add_u32", o.stmp, o.ssig, 1)
            p.s("s_and_b32", o.stmp, o.stmp, 3)
            p.s("s_cmp_lt_u32", o.ssig, 4)
            p.s("s_cselect_b32", o.ssig, o.stmp, o.ssig)
        p.s("s_lshr_b32", o.sP2, S(2), 5)
        p.s("s_bfe_u32", o.sN, S(2), 0x20003)

    def x_loads(self, dst, nks, tag, rewind=None):
        o = self; out = []
        for ks in range(nks):
            for pb in range(4):
                q = Seg()
                q.buf_load(dst(pb, ks), o.VX[ks], o.sXN, o.sxoff, 1024 * pb, flags=o.SC, tags=[tag])
                out.append(q)
        out[-1].s("s_add_u32", o.sxoff, o.sxoff, KS * nks)
        return out

    def touch_kv(self):
        o = self; out = []
        q = Seg()
        vt = V(248)
        q.s("s_and_b32", o.stmp, o.shead, 1)
        q.s("s_lshl_b32", o.stmp, o.stmp, 3)
        q.s("s_add_u32", o.stmp, o.stmp, o.sP)
        q.s("s_lshl_b32", o.stmp, o.stmp, 2)
        q.s("s_add_u32", o.stmp, o.stmp, o.sw)
        q.s("s_lshl_b32", o.stmp2, o.stmp, 13)
        q.v("v_lshlrev_b32", vt, 7, o.lane)
        out.append(q)
        q = Seg(); q.buf_load(V(249), vt, o.sK, o.stmp2, 0, flags=o.opt.get("tflags", ""), tags=["touch"]); out.append(q)
        q = Seg(); q.buf_load(V(250), vt, o.sV, o.stmp2, 0, flags=o.opt.get("tflags", ""), tags=["touch"]); out.append(q)
        return out

    def touch_wq_start(self, p):
        o = self; skip = o.L("wqs")
        p.s("s_cmp_lt_u32", S(2), 128)
        p.branch("s_cbranch_scc1", skip)
        vt = V(60)
        p.s("s_sub_u32", o.stmp, o.sP, 4)
        p.s("s_lshl_b32", o.stmp, o.stmp, 2)
        p.s("s_add_u32", o.stmp, o.stmp, o.sw)
        p.s("s_mul_i32", o.stmp, o.stmp, 36 * 8192)
        p.s("s_lshl_b32", o.stmp2, o.shead, 8)
        p.s("s_add_u32", o.stmp, o.stmp, o.stmp2)
        for i in range(2):
            p.v("v_lshrrev_b32", vt, 1, o.lane)
            p.v("v_min_u32", vt, 17, vt)
            p.v("v_add_u32", vt, 18 * i, vt)
            p.v("v_lshlrev_b32", vt, 13, vt)
            p.v("v_and_b32", V(61), 1, o.lane)
            p.v("v_lshl_add_u32", vt, V(61), 7, vt)
            p.buf_load(A(195 + i), vt, o.sWq, o.stmp, 0, flags=o.opt.get("wqsflags", ""), tags=["touch"])
        p.label(skip)

    def touch_wq(self, part, nparts):
        o = self; out = []
        vt = V(249)
        rows = -(-18 // nparts)
        q = Seg()
        q.v("v_lshrrev_b32", vt, 1, o.lane)
        q.v("v_min_u32", vt, rows - 1, vt)
        q.v("v_add_u32", vt, part * rows, vt)
        q.v("v_min_u32", vt, 17, vt)
        q.v("v_lshlrev_b32", vt, 13, vt)
        q.v("v_and_b32", V(250), 1, o.lane)
        q.v("v_lshl_add_u32", vt, V(250), 7, vt)
        if part == 0:
            q.s("s_mul_i32", o.stmp, o.sP, 72)
            q.s("s_mul_i32", o.stmp2, o.sw, 18)
            q.s("s_add_u32", o.stmp, o.stmp, o.stmp2)
            q.s("s_lshl_b32", o.stmp, o.stmp, 13)
            q.s("s_lshl_b32", o.stmp2, o.shead, 8)
            q.s("s_add_u32", o.swqt, o.stmp, o.stmp2)
        out.append(q)
        q = Seg(); q.buf_load(V(251 + part % 2), vt, o.sWq, o.swqt, 0, tags=["touch"]); out.append(q)
        return out

    def phase_g(self, p):
        o = self
        xl = lambda c: o.x_loads(lambda pb, ks: o.gx(c, pb, ks), 2, f"G{c}")
        o.put_now(p, xl(0)); o.put_now(p, xl(1))
        if o.opt.get("wtouch"): o.touch_weights(p)
        p.wait(vm=("tag", "G0")); p.barrier()
        o.ST.stamp(p)
        for q in o.g_reads(0, 0, 0): p.extend(q)
        p.wait(lgkm=0)
        gi = 0
        for c in range(9):
            if c + 2 < 9:
                dq, xq = o.g_dma(c + 2), xl(c + 2)
            elif c == 7:
                dq = o.q_dma(0)
                q = Seg(); q.s("s_sub_u32", o.sxoff, o.sxoff, 18 * KS)
                xq = [q]
            else:
                dq, xq = o.q_dma(1), o.x_loads(lambda pb, ks: o.qx(0, pb, ks), 3, "Q0")
            c0_, np_ = o.opt.get("wqtouch", (4, 1))
            tq = o.touch_wq(c - c0_, np_) if c0_ <= c < c0_ + np_ else []
            for fb in range(9):
                s_ = gi % 2
                mf = Seg()
                for m in range(2):
                    for pb in range(4):
                        for ks in range(2):
                            cin = 0 if (c == 0 and ks == 0) else o.gacc(fb, m, pb)
                            mf.mfma(o.gacc(fb, m, pb), o.gaf(s_, m, ks), o.gx(c, pb, ks), cin)
                fl = []
                last = (c == 8 and fb == 8)
                g0 = 0
                if fb == 8 and not last:
                    q = Seg(); q.wait(vm=("tag", f"G{c+1}")); q.barrier()
                    fl += [(0, i) for i in q]; g0 = 1
                if not last:
                    nx = (c, fb + 1) if fb < 8 else (c + 1, 0)
                    for k, q in enumerate(o.g_reads(nx[0], nx[1], 1 - s_)):
                        fl += [(g0 + k // 2, i) for i in q]
                if dq: o.place(fl, dq.pop(0), 7)
                if xq: o.place(fl, xq.pop(0), 10)
                if c == 8 and xq: o.place(fl, xq.pop(0), 13)
                if tq and fb >= 7:
                    q = tq.pop(0)
                    if len(q) > 1:
                        fl += [(5 + k // 2 + (1 if k >= 4 else 0), i) for k, i in enumerate(q)]
                    else: o.place(fl, q, 13)
                if not last:
                    q = Seg(); q.wait(lgkm=0); fl += [(15, i) for i in q]
                fl.sort(key=lambda x: x[0])
                p.extend(weave(mf, fl)); gi += 1
            assert not dq and not xq and not tq, (c, len(dq), len(xq))
            if o.opt.get("gstamps") and c < 8: o.ST.stamp(p)
        o.ST.stamp(p)
        o.put_now(p, o.x_loads(lambda pb, ks: o.qx(1, pb, ks), 3, "Q1"))
        vh = None
        p.s("s_mul_i32", o.stmp2, o.shead, 9)
        p.s("s_lshr_b32", o.stmp2, o.stmp2, 1)
        p.s("s_lshl_b32", o.stmp2, o.stmp2, 17)
        p.s("s_add_u32", o.shb, o.shb, o.stmp2)
        odd, join = o.L("godd"), o.L("gjoin")
        p.s("s_bitcmp1_b32", o.shead, 0)
        p.branch("s_cbranch_scc1", odd)
        ev, od = Seg(), Seg()
        o.g_epilogue(ev, 0, vh); ev.branch("s_branch", join)
        od.label(odd); o.g_epilogue(od, 1, vh); od.label(join)
        o.alt = (ev, od)
        return ev, od

    def hq(self, i): return V(152 + 4 * i, 4)
    def g_epilogue(self, p, par, vh):
        o = self
        T = V(248, 8)
        def hblock(fb, pb, dst):
            g, u = o.gacc(fb, 0, pb), o.gacc(fb, 1, pb)
            if fb >= 7:
                gg, uu = T.sub(0, 4), T.sub(4, 4)
                for r in range(4): p.acc_read(gg[r], g[r])
                for r in range(4): p.acc_read(uu[r], u[r])
                g, u = gg, uu
            for r in range(4): p.v("v_max_f32", g[r], 0, g[r])
            p.v("v_pk_mul_f32", g.sub(0, 2), g.sub(0, 2), u.sub(0, 2))
            p.v("v_pk_mul_f32", g.sub(2, 2), g.sub(2, 2), u.sub(2, 2))
            p.v("v_cvt_pk_bf16_f32", dst[0], g[0], g[1])
            p.v("v_cvt_pk_bf16_f32", dst[1], g[2], g[3])
        A_, B_, C_, D_ = 0, 4, 8, 12
        if par == 0:
            plan = [(4, B_, 0), (5, B_, 2), (0, A_, 0), (1, A_, 2), (2, C_, 0), (3, C_, 2), (6, D_, 0), (7, D_, 2), (8, None, 0)]
            delta = {A_: 0, C_: KS, B_: 2 * KS, D_: 3 * KS, "S": 4 * KS}
        else:
            plan = [(4, B_, 2), (3, B_, 0), (5, D_, 0), (6, D_, 2), (1, A_, 0), (2, A_, 2), (7, C_, 0), (8, C_, 2), (0, None, 0)]
            delta = {A_: KS, B_: 2 * KS, D_: 3 * KS, C_: 4 * KS, "S": 8}
        spread = o.opt.get("hplan", "spread") == "spread"
        for k, key in enumerate((A_, B_, C_, D_, "S")):
            p.s("s_add_u32", o.sHS[k], o.shb, delta[key])
        nb = 0
        for fb, slot, half in plan:
            for pb in range(4):
                dst = o.hq(slot + pb).sub(half, 2) if slot is not None else V(216 + 2 * pb, 2)
                hblock(fb, pb, dst); nb += 1
                if spread and nb in (9, 14, 19, 24, 29, 34):
                    p.extend(o.h_store_item(o.HORDER[(nb - 9) // 5]))
    HORDER = [("B", 0), ("B", 1), ("B", 2), ("B", 3), ("A", 0), ("A", 1),
              ("A", 2), ("A", 3), ("C", 0), ("C", 1),
              ("C", 2), ("C", 3), ("D", 0), ("D", 1),
              ("D", 2), ("D", 3), ("S", 0), ("S", 1), ("S", 2), ("S", 3)]
    def h_store_item(self, key):
        o = self; slot, pb = key
        q = Seg()
        if slot == "S":
            q.buf_store(V(216 + 2 * pb, 2), o.V16, o.sH, o.sHS[4], 1024 * pb, flags=o.SCS, tags=["hst"])
        else:
            k = "ABCD".index(slot)
            q.buf_store(o.hq(4 * k + pb), o.V16, o.sH, o.sHS[k], 1024 * pb, flags=o.SCS, tags=["hst"])
        return q
    def h_next(self):
        q = self.h_store_item(self.HORDER[self.hpos]); self.hpos += 1; return q
    def h_block(self, p, cls):
        o = self; skip = o.L("hblk")
        p.s("s_bitcmp1_b32", S(2), 3)
        br = p.branch("s_cbranch_scc1" if cls == 0 else "s_cbranch_scc0", skip)
        blk = Seg()
        for q in o.h_stores(): blk.extend(q)
        for i in blk: i.meta = i.meta; i.tags = set(i.tags) | {f"cls{cls}"}
        p.extend(blk)
        p.label(skip)
    def after_q_main(self, p):
        if self.opt.get("hplan") == "split2": self.h_block(p, 1)
    def h_stores(self):
        o = self; out = []
        for k, slot in enumerate((0, 4, 8, 12)):
            for pb in range(4):
                q = Seg(); q.buf_store(o.hq(slot + pb), o.V16, o.sH, o.sHS[k], 1024 * pb, flags=o.SCS, tags=["hst"]); out.append(q)
        for pb in range(4):
            q = Seg(); q.buf_store(V(216 + 2 * pb, 2), o.V16, o.sH, o.sHS[4], 1024 * pb, flags=o.SCS, tags=["hst"]); out.append(q)
        return out

    def alloc_g2(self):
        o = self
        o.VD2, o.VA2, o.VB2 = V(242, 9), V(208, 4), V(212, 4)
        o.ACC2, o.AF2 = V(32, 144), V(176, 32)
    def g2_addr(self, p):
        o = self
        dma288_voffs(p, o.VD2, o.lane, o.t0, o.t1, o.t2, 1152, o.stmp)
    def g2_addr2(self, p):
        o = self
        lane_tr_addr(p, o.VA2[0], o.lane, o.t0, o.t1, 288)
        for r in range(1, 4): p.v("v_add_u32", o.VA2[r], r * REG2, o.VA2[0])
    def bf2(self, c, pb, ks): return A(((2 + c % 4) * 64) % 256 + (pb * 4 + ks) * 4, 4)
    def rng2(self, c): return ((c % 4) * REG2, (c % 4) * REG2 + REG2)
    def g2_dma(self, c):
        o = self; out = []
        for j in range(9):
            q = Seg()
            q.s("s_add_u32", M0, o.sm9, (c % 4) * REG2 + 1024 * j)
            q.buf_dma(o.VD2[j], o.sW2, o.swoff, 0, flags=o.opt.get("w2flags", ""), tags=[f"c{c}"], lds=o.rng2(c))
            if j == 8: q.s("s_add_u32", o.swoff, o.swoff, 128 * 1152)
            out.append(q)
        return out
    def g2_b(self, c):
        o = self; out = []
        for ks in range(4):
            for pb in range(4):
                q = Seg(); q.buf_load(o.bf2(c, pb, ks), o.VB2[ks], o.sB2, o.sboff, 1024 * pb, flags=o.opt.get("bflags", o.SC), tags=[f"c{c}", f"b{c}"]); out.append(q)
        out[-1].s("s_add_u32", o.sboff, o.sboff, 4 * KS)
        return out
    def g2_reads(self, c, nb, s_):
        o = self; out = []
        for ks in range(4):
            for h in range(2):
                q = Seg()
                q.ds_read("ds_read_b64_tr_b16", o.AF2.sub(s_ * 16 + ks * 4 + 2 * h, 2), o.VA2[c % 4], (32 * ks + 16 * h) * 288 + 32 * nb,
                          lds=o.rng2(c), tags=["a"])
                out.append(q)
        return out
    def w2_srd(self, p):
        o = self
        p.s("s_and_b32", o.stmp, o.ssig, 3)
        p.s("s_mov_b32", o.stmp2, 1152 * 1152)
        p.s("s_cmp_lt_u32", o.ssig, 4)
        p.s("s_cselect_b32", o.stmp2, 1024 * 1152, o.stmp2)
        p.s("s_mul_i32", o.stmp, o.stmp, o.stmp2)
        p.s("s_cselect_b32", o.sW2[0], o.pwo[0], o.pwd[0])
        p.s("s_cselect_b32", o.sW2[1], o.pwo[1], o.pwd[1])
        p.s("s_add_u32", o.sW2[0], o.sW2[0], o.stmp)
        p.s("s_addc_u32", o.sW2[1], o.sW2[1], 0)
        p.s("s_mov_b32", o.sW2[2], o.stmp2)
        p.s("s_mov_b32", o.sW2[3], 0x20000)
        o.sw2t, o.VW2T = S(91), V(251)
        p.s("s_lshr_b32", o.stmp, S(2), 3)
        p.s("s_lshl_b32", o.stmp, o.stmp, 2)
        p.s("s_add_u32", o.stmp, o.stmp, o.sw)
        nl = o.opt.get("w2lines", 12)
        p.s("s_mul_i32", o.sw2t, o.stmp, nl * 128)
        p.v("v_min_u32", o.VW2T, nl - 1, o.lane)
        p.v("v_lshlrev_b32", o.VW2T, 7, o.VW2T)
    def w2_touch(self):
        o = self
        q = Seg()
        q.buf_load(V(252), o.VW2T, o.sW2, o.sw2t, 0, flags=o.opt.get("w2tflags", ""), tags=["touch"])
        q.s("s_add_u32", o.sw2t, o.sw2t, o.opt.get("w2lines", 12) * 128 * 128)
        return q

    def g2_setup(self, p, mode):
        o = self
        if mode == "s":
            make_srd(p, o.sB2, o.pws, SZ_O, add=WS_O)
            p.s("s_mul_i32", o.sboff, o.ssig, 32 * KS)
        else:
            make_srd(p, o.sB2, o.pws, SZ_H, add=WS_H)
            p.s("s_sub_u32", o.stmp, o.ssig, 4)
            p.s("s_mul_i32", o.sboff, o.stmp, 36 * KS)
        p.s("s_mov_b32", o.stoff, o.sboff)
        p.s("s_mul_i32", o.swoff, o.sw, 32 * 1152)
        p.s("s_mul_i32", o.stmp, o.sN, 288)
        p.s("s_add_u32", o.swoff, o.swoff, o.stmp)
        p.s("s_lshl_b32", o.stmp, o.sP2, 4)
        p.s("s_lshl_b32", o.stmp2, o.sw, 2)
        p.s("s_add_u32", o.stmp, o.stmp, o.stmp2)
        p.s("s_lshl_b32", o.stmp, o.stmp, 10)
        p.s("s_add_u32", o.sboff, o.sboff, o.stmp)
        for ks in range(4):
            p.v("v_add_u32", o.VB2[ks], ks * KS, o.V16)
        make_srd(p, o.sPart, o.pws, SZ_P, add=WS_P)
        p.s("s_lshl_b32", o.stmp, o.ssig, 5)
        p.s("s_lshl_b32", o.stmp2, o.sP2, 2)
        p.s("s_add_u32", o.stmp, o.stmp, o.stmp2)
        p.s("s_add_u32", o.stmp, o.stmp, o.sw)
        p.s("s_lshl_b32", o.stmp, o.stmp, 2)
        p.s("s_add_u32", o.stmp, o.stmp, o.sN)
        p.s("s_mul_i32", o.spart, o.stmp, 18432)

    def attn_epilogue(self, p):
        o = self
        RL = V(216, 4); VO = V(220, 4); T = V(152, 64); RP = V(22, 2)
        for qb in range(4): p.v("v_rcp_f32", RL[qb], o.L_[qb * 4])
        for s_ in range(4): p.v("v_add_u32", VO[s_], s_ * KS, o.V16)
        k = 0
        for qb in range(4):
            p.v("v_mov_b32", RP[0], RL[qb]); p.v("v_mov_b32", RP[1], RL[qb])
            for s_ in range(4):
                t = T.sub((k % 4) * 16, 16); k += 1
                a, b = o.Oacc(2 * s_, qb), o.Oacc(2 * s_ + 1, qb)
                for r in range(4): p.acc_read(t[r], a[r])
                for r in range(4): p.acc_read(t[4 + r], b[r])
                for r in range(4): p.v("v_pk_mul_f32", t.sub(2 * r, 2), t.sub(2 * r, 2), RP)
                for r in range(4): p.v("v_cvt_pk_bf16_f32", t[8 + r], t[2 * r], t[2 * r + 1])
                p.buf_store(t.sub(8, 4), VO[s_], o.sO, o.sob, 1024 * qb, flags=o.SCS, tags=["ost"])

    def h_signal(self, p):
        o = self; skip = o.L("hsig")
        if o.opt.get("hplan") == "loop": p.assert_drained("hst", window=(20, 2))
        else: p.assert_drained("hst")
        p.s("s_sub_u32", o.shflag, o.shflag, 1)
        p.s("s_cmp_lg_u32", o.shflag, 0)
        p.branch("s_cbranch_scc1", skip)
        o.signal(p, o.sP, C_H, (V(12), V(13)))
        p.label(skip)
    def q_fill(self, f, late, atomic):
        self.g2_addr(f)
        self.k_addr(late)
        self.w2_srd(atomic)
    def pre_chk(self, p):
        o = self
        p.s("s_lshl_b32", o.scnt, o.sP2, 5)
        p.s("s_add_u32", o.scnt, o.scnt, 4 * C_H)
        p.v("v_mov_b32", V(12), o.scnt)
        p.buf_load(V(13), V(12), o.sDbg, 0, 0, flags="sc1")
    def await_wave(self, p, vt, target):
        o = self; loop, done = o.L("wpoll"), o.L("wgot")
        o.raw(p, f"s_mov_b32 {o.scnt}, {SPIN_MAX}")
        p.label(loop)
        o.raw(p, f"v_readfirstlane_b32 {o.stmp}, {vt[1]}")
        o.raw(p, "s_nop 3")
        o.raw(p, f"s_cmp_ge_u32 {o.stmp}, {target}")
        o.raw(p, f"s_cbranch_scc1 {done}")
        o.raw(p, "s_sleep 2")
        o.raw(p, f"buffer_load_dword {vt[1]}, {vt[0]}, {o.sDbg}, 0 offen sc1")
        o.raw(p, "s_waitcnt vmcnt(0)")
        o.raw(p, f"s_sub_u32 {o.scnt}, {o.scnt}, 1")
        o.raw(p, f"s_cmp_lg_u32 {o.scnt}, 0")
        o.raw(p, f"s_cbranch_scc1 {loop}")
        p.label(done)

    def g2_touch_setup(self, p, mode):
        o = self
        o.VT2 = V(216)
        p.s("s_lshr_b32", o.stmp, S(2), 3)
        p.s("s_lshl_b32", o.stmp, o.stmp, 2)
        p.s("s_add_u32", o.stmp, o.stmp, o.sw)
        p.s("s_lshl_b32", o.stmp, o.stmp, 12)
        p.s("s_add_u32", o.stoff, o.stoff, o.stmp)
        p.s("s_add_u32", o.stoff, o.stoff, 2 * 4 * KS)
        p.v("v_min_u32", o.VT2, 31, o.lane)
        p.v("v_lshlrev_b32", o.VT2, 7, o.VT2)
    def g2_touch(self, c):
        o = self
        q = Seg()
        q.buf_load(V(217 + c % 4), o.VT2, o.sB2, o.stoff, 0, flags=o.opt.get("t2flags", ""), tags=["touch"])
        q.s("s_add_u32", o.stoff, o.stoff, 4 * KS)
        return q

    def phase_g2(self, mode):
        o = self
        p = Seg()
        nch = 8 if mode == "s" else 9
        vt = (V(12), V(13))
        touch = bool(o.opt.get("g2touch"))
        o.ST.stamp(p)
        o.g2_setup(p, mode)
        o.g2_addr2(p)
        if touch: o.g2_touch_setup(p, mode)
        ahead = o.opt.get("g2ahead", 10)
        items = {c: o.g2_dma(c) + o.g2_b(c) for c in range(nch)}
        queue = [q for c in range(2, nch) for q in items[c]]
        pre = o.opt.get("gpre", 0)
        if mode == "g":
            o.await_wave(p, vt, 32)
            if pre: o.put_now(p, items[0])
        elif pre:
            o.put_now(p, items[0][:9]); o.put_now(p, items[1][:9])
        presample = mode == "s" and o.opt.get("presample", 0) and not pre
        vs = (V(10), V(11))
        if presample:
            o.sample_o(p, vs)
            p.wait(vm=0)
        else:
            p.wait(vm=("tag", "ost"))
        p.barrier()
        if o.opt.get("finestamps"): o.ST.stamp(p)
        p.assert_drained("ost")
        p.s("s_lshr_b32", o.stmp, o.shead, 3)
        p.s("s_lshl_b32", o.stmp, o.stmp, 3)
        p.s("s_lshl_b32", o.stmp2, 1, o.stmp)
        o.signal(p, o.sP, C_O, vt, inc=o.stmp2)
        if mode == "g":
            if o.opt.get("finestamps"): o.ST.stamp(p); o.ST.stamp(p)
            if not pre: o.put_now(p, items[0][9:]); o.put_now(p, items[0][:9])
            o.put_now(p, items[1])
        elif o.opt.get("sorder", 0) == 1 and not pre:
            if o.opt.get("finestamps"): o.ST.stamp(p)
            o.await_o(p, vt)
            if o.opt.get("finestamps"): o.ST.stamp(p)
            o.put_now(p, items[0][9:]); o.put_now(p, items[0][:9]); o.put_now(p, items[1])
        else:
            if not pre: o.put_now(p, items[0][:9]); o.put_now(p, items[1][:9])
            if o.opt.get("finestamps"): o.ST.stamp(p)
            o.await_o(p, vs if presample else vt, presampled=bool(presample))
            if o.opt.get("finestamps"): o.ST.stamp(p)
            o.put_now(p, items[0][9:]); o.put_now(p, items[1][9:])
        if touch:
            o.put_now(p, [o.g2_touch(2), o.g2_touch(3)])
        o.ST.stamp(p)
        p.wait(vm=("tag", "c0")); p.barrier()
        o.ST.stamp(p)
        for q in o.g2_reads(0, 0, 0): p.extend(q)
        p.wait(lgkm=0)
        acc = lambda nb, pb: o.ACC2.sub((nb * 4 + pb) * 4, 4)
        PK = V(2, 16)
        def pack_store(pr, pb, k):
            q = Seg()
            d = PK.sub((k % 4) * 4, 4)
            a_, b_ = acc(2 * pr, pb), acc(2 * pr + 1, pb)
            q.v("v_cvt_pk_bf16_f32", d[0], a_[0], a_[1]); q.v("v_cvt_pk_bf16_f32", d[1], a_[2], a_[3])
            q.v("v_cvt_pk_bf16_f32", d[2], b_[0], b_[1]); q.v("v_cvt_pk_bf16_f32", d[3], b_[2], b_[3])
            q.buf_store(d, o.VST[pb], o.sPart, o.spart, pr * 1024, flags=o.SCS, tags=["pst"])
            return q
        o.VST = V(212, 4)
        gi = 0; kst = 0
        merge = o.opt.get("g2merge", 1)
        if merge:
            seq = [(c, nb) for c in range(nch - 2) for nb in range(9)] + [(c, nb) for nb in range(9) for c in (nch - 2, nch - 1)]
        else:
            seq = [(c, nb) for c in range(nch) for nb in range(9)]
        nfin = 18 if merge else 9
        fin0 = len(seq) - nfin
        plist = [(pr, pb) for pr in range(4) for pb in range(4)]
        sp = o.opt.get("pspace", 21)
        ppos = []; pos = 0
        for k in range(16):
            pos = max(pos + sp, (16 * nfin // 9) * 2 * (k // 4 + 1) + 4)
            if pos < 16 * nfin - 3: ppos.append(pos)
        quota = 0
        for idx, (c, nb) in enumerate(seq):
            if nb == 0 and (idx < fin0 or idx == fin0):
                quota = (30 if merge else 25 + (ahead if c == 0 else 0))
            s_ = gi % 2
            mf = Seg()
            for pb in range(4):
                for ks in range(4):
                    first = (c == 0 and ks == 0)
                    mf.mfma(acc(nb, pb), o.AF2.sub(s_ * 16 + ks * 4, 4), o.bf2(c, pb, ks), 0 if first else acc(nb, pb))
            fl = []
            last = idx == len(seq) - 1
            g0 = 0
            if not last:
                nx = seq[idx + 1]
                if nb == 8 and idx < fin0:
                    upto = nch - 1 if (merge and idx == fin0 - 1) else c + 1
                    q = Seg(); q.wait(vm=("tag", f"c{upto}")); q.barrier()
                    fl += [(0, i) for i in q]; g0 = 1
                elif nb == 8 and not merge:
                    q = Seg(); q.wait(vm=("tag", f"c{c+1}")); q.barrier()
                    fl += [(0, i) for i in q]; g0 = 1
                for k, q in enumerate(o.g2_reads(nx[0], nx[1], 1 - s_)):
                    fl += [(g0 + k // 2, i) for i in q]
            dense = merge or c == 0
            if merge and queue and nb in (0, 4):
                q = Seg(); q.wait(vm=o.opt.get("midcap", 40)); fl.append((4, q[0]))
            for g in (((5, 8, 11, 14) if dense else (6, 9, 13)) if nb < 7 else (7, 11)):
                if queue and quota:
                    o.place(fl, queue.pop(0), g); quota -= 1
            if idx >= fin0:
                j = idx - fin0
                if j == 0:
                    assert not queue
                    for pb in range(4):
                        q = Seg(); q.v("v_add_u32", o.VST[pb], pb * 4096, o.V16); fl.append((6 + pb, q[0]))
                while ppos and ppos[0] < 16 * (j + 1):
                    at = ppos.pop(0) - 16 * j
                    pr, pb = plist.pop(0)
                    q = pack_store(pr, pb, kst); kst += 1
                    g = max(at - 2, 4)
                    for k, i in enumerate(q): fl.append((min(15, g + k // 2), i))
            if not last:
                q = Seg(); q.wait(lgkm=0); fl += [(15, i) for i in q]
            fl.sort(key=lambda x: x[0])
            p.extend(weave(mf, fl)); gi += 1
            if o.opt.get("chunkstamps") and nb == 8 and idx < fin0: o.ST.stamp(p)
        assert not queue
        p.nop(7)
        o.ST.stamp(p)
        for pr, pb in plist:
            p.extend(pack_store(pr, pb, kst)); kst += 1
        p.s("s_add_u32", o.spart, o.spart, 16384)
        for pp in range(2):
            d = PK.sub((kst % 4) * 4, 4); kst += 1
            a_, b_ = acc(8, 2 * pp), acc(8, 2 * pp + 1)
            p.v("v_cvt_pk_bf16_f32", d[0], a_[0], a_[1]); p.v("v_cvt_pk_bf16_f32", d[1], a_[2], a_[3])
            p.v("v_cvt_pk_bf16_f32", d[2], b_[0], b_[1]); p.v("v_cvt_pk_bf16_f32", d[3], b_[2], b_[3])
            p.buf_store(d, o.V16, o.sPart, o.spart, pp * 1024, flags=o.SCS, tags=["pst"])
        return p

    def phase_fin(self):
        o = self
        p = Seg()
        vt = (V(12), V(13))
        make_srd(p, o.sOut, o.pout, SZ["out"])
        lane = o.lane
        v8, vx, t0 = V(2), V(3), V(4)
        sPB, sPT = S(47), S(48)
        p.s("s_and_b32", sPB, o.ssig, 1)
        p.s("s_lshl_b32", sPB, sPB, 1)
        p.s("s_lshr_b32", o.stmp, o.sw, 1)
        p.s("s_add_u32", sPB, sPB, o.stmp)
        p.s("s_and_b32", sPT, o.sw, 1)
        sq = S(49)
        p.s("s_lshl_b32", sq, o.sP2, 2)
        p.s("s_lshr_b32", o.stmp, o.ssig, 1)
        p.s("s_add_u32", sq, sq, o.stmp)
        s0 = S(50)
        p.s("s_lshl_b32", o.stmp, sq, 2)
        p.s("s_add_u32", o.stmp, o.stmp, o.sN)
        p.s("s_mul_i32", s0, o.stmp, 18432)
        s1 = S(51)
        p.s("s_lshr_b32", o.stmp, sPB, 1)
        p.s("s_lshl_b32", o.stmp, o.stmp, 10)
        p.s("s_and_b32", o.stmp2, sPB, 1)
        p.s("s_lshl_b32", o.stmp2, o.stmp2, 3)
        p.s("s_add_u32", o.stmp, o.stmp, o.stmp2)
        p.s("s_add_u32", s1, s0, o.stmp)
        p.s("s_add_u32", s1, s1, 16384)
        p.s("s_lshl_b32", o.stmp, sPB, 12)
        p.s("s_add_u32", s0, s0, o.stmp)
        p.s("s_lshl_b32", o.stmp, sPT, 11)
        p.s("s_add_u32", s0, s0, o.stmp)
        p.v("v_and_b32", t0, 15, lane)
        p.v("v_mul_u32_u24", vx, 1152, t0)
        p.v("v_lshrrev_b32", t0, 4, lane)
        p.v("v_lshl_add_u32", vx, t0, 3, vx)
        sxo = S(52)
        p.s("s_lshl_b32", o.stmp, sq, 2)
        p.s("s_add_u32", o.stmp, o.stmp, sPB)
        p.s("s_mul_i32", sxo, o.stmp, 16 * 1152)
        p.s("s_mul_i32", o.stmp, o.sN, 288)
        p.s("s_add_u32", sxo, sxo, o.stmp)
        sxs = S(53)
        p.s("s_add_u32", sxs, sxo, 256)
        p.s("s_lshl_b32", o.stmp, sPT, 7)
        p.s("s_add_u32", sxo, sxo, o.stmp)
        X = V(160, 10)
        for b in range(4): p.buf_load(X.sub(2 * b, 2), vx, o.sX, sxo, 32 * b, tags=["x"])
        p.buf_load(X.sub(8, 2), vx, o.sX, sxs, 0, tags=["x"])
        p.wait(vm=("tag", "pst") if o.opt.get("pstwait", 1) else 0); p.barrier()
        p.assert_drained("pst")
        p.s("s_add_u32", o.stmp2, o.sN, C_PART)
        sslot = S(54)
        p.s("s_mov_b32", sslot, o.stmp2)
        PP = V(24, 64); PS = V(88, 16)
        SSTR = 32 * 4 * 18432
        prog = o.opt.get("progfin", 0)
        if not prog:
            if o.opt.get("nosingle0", 1):
                p.s("s_cmp_eq_u32", sPT, 0)
                p.s("s_cselect_b32", s1, 0x7FF00000, s1)
            o.signal(p, o.sP2, sslot, vt)
            o.ST.stamp(p)
            o.await_(p, o.sP2, sslot, 8, vt)
            o.ST.stamp(p)
            for pr in range(2):
                for s_ in range(8):
                    if pr == 0 and s_ == 0: p.s("s_mov_b32", o.stmp, s0)
                    elif s_ == 0: p.s("s_add_u32", o.stmp, s0, 1024)
                    else: p.s("s_add_u32", o.stmp, o.stmp, SSTR)
                    p.buf_load(PP.sub((s_ * 2 + pr) * 4, 4), o.V16, o.sPart, o.stmp, 0, flags=o.SC, tags=[f"p{pr}"])
            for s_ in range(8):
                if s_ == 0: p.s("s_mov_b32", o.stmp, s1)
                else: p.s("s_add_u32", o.stmp, o.stmp, SSTR)
                p.buf_load(PS.sub(s_ * 2, 2), o.V16, o.sPart, o.stmp, 0, flags=o.SC, tags=["p2"])
        else:
            p.s("s_lshl_b32", o.stmp, o.ssig, 2)
            p.s("s_lshl_b32", o.stmp2, 1, o.stmp)
            sinc = S(59)
            p.s("s_mov_b32", sinc, o.stmp2)
            o.signal(p, o.sP2, sslot, vt, inc=sinc)
            o.ST.stamp(p)
            p.s("s_cmp_eq_u32", sPT, 0)
            p.s("s_cselect_b32", s1, 0x7FF00000, s1)
            sloaded, sready, sround, sslotl = S(60), S(61), S(62), S(63)
            vaddr, vval, vl = V(12), V(13), V(14)
            p.s("s_lshl_b32", o.scnt, o.sP2, 3)
            p.s("s_add_u32", o.scnt, o.scnt, sslot)
            p.s("s_lshl_b32", o.scnt, o.scnt, 2)
            p.v("v_mov_b32", vaddr, o.scnt)
            p.s("s_mov_b32", sloaded, 0)
            p.s("s_mov_b32", sround, SPIN_MAX)
            p.s("s_mov_b32", sslotl, o.FLAG + 16)
            loop, nopoll, done2 = o.L("frnd"), o.L("fnp"), o.L("fall")
            p.label(loop)
            o.raw(p, f"v_mov_b32 {vl}, {sslotl}")
            o.raw(p, f"s_cmp_lg_u32 {o.sw}, 0")
            o.raw(p, f"s_cbranch_scc1 {nopoll}")
            o.raw(p, f"buffer_load_dword {vval}, {vaddr}, {o.sDbg}, 0 offen sc1")
            o.raw(p, "s_waitcnt vmcnt(0)")
            o.raw(p, f"ds_write_b32 {vl}, {vval}")
            o.raw(p, "s_waitcnt lgkmcnt(0)")
            p.label(nopoll)
            o.raw(p, "s_barrier")
            o.raw(p, f"ds_read_b32 {vval}, {vl}")
            o.raw(p, "s_waitcnt lgkmcnt(0)")
            o.raw(p, f"v_readfirstlane_b32 {sready}, {vval}")
            o.raw(p, "s_nop 3")
            o.raw(p, f"s_andn2_b32 {o.stmp2}, {sready}, {sloaded}")
            for s_ in range(8):
                skip = o.L("fsk")
                o.raw(p, f"s_bitcmp1_b32 {o.stmp2}, {4 * s_}")
                o.raw(p, f"s_cbranch_scc0 {skip}")
                p.s("s_add_u32", o.stmp, s0, s_ * SSTR)
                p.buf_load(PP.sub((s_ * 2) * 4, 4), o.V16, o.sPart, o.stmp, 0, flags=o.SC, tags=["p0"])
                p.buf_load(PP.sub((s_ * 2 + 1) * 4, 4), o.V16, o.sPart, o.stmp, 1024, flags=o.SC, tags=["p1"])
                p.s("s_add_u32", o.stmp, s1, s_ * SSTR)
                p.buf_load(PS.sub(s_ * 2, 2), o.V16, o.sPart, o.stmp, 0, flags=o.SC, tags=["p2"])
                p.label(skip)
            o.raw(p, f"s_or_b32 {sloaded}, {sloaded}, {sready}")
            o.raw(p, f"s_xor_b32 {sslotl}, {sslotl}, 4")
            o.raw(p, f"s_cmp_eq_u32 {sloaded}, 0x11111111")
            o.raw(p, f"s_cbranch_scc1 {done2}")
            o.raw(p, f"s_sub_u32 {sround}, {sround}, 1")
            o.raw(p, f"s_cmp_lg_u32 {sround}, 0")
            o.raw(p, f"s_cbranch_scc1 {loop}")
            p.label(done2)
            o.ST.stamp(p)
        smask, slog = S(57), S(58)
        p.s("s_mov_b32", smask, 0xFFFF0000)
        p.s("s_mov_b32", slog, -1.4426950408889634)
        T = V(180, 16)
        def finish(xr, srcs, so, off):
            sa, ga, tmp = T.sub(0, 4), T.sub(4, 4), T.sub(8, 4)
            for grp, dst in ((range(0, 4), sa), (range(4, 8), ga)):
                for k, s_ in enumerate(grp):
                    r = srcs[s_]
                    d = dst if k == 0 else tmp
                    p.v("v_lshlrev_b32", d[0], 16, r[0]); p.v("v_and_b32", d[1], smask, r[0])
                    p.v("v_lshlrev_b32", d[2], 16, r[1]); p.v("v_and_b32", d[3], smask, r[1])
                    if k:
                        p.v("v_pk_add_f32", dst.sub(0, 2), dst.sub(0, 2), tmp.sub(0, 2))
                        p.v("v_pk_add_f32", dst.sub(2, 2), dst.sub(2, 2), tmp.sub(2, 2))
            ex = T.sub(12, 4)
            for e in range(4): p.v("v_mul_f32", ex[e], slog, ga[e])
            for e in range(4): p.v("v_exp_f32", ex[e], ex[e])
            p.nop(0)
            for e in range(4): p.v("v_add_f32", ex[e], 1.0, ex[e])
            for e in range(4): p.v("v_rcp_f32", ex[e], ex[e])
            p.nop(0)
            for e in range(4): p.v("v_mul_f32", ga[e], ga[e], ex[e])
            p.v("v_lshlrev_b32", tmp[0], 16, xr[0]); p.v("v_and_b32", tmp[1], smask, xr[0])
            p.v("v_lshlrev_b32", tmp[2], 16, xr[1]); p.v("v_and_b32", tmp[3], smask, xr[1])
            for e in range(4): p.v("v_fmac_f32", tmp[e], sa[e], ga[e])
            p.v("v_cvt_pk_bf16_f32", xr[0], tmp[0], tmp[1])
            p.v("v_cvt_pk_bf16_f32", xr[1], tmp[2], tmp[3])
            p.buf_store(xr, vx, o.sOut, so, off, flags=o.opt.get("outflags", "sc1"))
        if prog: p.wait(vm=0)
        for pr in range(2):
            if not prog: p.wait(vm=("tag", f"p{pr}"))
            for hf in range(2):
                finish(X.sub(4 * pr + 2 * hf, 2), [PP.sub((s_ * 2 + pr) * 4 + 2 * hf, 2) for s_ in range(8)], sxo, 64 * pr + 32 * hf)
        done = o.L("fdone")
        p.s("s_cmp_eq_u32", sPT, 0)
        p.branch("s_cbranch_scc1", done)
        if not prog: p.wait(vm=("tag", "p2"))
        finish(X.sub(8, 2), [PS.sub(s_ * 2, 2) for s_ in range(8)], sxs, 0)
        p.label(done)
        if o.ST.on:
            o.ST.stamp(p); o.raw(p, "s_waitcnt vmcnt(0)"); o.ST.stamp(p); o.ST.dump(p, o.pws, o.sw)
        p.endpgm()
        return p

def gen_mega(name="mega_kernel", stamps=False, opt=None):
    k = Mega(name, stamps, opt)
    a = Seg()
    k.setup(a)
    ev, od = k.phase_g(a)
    b = Seg()
    if (opt or {}).get("hplan", "spread") == "gepi":
        for q in k.h_stores(): b.extend(q)
    if (opt or {}).get("hplan") == "split2": k.h_block(b, 0)
    k.ST.stamp(b)
    k.alloc_g2()
    k.phase_q(b)
    d = k.phase_attn(mega=True)
    disp = Seg()
    disp.s("s_cmp_ge_u32", k.ssig, 4)
    disp.branch("s_cbranch_scc1", name + "_g2g")
    n0 = k.ST.n
    ps = k.phase_g2("s"); ps.branch("s_branch", name + "_fin")
    k.ST.n = n0
    pg = k.phase_g2("g"); pg.insert(0, Ins(name + "_g2g:", "label"))
    pf = k.phase_fin(); pf.insert(0, Ins(name + "_fin:", "label"))
    end = Seg(); end.label(name + "_end"); end.endpgm()
    loop = list(d["b1"]) + list(d["b2"])
    traces = []
    for gp in (ev, od):
        head = list(a) + list(gp) + list(b) + list(d["pro"]) + list(d["mp"])
        for g2 in (ps, pg):
            traces.append(head + loop + loop + list(d["b1"]) + list(d["chk"]) + list(disp) + list(g2) + list(pf))
    head = list(a) + list(ev) + list(b) + list(d["pro"]) + list(d["mp"])
    traces.append(head + loop + list(d["b1"]) + list(d["chk"]) + list(d["fb"]) + list(d["fl"]) * 2 + list(d["f2"]) + list(d["mp"]) + loop
                  + list(d["b1"]) + list(d["chk"]) + list(disp) + list(ps) + list(pf))
    if (opt or {}).get("hplan") == "split2":
        traces = [[i for i in t if f"cls{1 - c}" not in i.tags] for t in traces for c in (0, 1)]
    resolve_waits(traces)
    if not (opt or {}).get("nocheck"):
        for i, t in enumerate(traces): check(t, f"{name}:{i}")
    segs = [a, ev, od, b, d["pro"], d["mp"], d["b1"], d["b2"], d["chk"], disp, ps, pg, pf, d["fb"], d["fl"], d["f2"], end]
    return kernel_text(name, render(segs), vgpr=512, accum=256, sgpr=102)

if __name__ == "__main__":
    t = gen_mega(); print(len(t), t.count("\n"))
```

```python
import sys, json
sys.path.insert(0, "gen")
import final
variants = json.loads(sys.argv[1])
for name, opt in variants.items():
    s = final.make(opt)
    open(f"var_{name}.s", "w").write(s); print(name, len(s))
```
